```python
import torch

def _softmax(x, axis=-1):
    return torch.softmax(x, dim=axis)

def _gelu(x):
    return torch.nn.functional.gelu(x, approximate='tanh')

def _silu(x):
    return torch.nn.functional.silu(x)

def _sigmoid(x):
    return torch.sigmoid(x)

def _layernorm(x, axis=-1, eps=1e-05):
    m = x.mean(dim=axis, keepdim=True)
    v = x.var(dim=axis, keepdim=True, unbiased=False)
    return (x - m) / torch.sqrt(v + eps)

def _scatter_add(tgt, idx, src, axis=0):
    return tgt.clone().index_add_(axis, idx, src)

def _segment_sum(src, seg, n):
    out = torch.zeros((n,) + src.shape[1:], dtype=src.dtype)
    return out.index_add_(0, seg, src)

def _pad(x, pw):
    flat = tuple((v for pair in reversed(pw) for v in pair))
    return torch.nn.functional.pad(x, flat)
kernel_name = 'concat_heads__memory_aug_recurrent_mem_tr__linear_attn_block__prompt'

def setup_inputs():

    _w = lambda a: (lambda t: t.to(torch.bfloat16) if t.is_floating_point() else t)(torch.as_tensor(a))

    def _A_setup():
        B, S, Dm = (1, 2048, 448)
        H, Dh = (16, 256)
        M, seg = (8, 32)
        seg = min(seg, S)
        S = S // seg * seg
        return {'x': _w((lambda *s: torch.randn(*s, dtype=torch.bfloat16) * 0.05)(B, S, Dm)), 'mem0': _w((lambda *s: torch.randn(*s, dtype=torch.bfloat16) * 0.8)(B, M, Dm)), 'Wq': _w((lambda *s: torch.randn(*s, dtype=torch.bfloat16) * 1.6)(Dm, H, Dh) * Dm ** (-0.5)), 'Wk': _w((lambda *s: torch.randn(*s, dtype=torch.bfloat16) * 1.6)(Dm, H, Dh) * Dm ** (-0.5)), 'Wv': _w((lambda *s: torch.randn(*s, dtype=torch.bfloat16) * 0.8)(Dm, H, Dh) * Dm ** (-0.5)), 'Wo': _w((lambda *s: torch.randn(*s, dtype=torch.bfloat16) * 0.8)(H, Dh, Dm) * (H * Dh) ** (-0.5)), 'seg_len': seg}
    _A_in = _A_setup()

    def _B_setup():
        B, S, D = (1, 2048, 448)
        return {'x': _w((lambda *s: torch.randn(*s, dtype=torch.bfloat16) * 0.05)(B, S, D)), 'wqkv': _w((lambda *s: torch.randn(*s, dtype=torch.bfloat16) * 1.6)(D, 3 * D)), 'wo': _w((lambda *s: torch.randn(*s, dtype=torch.bfloat16) * 0.1)(D, D))}
    _B_in = _B_setup()
    return {'A_x': _A_in['x'], 'A_mem0': _A_in['mem0'], 'A_Wq': _A_in['Wq'], 'A_Wk': _A_in['Wk'], 'A_Wv': _A_in['Wv'], 'A_Wo': _A_in['Wo'], 'A_seg_len': _A_in['seg_len'], 'B_x': _B_in['x'], 'B_wqkv': _B_in['wqkv'], 'B_wo': _B_in['wo']}

def reference(A_x, A_mem0, A_Wq, A_Wk, A_Wv, A_Wo, A_seg_len, B_x, B_wqkv, B_wo):

    def _A_ref(x, mem0, Wq, Wk, Wv, Wo, seg_len):
        B, S, Dm = x.shape
        H, Dh = (Wq.shape[1], Wq.shape[2])
        M = mem0.shape[1]
        scale = Dh ** (-0.5)
        n_seg = S // seg_len
        L = M + seg_len
        idx = torch.arange(L)
        mask = (idx[:, None] < M) | (idx[:, None] >= idx[None, :])
        mem = mem0
        outs = []
        for s in range(n_seg):
            xs = x[:, s * seg_len:(s + 1) * seg_len, :].clone()
            h = torch.concatenate([mem, xs], axis=1)
            q = torch.einsum('btd,dhe->bhte', h, Wq)
            k = torch.einsum('btd,dhe->bhte', h, Wk)
            v = torch.einsum('btd,dhe->bhte', h, Wv)
            scores = torch.einsum('bhqe,bhke->bhqk', q, k) * scale
            scores = torch.where(mask[None, None], scores, -1000000000.0)
            p = _softmax(scores, axis=-1)
            o = torch.einsum('bhqk,bhke->bhqe', p, v)
            o = torch.einsum('bhte,hed->btd', o, Wo)
            mem = o[:, :M, :].clone()
            outs.append(o[:, M:, :])
        return torch.concatenate(outs, axis=1)

    def _B_ref(x, wqkv, wo):
        B, S, D = x.shape
        H = 16
        Dh = D // H
        qkv = (lambda x, *d: x.permute(*d))((x @ wqkv).reshape(B, S, 3, H, Dh), 2, 0, 3, 1, 4)
        q, k, v = (qkv[0], qkv[1], qkv[2])
        phi = lambda t: torch.where(t > 0, t + 1, torch.exp(t)) + 1e-06
        pq, pk = (phi(q), phi(k))
        kv = torch.einsum('bhsd,bhse->bhde', pk, v)
        z = torch.einsum('bhsd->bhd', pk)
        num = torch.einsum('bhqd,bhde->bhqe', pq, kv)
        den = torch.einsum('bhqd,bhd->bhq', pq, z)[..., None] + 1e-06
        o = num / den
        return (lambda x, *d: x.permute(*d))(o, 0, 2, 1, 3).reshape(B, S, D) @ wo
    a = _A_ref(A_x, A_mem0, A_Wq, A_Wk, A_Wv, A_Wo, A_seg_len)
    b = _B_ref(B_x, B_wqkv, B_wo)
    return torch.concatenate([a, b], axis=-1)
```

```python
from common import *

SRD = "s[4:7]"
S_W, S_ROLE, S_XCC, S_STEP = 8, 9, 10, 11
S_MEM, S_MEM2, S_P, S_X, S_X2, S_Y, S_SLOW, S_SPIN = 12, 13, 14, 15, 16, 17, 18, 19
S_MEMN, S_XL = 20, 21
S_KB = 32
SPIN_MAX = 1 << 20

SMF = "v_smfmac_f32_16x16x64_bf16"
SMF32 = "v_smfmac_f32_16x16x32_bf16"
MF32 = "v_mfma_f32_16x16x32_bf16"
MF16 = "v_mfma_f32_16x16x16_bf16"

PARAM = dict(sc_sleep=8, oc_sleep=8, oc_msleep=1, sc_sets=2, oc_sets=2, spread=1, ymode=0, ahead=0)


def ld(dst, voff, soff, off=0, flags="sc1"):
    o = " offset:%d" % off if off else ""
    return "buffer_load_dwordx4 %s, %s, %s, %s offen%s %s" % (dst, voff, SRD, soff, o, flags)


def chk_ops(chk, regs):
    out = []
    regs = list(regs)
    out.append("v_max3_u32 %s, %s, %s, %s" % (v(chk), v(regs[0]), v(regs[1]), v(regs[2])))
    regs = regs[3:]
    while len(regs) >= 2:
        out.append("v_max3_u32 %s, %s, %s, %s" % (v(chk), v(chk), v(regs[0]), v(regs[1])))
        regs = regs[2:]
    if regs:
        out.append("v_max_u32 %s, %s, %s" % (v(chk), v(chk), v(regs[0])))
    return out


def spin_guard(A, abort):
    A("s_sub_u32 %s, %s, 1" % (s(S_SPIN), s(S_SPIN)))
    A("s_cbranch_scc1 %s" % abort)


class Stamps:
    def __init__(self, lvl):
        self.lvl = lvl

    def st(self, A, i):
        if self.lvl == 4:
            A("s_memrealtime s[%d:%d]" % (60 + 2 * i, 61 + 2 * i))
        elif self.lvl >= 2 or (self.lvl == 1 and i == 0):
            A("s_memtime s[%d:%d]" % (60 + 2 * i, 61 + 2 * i))

    def flush(self, A, n, tmp):
        if not self.lvl:
            return
        A("s_waitcnt lgkmcnt(0)")
        for i in range(n):
            A("v_writelane_b32 %s, s%d, %d" % (v(tmp), 60 + 2 * i, i))
        A("s_lshl_b32 s58, %s, 14" % s(S_ROLE))
        A("s_lshl_b32 s59, %s, 12" % s(S_W))
        A("s_add_u32 s58, s58, s59")
        A("s_lshl_b32 s59, %s, 6" % s(S_STEP))
        A("s_add_u32 s58, s58, s59")
        A("s_add_u32 s58, s58, 0x%x" % DBG)
        A("s_mov_b64 s[56:57], exec")
        A("s_mov_b64 exec, 0xffff")
        A("v_mbcnt_lo_u32_b32 %s, -1, 0" % v(tmp + 1))
        A("v_lshlrev_b32 %s, 2, %s" % (v(tmp + 1), v(tmp + 1)))
        A("buffer_store_dword %s, %s, %s, s58 offen" % (v(tmp), v(tmp + 1), SRD))
        A("s_mov_b64 exec, s[56:57]")


class Lg:
    def __init__(self):
        self.n = 0
        self.done = 0
        self.tag = {}

    def issue(self, op, tag):
        self.n += 1
        self.tag[tag] = self.n
        return op

    def wait(self, tag):
        if self.tag[tag] <= self.done:
            return ""
        self.done = self.tag[tag]
        k = self.n - self.tag[tag]
        assert k <= 15
        return "s_waitcnt lgkmcnt(%d)" % k


def wait_chain_mode(A, t0, abort):
    L = A.newlabel("cm")
    A("v_mov_b32 %s, 0" % v(t0))
    A("s_mov_b32 s22, 0x%x" % (CNT + C_CHAIN * 128))
    A.label(L)
    spin_guard(A, abort)
    A("buffer_load_dword %s, %s, %s, s22 offen sc1" % (v(t0 + 1), v(t0), SRD))
    A("s_waitcnt vmcnt(0)")
    A("v_readfirstlane_b32 s23, %s" % v(t0 + 1))
    A("s_and_b32 s24, s23, 0xffff")
    A("s_cmp_lt_u32 s24, 32")
    A("s_cbranch_scc1 %s" % L)
    A("s_lshr_b32 %s, s23, 16" % s(S_SLOW))


def wait_counter(A, t0, slot, target, abort):
    L = A.newlabel("wc")
    A("v_mov_b32 %s, 0" % v(t0))
    A("s_mov_b32 s22, 0x%x" % (CNT + slot * 128))
    A.label(L)
    spin_guard(A, abort)
    A("buffer_load_dword %s, %s, %s, s22 offen sc1" % (v(t0 + 1), v(t0), SRD))
    A("s_waitcnt vmcnt(0)")
    A("v_readfirstlane_b32 s23, %s" % v(t0 + 1))
    A("s_cmp_lt_u32 s23, %d" % target)
    A("s_cbranch_scc1 %s" % L)


def poll(A, loads, regs, CHK, abort, sets=2, sleep=0):
    L = A.newlabel("pm")
    G = A.newlabel("pmg")
    if sets == 2:
        for l in loads:
            A(l)
        A("s_nop 15")
        A("s_nop 7")
    A.label(L)
    for l in loads:
        A(l)
    A("s_waitcnt vmcnt(%d)" % (len(loads) if sets == 2 else 0))
    for i in chk_ops(CHK, regs):
        A(i)
    A("v_cmp_eq_u32 vcc, -1, %s" % v(CHK))
    A("s_cbranch_vccz %s" % G)
    spin_guard(A, abort)
    if sleep:
        A("s_sleep %d" % sleep)
    A("s_branch %s" % L)
    A.label(G)


def slot_consts(A, VLP, A1, memi):
    A("v_lshlrev_b32 v9, 4, v0")
    A("s_lshl_b32 s22, %s, 1" % s(S_W))
    for j in range(7):
        A("s_add_u32 s23, s22, %d" % j)
        A("s_cmp_ge_u32 s23, 7")
        A("s_cselect_b32 s24, 7, 0")
        A("s_sub_u32 s23, s23, s24")
        A("s_lshl_b32 s%d, s23, 11" % (S_KB + j))
    A("s_lshl_b32 s22, %s, 11" % s(S_W))
    A("v_add_u32 %s, s22, v9" % v(VLP))
    for i in range(3):
        A("s_lshr_b32 s23, s%d, 1" % (S_KB + 2 + 2 * i))
        A("s_add_u32 s23, s23, %d" % memi)
        A("v_add_u32 %s, s23, v9" % v(A1 + i))
    A("s_mov_b32 %s, 0x%x" % (s(S_MEM), MEM))
    A("s_lshr_b32 s23, s%d, 1" % (S_KB + 1))
    A("s_sub_u32 s23, s23, s22")
    A("s_add_u32 %s, s23, 0x%x" % (s(S_MEM2), MEM))


def mem_reads(lg, MA, A1):
    out = []
    for j in range(2, 7):
        i = (j - 2) >> 1
        out.append(lg.issue("ds_read_b128 %s, %s offset:%d" % (v(MA + 4 * j, 4), v(A1 + i), (j & 1) * 1024), "m%d" % j))
    return out


SC_MEMI, SC_XL = 8192, 16384
SRS = 56


def idx_const(A, IDX):
    A("""
    v_and_b32 v1, 2, v0
    v_mov_b32 v2, 0x4444
    v_mov_b32 v3, 0xeeee
    v_cmp_eq_u32 vcc, 0, v1
    s_nop 1
    v_cndmask_b32 %s, v3, v2, vcc
    """ % v(IDX))


def pkadd(d, a_, b_):
    return "v_pk_add_f32 %s, %s, %s" % (v(d, 2), v(a_, 2), v(b_, 2))


def cvt(d, a_, b_):
    return "v_cvt_pk_bf16_f32 %s, %s, %s" % (v(d), v(a_), v(b_))


def gen_score(A, abort, diag=0, nsteps=63):
    MA, T, MH, XR = 0, 28, 56, 72
    BS, BS3, IDX, VLP, VH0, VH1, VP, VLW, VLR, A1 = 104, 106, 110, 111, 112, 113, 114, 115, 116, 117
    CHK = 108
    TP = 0
    SA = [12, 16, 20]
    D = [T + 0, T + 8, T + 16, T + 24]
    DP = [T + 4, T + 12]
    st = Stamps(diag)

    def W(tau, j):
        i = (tau * 7 + j) * 8
        return a(i, 8) if i < 256 else v(120 + i - 256, 8)

    def Wh(tau, j, hf):
        i = (tau * 14 + 2 * j + hf) * 4
        return a(i, 4) if i < 256 else v(120 + i - 256, 4)

    slot_consts(A, VLP, A1, SC_MEMI)
    A("""
    s_mul_i32 s22, %s, %d
    s_mul_i32 s23, %s, %d
    s_add_u32 s22, s22, s23
    s_add_u32 s22, s22, 0x%x
    """ % (s(S_ROLE), 28 * 14336, s(S_W), 7 * 14336, AW))
    n = 0
    for tau in range(7):
        for j in range(7):
            A("s_add_u32 s23, s22, s%d" % (S_KB + j))
            for hf in range(2):
                A(ld(Wh(tau, j, hf), "v9", "s23", hf * 1024, "nt"))
                n += 1
                if n % 16 == 0 and n >= 48:
                    A("s_waitcnt vmcnt(40)")
        A("s_add_u32 s22, s22, 14336")
    idx_const(A, IDX)
    A("""
    v_bfe_u32 v1, v0, 2, 2
    v_bfe_u32 v2, v0, 4, 2
    v_xor_b32 v1, v1, v2
    v_and_b32 v2, 3, v0
    v_lshl_or_b32 v3, v1, 2, v2
    v_mov_b32 v4, 0x3f80
    v_mov_b32 v5, 0x3f800000
    """)
    for r in range(2):
        A("""
        v_cmp_eq_u32 vcc, %d, v3
        v_cmp_eq_u32 s[22:23], %d, v3
        s_nop 1
        v_cndmask_b32 v6, 0, v4, vcc
        v_cndmask_b32 v7, 0, v5, s[22:23]
        v_or_b32 %s, v6, v7
        """ % (2 * r, 2 * r + 1, v(BS + r)))
    A("""
    s_and_b32 s24, {W}, 1
    s_cmp_eq_u32 s24, 1
    s_cselect_b64 s[22:23], -1, 0
    v_cndmask_b32 {BS3}, {BS0}, {BS1}, s[22:23]
    v_mov_b32 {BS3b}, 0
    s_lshr_b32 s25, {W}, 1
    s_mul_i32 s25, s25, 28
    s_mul_i32 s26, s24, 12
    s_add_u32 s25, s25, s26
    s_lshl_b32 s25, s25, 7
    s_add_u32 s25, s25, {MEMI}
    s_sub_u32 s26, 16, s26
    s_lshl_b32 s26, s26, 7
    """.format(W=s(S_W), MEMI=SC_MEMI, BS3=v(BS3), BS3b=v(BS3 + 1), BS0=v(BS), BS1=v(BS + 1)))
    bits(A, v(VH0), [(5, 1, 256), (1, 2, 64), (4, 1, 32), (0, 1, 16)], "s25")
    A("s_add_u32 s25, s25, 1024")
    bits(A, v(VH1), [(1, 2, 64), (5, 1, 32), (0, 1, 16)], "s25")
    A("v_bfe_u32 v1, v0, 4, 1")
    A("v_mad_u32_u24 %s, v1, s26, %s" % (v(VH1), v(VH1)))
    A("""
    s_lshl_b32 s22, {R}, 9
    s_lshl_b32 s23, {W}, 6
    s_add_u32 s22, s22, s23
    s_lshr_b32 s23, {R}, 2
    s_lshl_b32 s23, s23, 9
    s_lshl_b32 s24, {W}, 5
    s_add_u32 s23, s23, s24
    s_and_b32 s24, {R}, 1
    s_lshl_b32 s24, s24, 4
    s_add_u32 s23, s23, s24
    s_and_b32 s24, {R}, 2
    s_lshl_b32 s24, s24, 1
    s_add_u32 s23, s23, s24
    s_add_u32 s23, s23, 8192
    s_mul_i32 s24, {W}, {RS2}
    s_add_u32 s25, s24, 64
    v_and_b32 v2, 16, v0
    v_cmp_ne_u32 vcc, 0, v2
    """.format(R=s(S_ROLE), W=s(S_W), RS2=2 * SRS * 4))
    bits(A, "v2", [(3, 1, 256), (2, 1, 32), (5, 1, 16), (0, 2, 4)], "s22")
    bits(A, "v3", [(0, 2, 128), (5, 1, 8)], "s23")
    A("v_cndmask_b32 %s, v2, v3, vcc" % v(VP))
    bits(A, "v2", [(5, 1, SRS * 4), (0, 1, 64), (3, 1, 32), (1, 1, 16), (2, 1, 8)], "s25")
    bits(A, "v3", [(5, 1, SRS * 4), (0, 2, 8)], "s24")
    A("v_cndmask_b32 %s, v2, v3, vcc" % v(VLR))
    A("s_mul_i32 s24, %s, %d" % (s(S_W), SRS * 32))
    bits(A, v(VLW), [(4, 2, 2 * SRS * 4), (0, 4, 4)], "s24")
    A("s_mov_b32 %s, 0" % s(S_STEP))
    A("s_mov_b32 %s, 0x%x" % (s(S_P), PM))
    A("s_mul_i32 %s, %s, 6144" % (s(S_X), s(S_W)))
    A("s_add_u32 %s, %s, 0x%x" % (s(S_X), s(S_X), XH))
    A("s_lshl_b32 %s, %s, 11" % (s(S_XL), s(S_W)))
    A("s_add_u32 %s, %s, %d" % (s(S_XL), s(S_XL), SC_XL))

    def xh_dma():
        out = []
        for k in range(4):
            out.append(["s_add_u32 m0, %s, %d" % (s(S_XL), k * 8192),
                        "s_add_u32 s22, %s, %d" % (s(S_X), k * 2048),
                        "buffer_load_dwordx4 %s, %s, s22 offen lds" % (v(VLP), SRD),
                        "buffer_load_dwordx4 %s, %s, s22 offen offset:1024 lds" % (v(VLP), SRD)])
        return out

    for g_ in xh_dma():
        for o in g_:
            A(o)
    wait_chain_mode(A, 1, abort)

    LOOP = A.newlabel("sc_loop")
    A.label(LOOP)
    A("s_waitcnt vmcnt(0)")
    for i in range(8):
        A("ds_read_b128 %s, %s offset:%d" % (v(XR + 4 * i, 4), v(VLP), SC_XL + (i >> 1) * 8192 + (i & 1) * 1024))
    for i in range(28):
        A("v_mov_b32 %s, 0" % v(T + i))
    A("s_add_u32 %s, %s, %d" % (s(S_X), s(S_X), XH_S))
    st.st(A, 0)
    poll(A, [ld(v(MA, 4), v(VLP), s(S_MEM)), ld(v(MA + 4, 4), v(VLP), s(S_MEM2))], range(MA, MA + 8), CHK, abort,
         PARAM["sc_sets"])
    st.st(A, 1)

    def M(tau, j):
        return "%s %s, %s, %s, %s" % (SMF, v(T + 4 * tau, 4), v(MA + 4 * j, 4), W(tau, j), v(IDX))

    tails = []
    lg = Lg()
    fill = {i: [] for i in range(49)}
    A("ds_write_b128 %s, %s offset:%d" % (v(VLP), v(MA, 4), SC_MEMI))
    A("ds_write_b128 %s, %s offset:%d" % (v(VLP), v(MA + 4, 4), SC_MEMI + 1024))
    mr = mem_reads(lg, MA, A1)
    mhl = [lg.issue("ds_read_b128 %s, %s" % (v(MH, 4), v(VH0)), "h"),
           lg.issue("ds_read_b128 %s, %s offset:512" % (v(MH + 4, 4), v(VH0)), "h"),
           lg.issue("ds_read_b128 %s, %s" % (v(MH + 8, 4), v(VH1)), "h"),
           lg.issue("ds_read_b128 %s, %s offset:256" % (v(MH + 12, 4), v(VH1)), "h")]
    fill[3] += ["s_waitcnt lgkmcnt(0)", "s_barrier"] + mr[:2]
    fill[4] += mr[2:4]
    fill[5] += mr[4:] + mhl[:1]
    fill[6] += mhl[1:3]
    fill[7] += mhl[3:]
    if diag == 3:
        fill[13].append("s_waitcnt lgkmcnt(0)")
        for i_, p_ in enumerate([3, 13, 20, 27, 34, 41]):
            fill[p_].append("s_memtime s[%d:%d]" % (70 + 2 * i_, 71 + 2 * i_))
    else:
        for j in range(2, 7):
            fill[7 * j - 1].append(lg.wait("m%d" % j))
    for k, g_ in enumerate(xh_dma()):
        if PARAM["spread"] == 2:
            pass
        elif PARAM["spread"]:
            fill[8 + 8 * k] += g_[:3]
            fill[12 + 8 * k] += g_[3:]
        else:
            fill[14 + 2 * k] += g_
    fill[40].append("s_waitcnt vmcnt(8) lgkmcnt(0)")
    for i in range(4):
        fill[28 + i // 2].append("v_mov_b32 %s, 0" % v(SA[0] + i))
    for j in range(6):
        for tau in range(7):
            A(M(tau, j))
            for o in fill[7 * j + tau]:
                A(o)

    def c(tau):
        t = T + 4 * tau
        return [pkadd(t, t, t + 2), cvt(TP + tau, t, t + 1)]

    def d(p):
        dst = DP[p >> 1] + 2 * (p & 1)
        return [cvt(dst, D[p], D[p] + 1), cvt(dst + 1, D[p] + 2, D[p] + 3)]

    def X(p):
        return "%s %s, %s, %s, 0" % (MF16, v(D[p], 4), v(TP + 2 * p, 2), v(BS if p < 3 else BS3, 2))

    def S(b, u):
        bop = v(MH + 8 * b, 8) if u == 0 else v(XR + (b * 2 + u - 1) * 8, 8)
        return "%s %s, %s, %s, %s" % (SMF, v(SA[u], 4), v(DP[b], 4), bop, v(IDX))

    def z(u):
        return ["v_mov_b32 %s, 0" % v(SA[u] + i) for i in range(4)]

    seq = [M(0, 6)] + z(1)[:2] + [M(1, 6)] + z(1)[2:] + [M(2, 6)] + c(0) + [M(3, 6)] + c(1) + [M(4, 6)] + c(2)
    seq += [X(0)] + c(3) + [M(5, 6)] + c(4) + [X(1)] + z(2)[:2] + [M(6, 6)] + c(5) + d(0)
    seq += [X(2)] + d(1) + c(6) + [S(0, 1)] + z(2)[2:] + [X(3)] + d(2) + [S(0, 0), "s_nop 1", S(0, 2)] + d(3) + ["s_nop 1"]
    seq += [S(1, 1), S(1, 0), S(1, 2), "s_nop 1"]
    for u in [1, 0, 2]:
        r = SA[u]
        seq += [pkadd(r, r, r + 2),
                "ds_write2_b32 %s, %s, %s offset0:%d offset1:%d" % (v(VLW), v(r), v(r + 1), 16 * u, SRS + 16 * u)]
        if u != 2:
            seq += ["s_nop 1"]
    k5 = [0]

    def st5():
        if diag == 5:
            A("s_memtime s[%d:%d]" % (70 + 2 * k5[0], 71 + 2 * k5[0]))
            k5[0] += 1
    st5()
    for o in seq:
        A(o)
        if o in (M(6, 6), X(3), S(1, 2)) or o.startswith("ds_write2") and "offset0:16 " in o:
            st5()
    st.st(A, 2)
    R = T
    A("s_waitcnt lgkmcnt(0)")
    A("s_barrier")
    if diag == 3:
        A("s_memtime s[82:83]")
    for k in range(4):
        A("ds_read_b64 %s, %s offset:%d" % (v(R + 2 * k, 2), v(VLR), k * SRS * 32))
    A("s_cmp_eq_u32 %s, 0" % s(S_SLOW))
    A("s_waitcnt lgkmcnt(%d)" % (0 if diag == 3 else 2))
    if diag == 3:
        A("s_memtime s[84:85]")
    A(pkadd(R, R, R + 2))
    A("s_waitcnt lgkmcnt(0)")
    A(pkadd(R + 4, R + 4, R + 6))
    A(pkadd(R, R, R + 4))
    m, m2 = R + 2, R + 3
    st5()
    A("v_max_f32 %s, %s, %s" % (v(m), v(R), v(R + 1)))
    for ror in [8, 4, 2, 1]:
        A("s_nop 1")
        A("v_max_f32_dpp %s, %s, %s row_ror:%d row_mask:0xf bank_mask:0xf" % (v(m), v(m), v(m), ror))
    A("v_mov_b32 %s, %s" % (v(m2), v(m)))
    A("s_nop 1")
    A("v_permlane16_swap_b32 %s, %s" % (v(m), v(m2)))
    A("v_max_f32 %s, %s, %s" % (v(m), v(m), v(m2)))
    st5()
    A("v_sub_f32 %s, %s, %s" % (v(R), v(R), v(m)))
    A("v_sub_f32 %s, %s, %s" % (v(R + 1), v(R + 1), v(m)))
    A("v_exp_f32 %s, %s" % (v(R), v(R)))
    A("v_exp_f32 %s, %s" % (v(R + 1), v(R + 1)))
    A("s_nop 0")
    A("v_add_f32 %s, %s, %s" % (v(m), v(R), v(R + 1)))
    for ror in [8, 4, 2, 1]:
        A("s_nop 1")
        A("v_add_f32_dpp %s, %s, %s row_ror:%d row_mask:0x%x bank_mask:0xf" % (v(m), v(m), v(m), ror, 0x5 if ror >= 4 else 0xf))
    A("v_mov_b32 %s, %s" % (v(m2), v(m)))
    A("s_nop 1")
    A("v_permlane16_swap_b32 %s, %s" % (v(m), v(m2)))
    A("v_add_f32 %s, %s, %s" % (v(m), v(m), v(m2)))
    st5()
    A("v_rcp_f32 %s, %s" % (v(m), v(m)))
    A("s_nop 0")
    A("v_mul_f32 %s, %s, %s" % (v(R), v(R), v(m)))
    A("v_mul_f32 %s, %s, %s" % (v(R + 1), v(R + 1), v(m)))
    A("v_cvt_pk_bf16_f32 %s, %s, %s" % (v(R), v(R), v(R + 1)))
    A("v_min_u32 %s, -2, %s" % (v(R), v(R)))
    SL = A.newlabel("slowp")
    BK = A.newlabel("backp")
    A("s_cbranch_scc0 %s" % SL)
    A("buffer_store_dword %s, %s, %s, %s offen" % (v(R), v(VP), SRD, s(S_P)))
    A.label(BK)
    st.st(A, 3)
    if diag:
        A("s_memrealtime s[68:69]")
    st.flush(A, 13, T + 8)

    def tail_slow():
        A.label(SL)
        A("buffer_store_dword %s, %s, %s, %s offen sc1" % (v(R), v(VP), SRD, s(S_P)))
        A("s_branch %s" % BK)
    tails.append(tail_slow)
    A("s_add_u32 %s, %s, %d" % (s(S_MEM), s(S_MEM), MEM_S))
    A("s_add_u32 %s, %s, %d" % (s(S_MEM2), s(S_MEM2), MEM_S))
    A("s_add_u32 %s, %s, 16384" % (s(S_P), s(S_P)))
    A("s_add_u32 %s, %s, 1" % (s(S_STEP), s(S_STEP)))
    if PARAM["sc_sleep"]:
        A("s_sleep %d" % PARAM["sc_sleep"])
    A("s_cmp_lt_u32 %s, %d" % (s(S_STEP), nsteps))
    A("s_cbranch_scc1 %s" % LOOP)
    A("s_waitcnt vmcnt(0)")
    A("s_endpgm")
    for t in tails:
        t()


RED2 = 0
OC_MEMI = 4096
OC_WL = 12288


def gen_out(A, abort, diag=0, nsteps=63, wait_u=False):
    MA, YA, YP, U, P, D, WS = 0, 28, 60, 76, 108, 120, 128
    IDX, VLP, VPA, VPB, VLW, VLR, VST, CHK, VWL, R, A1 = 160, 161, 162, 163, 164, 165, 166, 167, 168, 169, 172
    st = Stamps(diag)

    def W(i, j):
        x = (i * 7 + j) * 8
        return a(x, 8) if x < 256 else v(176 + x - 256, 8)

    def Wh(i, j, hf):
        x = (i * 14 + 2 * j + hf) * 4
        return a(x, 4) if x < 256 else v(176 + x - 256, 4)

    slot_consts(A, VLP, A1, OC_MEMI)
    A("""
    s_sub_u32 s30, %s, 16
    s_mul_i32 s22, %s, %d
    s_mul_i32 s23, s30, %d
    s_add_u32 s22, s22, s23
    s_add_u32 s22, s22, 0x%x
    s_mul_i32 s24, %s, 28672
    s_add_u32 s24, s24, %d
    """ % (s(S_ROLE), s(S_W), 4 * 28 * 14336, 2 * 14336, VW, s(S_W), OC_WL))
    n = 0
    for hh in range(4):
        for ct in range(2):
            A("s_add_u32 s25, s22, %d" % (hh * 28 * 14336 + ct * 14336))
            for j in range(7):
                if hh == 3:
                    A("s_add_u32 m0, s24, %d" % (ct * 14336 + j * 2048))
                A("s_add_u32 s23, s25, s%d" % (S_KB + j))
                for hf in range(2):
                    if hh < 3:
                        A(ld(Wh(2 * hh + ct, j, hf), "v9", "s23", hf * 1024, "nt"))
                    else:
                        o = " offset:1024" if hf else ""
                        A("buffer_load_dwordx4 v9, %s, s23 offen%s nt lds" % (SRD, o))
                    n += 1
                    if n % 16 == 0 and n >= 48:
                        A("s_waitcnt vmcnt(40)")
    idx_const(A, IDX)
    A("""
    s_lshl_b32 s24, {W}, 9
    s_add_u32 s24, s24, 8192
    v_lshl_add_u32 {VPB}, v0, 3, s24
    s_lshl_b32 s24, {W}, 10
    s_add_u32 s24, s24, {RED2}
    v_add_u32 {VLW}, s24, v9
    s_mul_i32 s24, {W}, 28672
    s_add_u32 s24, s24, {OC_WL}
    v_add_u32 {VWL}, s24, v9
    s_and_b32 s25, {W}, 1
    s_lshl_b32 s24, s25, 7
    s_add_u32 s24, s24, {RED2}
    s_lshl_b32 s25, s25, 9
    s_lshr_b32 s26, s30, 1
    s_lshl_b32 s26, s26, 10
    s_add_u32 s25, s25, s26
    s_and_b32 s26, s30, 1
    s_lshl_b32 s26, s26, 5
    s_add_u32 s25, s25, s26
    """.format(W=s(S_W), VPB=v(VPB), VLW=v(VLW), VWL=v(VWL), RED2=RED2, OC_WL=OC_WL))
    bits(A, v(VLR), [(3, 2, 256), (5, 1, 64), (0, 2, 16), (2, 1, 8)], "s24")
    bits(A, v(VST), [(5, 1, 256), (3, 2, 64), (2, 1, 16), (0, 2, 4)], "s25")
    A("s_mov_b32 %s, 0" % s(S_STEP))
    A("s_mov_b32 %s, 0x%x" % (s(S_P), PM))
    A("s_mul_i32 %s, %s, 6144" % (s(S_X), s(S_W)))
    A("s_lshl_b32 s24, s30, 15")
    A("s_add_u32 %s, %s, s24" % (s(S_X), s(S_X)))
    A("s_add_u32 %s, %s, 0x%x" % (s(S_X), s(S_X), UB))
    A("s_add_u32 %s, %s, 4096" % (s(S_X2), s(S_X)))
    A("s_mov_b32 %s, 0x%x" % (s(S_Y), CNT + (C_U + 1) * 128))
    wait_chain_mode(A, 1, abort)
    if wait_u:
        wait_counter(A, 1, C_U, wait_u, abort)
    A("s_mov_b32 %s, 0x%x" % (s(S_MEMN), MEM + MEM_S))
    A("s_cmp_ge_u32 %s, 2" % s(S_W))
    A("s_cselect_b32 %s, 0x%x, %s" % (s(S_MEMN), MEMW + MEM_S, s(S_MEMN)))
    A("s_cselect_b32 %s, 1, %s" % (s(S_SLOW), s(S_SLOW)))

    lg = Lg()

    def stage(j):
        buf = WS + 16 * (j & 1)
        return [lg.issue("ds_read_b128 %s, %s offset:%d" % (v(buf + 8 * ct + 4 * hf, 4), v(VWL), ct * 14336 + (2 * j + hf) * 1024),
                         "w%d" % j) for ct in range(2) for hf in range(2)]

    LOOP = A.newlabel("oc_loop")
    A.label(LOOP)
    for o in stage(0):
        A(o)
    for i in range(32):
        A("v_mov_b32 %s, 0" % v(YA + i))
    for i in range(8):
        A("v_mov_b32 %s, 0" % v(D + i))
    st.st(A, 0)
    poll(A, [ld(v(MA, 4), v(VLP), s(S_MEM)), ld(v(MA + 4, 4), v(VLP), s(S_MEM2))], range(MA, MA + 8), CHK, abort,
         1, PARAM["oc_msleep"])
    st.st(A, 1)
    A("ds_write_b128 %s, %s offset:%d" % (v(VLP), v(MA, 4), OC_MEMI))
    A("ds_write_b128 %s, %s offset:%d" % (v(VLP), v(MA + 4, 4), OC_MEMI + 1024))
    tails = []
    uloads = []
    for i in range(8):
        hh, ct = i >> 1, i & 1
        uloads.append(ld(v(U + ((hh >> 1) * 2 + ct) * 8 + (hh & 1) * 4, 4), v(VLP), s(S_X) if i < 4 else s(S_X2),
                         (i & 3) * 1024, "sc1"))

    def yp(i):
        hh, ct = i >> 1, i & 1
        y = YA + 4 * i
        return [pkadd(y, y, y + 2), cvt(YP + 4 * ct + hh, y, y + 1)]

    for j in range(7):
        for i in range(8):
            bop = W(i, j) if i < 6 else v(WS + 16 * (j & 1) + 8 * (i - 6), 8)
            if i == 0 and j >= 2:
                A(lg.wait("m%d" % j))
            if i == 6 and j >= 1:
                A(lg.wait("w%d" % j))
            A("%s %s, %s, %s, %s" % (SMF, v(YA + 4 * i, 4), v(MA + 4 * j, 4), bop, v(IDX)))
            if j == 0:
                if i == 3:
                    A("s_waitcnt lgkmcnt(0)")
                    A("s_barrier")
                    mr = mem_reads(lg, MA, A1)
                    A(mr[0]); A(mr[1])
                elif i == 4:
                    A(mr[2]); A(mr[3])
                elif i == 5:
                    A(mr[4])
                    sg = stage(1)
                    A(sg[0])
                elif i == 6:
                    A(sg[1]); A(sg[2])
                elif i == 7:
                    A(sg[3])
            elif j < 6:
                if i == 0:
                    sg = stage(j + 1)
                    A(sg[0]); A(sg[1])
                elif i == 1:
                    A(sg[2]); A(sg[3])
                if PARAM["spread"]:
                    if j <= 4 and i in (2, 6):
                        A(uloads[(j - 1) * 2 + (i >> 2)])
                    if wait_u and j == 5 and i == 2:
                        A("buffer_load_dword %s, off, %s, %s sc1" % (v(VPA), SRD, s(S_Y)))
                elif j in (2, 3) and 2 <= i < 6:
                    A(uloads[(j - 2) * 4 + i - 2])
            else:
                if i >= 3:
                    for o in yp(i - 3):
                        A(o)
    A("s_nop 1")
    for o in yp(5):
        A(o)
    A("s_nop 1")
    for o in yp(6):
        A(o)
    A("s_nop 1")
    for o in yp(7):
        A(o)
    st.st(A, 2)
    if PARAM["oc_sleep"]:
        A("s_sleep %d" % PARAM["oc_sleep"])
    A("s_waitcnt vmcnt(0)")
    pl = [ld(v(P, 4), v(VLP), s(S_P), 0), ld(v(P + 4, 4), v(VLP), s(S_P), 1024),
          "buffer_load_dwordx2 %s, %s, %s, %s offen sc1" % (v(P + 8, 2), v(VPB), SRD, s(S_P))]
    poll(A, pl, range(P, P + 10), CHK, abort, PARAM["oc_sets"])
    st.st(A, 3)
    for b in range(3):
        for ct in range(2):
            if b < 2:
                A("%s %s, %s, %s, %s" % (SMF, v(D + 4 * ct, 4), v(P + 4 * b, 4), v(U + (b * 2 + ct) * 8, 8), v(IDX)))
            else:
                A("%s %s, %s, %s, %s" % (SMF32, v(D + 4 * ct, 4), v(P + 8, 2), v(YP + 4 * ct, 4), v(IDX)))
    A("s_cmp_eq_u32 %s, 0" % s(S_SLOW))
    A("s_nop 3")
    Q = YA
    for ct in range(2):
        r = D + 4 * ct
        A("v_add_f32 %s, %s, %s" % (v(Q + ct), v(r), v(r + 2)))
        A("v_add_f32 %s, %s, %s" % (v(Q + 2 + ct), v(r + 1), v(r + 3)))
        if ct == 0:
            A("s_nop 1")
    A("ds_write_b128 %s, %s" % (v(VLW), v(Q, 4)))
    A("s_waitcnt lgkmcnt(0)")
    A("s_barrier")
    Z = YA + 4
    for k in range(4):
        A("ds_read_b64 %s, %s offset:%d" % (v(Z + 2 * k, 2), v(VLR), k * 1024))
    A("s_waitcnt lgkmcnt(2)")
    A(pkadd(Z, Z, Z + 2))
    A("s_waitcnt lgkmcnt(0)")
    A(pkadd(Z + 4, Z + 4, Z + 6))
    A(pkadd(Z, Z, Z + 4))
    A("v_cvt_pk_bf16_f32 %s, %s, %s" % (v(R), v(Z), v(Z + 1)))
    A("v_min_u32 %s, -2, %s" % (v(R), v(R)))
    SL = A.newlabel("slowm")
    BK = A.newlabel("backm")
    A("s_cbranch_scc0 %s" % SL)
    A("buffer_store_dword %s, %s, %s, %s offen" % (v(R), v(VST), SRD, s(S_MEMN)))
    A.label(BK)
    st.st(A, 4)
    st.flush(A, 5, R + 1)

    def tail_slow():
        A.label(SL)
        A("buffer_store_dword %s, %s, %s, %s offen sc1" % (v(R), v(VST), SRD, s(S_MEMN)))
        A("s_branch %s" % BK)
    tails.append(tail_slow)
    for r_, inc in [(S_MEM, MEM_S), (S_MEM2, MEM_S), (S_MEMN, MEM_S), (S_P, 16384), (S_X, U_S), (S_X2, U_S), (S_STEP, 1)]:
        A("s_add_u32 %s, %s, %d" % (s(r_), s(r_), inc))
    if wait_u:
        U1 = A.newlabel("oc_u1")
        A("s_cmp_eq_u32 %s, 33" % s(S_STEP))
        A("s_cbranch_scc1 %s" % U1)

        def tail_u1():
            A.label(U1)
            A("v_readfirstlane_b32 s23, %s" % v(VPA))
            A("s_cmp_ge_u32 s23, %d" % wait_u)
            A("s_cbranch_scc1 %s" % LOOP)
            wait_counter(A, R + 1, C_U + 1, wait_u, abort)
            A("s_branch %s" % LOOP)
        tails.append(tail_u1)
    A("s_cmp_lt_u32 %s, %d" % (s(S_STEP), nsteps))
    A("s_cbranch_scc1 %s" % LOOP)
    A("s_endpgm")
    for t in tails:
        t()


def gen_pf(A, abort, ahead=3):
    A("""
    s_cmp_lg_u32 {W}, 0
    s_cbranch_scc1 .pf_end
    s_mov_b32 {STEP}, 0
    v_lshlrev_b32 v1, 7, v0
    v_mov_b32 v2, 0
    s_mov_b32 {Y}, 0x{XH:x}
    s_mov_b32 {MEM}, 0x{M0:x}
    s_mov_b32 {X}, 0x{M1:x}
    s_mov_b32 {P}, 0x{PM:x}
    """.format(W=s(S_W), STEP=s(S_STEP), X=s(S_X), Y=s(S_Y), XH=XH, MEM=s(S_MEM), M0=MEM, M1=MEM + MEM_S, PM=PM, P=s(S_P)))
    LOOP = A.newlabel("pf_loop")
    PL = A.newlabel("pf_poll")
    GO = A.newlabel("pf_go")
    A.label(LOOP)
    A("s_cmp_lt_u32 %s, %d" % (s(S_STEP), ahead))
    A("s_cbranch_scc1 %s" % GO)
    A.label(PL)
    spin_guard(A, abort)
    A("s_sleep 4")
    A("buffer_load_dword v3, v2, %s, %s offen sc1" % (SRD, s(S_MEM)))
    A("s_waitcnt vmcnt(0)")
    A("v_readfirstlane_b32 s22, v3")
    A("s_cmp_eq_u32 s22, -1")
    A("s_cbranch_scc1 %s" % PL)
    A("s_add_u32 %s, %s, %d" % (s(S_MEM), s(S_MEM), MEM_S))
    A.label(GO)
    A("buffer_load_dword v4, v1, %s, %s offen sc1" % (SRD, s(S_X)))
    A("buffer_load_dword v5, v1, %s, %s offen sc1" % (SRD, s(S_P)))
    A("s_add_u32 s22, %s, 8192" % s(S_P))
    A("buffer_load_dword v6, v1, %s, s22 offen sc1" % SRD)
    for i in range(4):
        A("buffer_load_dword v%d, v1, %s, %s offen sc1" % (7 + i, SRD, s(S_Y)))
        A("s_add_u32 %s, %s, 8192" % (s(S_Y), s(S_Y)))
    A("s_add_u32 %s, %s, %d" % (s(S_X), s(S_X), MEM_S))
    A("s_add_u32 %s, %s, 16384" % (s(S_P), s(S_P)))
    A("s_add_u32 %s, %s, 1" % (s(S_STEP), s(S_STEP)))
    A("s_cmp_lt_u32 %s, 63" % s(S_STEP))
    A("s_cbranch_scc1 %s" % LOOP)
    A("s_waitcnt vmcnt(0)")
    A.label(".pf_end")
    A("s_endpgm")
```

```python
NAME = "concat_heads__memory_aug_recurrent_mem_tr__linear_attn_block__prompt"

WS_BYTES = 0x10000000
AW = 0x0000000
VW = 0x0700000
UB = 0x1000000
U_S = 14 * 16 * 2 * 1024
XH = 0x2C00000
XH_S = 32768
SENT0 = 0x4000000
MEM_S = 16384
MEM = SENT0 - MEM_S
MEMW = MEM + 8192
PM = SENT0 + 0x100000
PX = SENT0 + 0x200000
PX_S = 40960
SENT1 = SENT0 + 0x500000
ZERO0 = 0x4800000
CNT = 0x4800000
KV = 0x4810000
ZERO1 = 0x4820000
DBG = 0x5000000
TXB = 0x6000000

C_XCD = 0
C_CHAIN = 8
C_U = 9
C_KV = 11

NAW = 176
R_AW, R_BW, R_SH = 32, 208, 224


def row_i(m, hb):
    return 4 * (m >> 1) + 2 * hb + (m & 1)


def mem_off(q, m):
    return (q >> 1) * 256 + row_i(m, q & 1) * 16


def chunk_q(w, b, sig):
    v = w >> 1
    odd = w & 1
    if b == 0:
        return 28 * v + 12 * odd + sig
    if sig & 1:
        return 28 * v + 24 + (sig >> 1)
    return 28 * v + 12 * odd + 8 + (sig >> 1)


def chunk_col(q, e):
    kb, ga, hb = q >> 3, (q >> 1) & 3, q & 1
    return 64 * kb + 16 * ga + 4 * (e >> 1) + 2 * hb + (e & 1)


def tile_pos(w, tau):
    if tau < 4:
        return 0, tau
    if tau < 6:
        return 1, tau - 4
    return 1, 2 + (w & 1)


def aw_col(t, n):
    w, tau = divmod(t, 7)
    b, tp = tile_pos(w, tau)
    sig = 2 * (n >> 2) + (tp >> 1)
    e = 4 * ((n >> 1) & 1) + 2 * (tp & 1) + (n & 1)
    return chunk_col(chunk_q(w, b, sig), e)


def vw_col(t, n):
    return 64 * (t >> 2) + 4 * n + (t & 3)


class Asm:
    def __init__(self):
        self.lines = []
        self.uid = 0

    def __call__(self, s):
        for l in s.strip("\n").split("\n"):
            l = l.strip()
            if l:
                self.lines.append("    " + l)

    def label(self, l):
        self.lines.append(l + ":")

    def raw(self, s):
        self.lines.append(s)

    def newlabel(self, p="L"):
        self.uid += 1
        return ".%s_%d" % (p, self.uid)

    def text(self):
        return "\n".join(self.lines) + "\n"


def v(i, n=1):
    return "v%d" % i if n == 1 else "v[%d:%d]" % (i, i + n - 1)


def a(i, n=1):
    return "a%d" % i if n == 1 else "a[%d:%d]" % (i, i + n - 1)


def s(i, n=1):
    return "s%d" % i if n == 1 else "s[%d:%d]" % (i, i + n - 1)


def bits(A, dst, terms, add=None, tmp="v1", stmp="s28", src="v0"):
    first = True
    if add is not None:
        A("v_mov_b32 %s, %s" % (dst, add))
        first = False
    for lo, w, mul in terms:
        A("v_bfe_u32 %s, %s, %d, %d" % (tmp, src, lo, w))
        p2 = mul & (mul - 1) == 0
        sh = mul.bit_length() - 1
        if first:
            if p2:
                A("v_lshlrev_b32 %s, %d, %s" % (dst, sh, tmp))
            else:
                A("v_mul_u32_u24 %s, %d, %s" % (dst, mul, tmp))
            first = False
        elif p2:
            A("v_lshl_add_u32 %s, %s, %d, %s" % (dst, tmp, sh, dst))
        else:
            A("s_mov_b32 %s, %d" % (stmp, mul))
            A("v_mad_u32_u24 %s, %s, %s, %s" % (dst, tmp, stmp, dst))


if __name__ == "__main__":
    cols = sorted(aw_col(t, n) for t in range(28) for n in range(16))
    assert cols == list(range(448))
    cols = sorted(vw_col(t, n) for t in range(28) for n in range(16))
    assert cols == list(range(448))
    print("ok")
```

```python
import struct
from common import *

MF32 = "v_mfma_f32_16x16x32_bf16"
CSC = struct.unpack("<I", struct.pack("<f", (1 / 16) * 1.4426950408889634))[0]
WBYTES = 448 * 8192


def srd(A, dst, lo, nbytes):
    A("s_mov_b32 s%d, s%d" % (dst, lo))
    A("s_and_b32 s%d, s%d, 0xffff" % (dst + 1, lo + 1))
    A("s_mov_b32 s%d, 0x%x" % (dst + 2, nbytes))
    A("s_mov_b32 s%d, 0x00020000" % (dst + 3))


def cvt(d, a_, b_):
    return "v_cvt_pk_bf16_f32 %s, %s, %s" % (v(d), v(a_), v(b_))


def gen_k1(A, stf=""):
    A("""
    s_cmp_ge_u32 s2, 256
    s_cbranch_scc1 .k1_end
    s_load_dwordx2 s[4:5], s[0:1], 96
    s_load_dwordx4 s[40:43], s[0:1], 0
    s_load_dwordx8 s[44:51], s[0:1], 16
    v_lshrrev_b32 v1, 6, v0
    v_lshlrev_b32 v8, 4, v0
    s_mov_b32 s6, 0x%x
    s_mov_b32 s7, 0x00020000
    v_readfirstlane_b32 s8, v1
    v_and_b32 v0, 63, v0
    v_mov_b32 v4, -1
    v_mov_b32 v5, -1
    v_mov_b32 v6, -1
    v_mov_b32 v7, -1
    v_lshlrev_b32 v9, 4, v0
    s_mul_i32 s22, s2, 20480
    s_add_u32 s22, s22, 0x%x
    s_waitcnt lgkmcnt(0)
    s_and_b32 s5, s5, 0xffff
    """ % (WS_BYTES, SENT0))

    def fill():
        for i in range(5):
            A("buffer_store_dwordx4 v[4:7], v8, s[4:7], s22 offen%s" % stf)
            if i < 4:
                A("s_add_u32 s22, s22, 4096")
    A("""
    s_cmp_ge_u32 s2, 224
    s_cbranch_scc1 .k1_misc
    s_lshr_b32 s24, s2, 3
    s_cmp_ge_u32 s24, 14
    s_cselect_b32 s25, 14, 0
    s_sub_u32 s24, s24, s25
    s_cmp_ge_u32 s24, 7
    s_cselect_b32 s25, 7, 0
    s_cselect_b32 s26, 1, 0
    s_sub_u32 s10, s24, s25
    s_and_b32 s9, s2, 7
    s_lshl_b32 s9, s9, 1
    s_add_u32 s9, s9, s26
    """)
    bits(A, "v10", [(2, 2, 65536), (0, 2, 8192), (4, 2, 16)])
    A("s_cmp_ge_u32 s2, 112")
    A("s_cbranch_scc1 .k1_vw")
    srd(A, 12, 44, WBYTES)
    srd(A, 16, 46, WBYTES)
    bits(A, "v11", [(1, 3, 65536), (0, 1, 8192), (4, 2, 16)])
    bits(A, "v12", [(3, 1, 131072), (2, 1, 16384), (1, 1, 65536), (0, 1, 8192), (4, 2, 16)])
    A("""
    s_lshl_b32 s24, s9, 9
    s_lshl_b32 s25, s10, 19
    s_add_u32 s25, s25, s24
    s_lshr_b32 s26, s8, 1
    s_and_b32 s27, s8, 1
    s_mul_i32 s28, s26, %d
    s_add_u32 s28, s28, s24
    s_mul_i32 s29, s27, %d
    s_add_u32 s29, s29, s28
    s_lshl_b32 s27, s27, 15
    s_add_u32 s28, s28, s27
    """ % (28 * 8 * 8192, 12 * 8 * 8192))
    for m in range(4):
        A("s_add_u32 s%d, s25, %d" % (52 + m, (32 * (m >> 1) + 4 * (m & 1)) * 8192))
    for tau in range(6):
        c = 2 * (tau >> 1) + 4 * (tau & 1) if tau < 4 else 64 + 4 * (tau & 1)
        A("s_add_u32 s%d, s29, %d" % (56 + tau, c * 8192))
    A("s_add_u32 s62, s28, %d" % (192 * 8192))

    def Af(kk, m):
        return a((kk * 4 + m) * 4, 4)

    def Bf(kk, tau):
        return a(128 + (kk * 7 + tau) * 4, 4) if kk < 4 else v(128 + ((kk - 4) * 7 + tau) * 4, 4)

    def acc(m, tau):
        return 16 + (m * 7 + tau) * 4
    for kk in range(8):
        o = " offset:%d" % (kk * 64) if kk else ""
        for m in range(4):
            A("buffer_load_dwordx4 %s, v10, s[12:15], s%d offen%s" % (Af(kk, m), 52 + m, o))
        for tau in range(7):
            A("buffer_load_dwordx4 %s, %s, s[16:19], s%d offen%s" % (Bf(kk, tau), "v11" if tau < 4 else "v12", 56 + tau, o))
    fill()
    for kk in range(8):
        A("s_waitcnt vmcnt(%d)" % min(63, 5 + 88 - 11 * (kk + 1)))
        for m in range(4):
            for tau in range(7):
                d = v(acc(m, tau), 4)
                A("%s %s, %s, %s, %s" % (MF32, d, Af(kk, m), Bf(kk, tau), d if kk else "0"))
    A("""
    s_mul_i32 s22, s9, %d
    s_mul_i32 s23, s8, %d
    s_add_u32 s22, s22, s23
    s_lshl_b32 s23, s10, 11
    s_add_u32 s22, s22, s23
    s_add_u32 s22, s22, 0x%x
    s_mov_b32 s24, 0x%x
    s_mov_b32 s25, 0x%x
    s_nop 7
    """ % (28 * 14336, 7 * 14336, AW, CSC, CSC))
    for tau in range(7):
        for ksl in range(2):
            o = 128 + (tau * 2 + ksl) * 4
            for mt in range(2):
                r = acc(2 * ksl + mt, tau)
                A("v_pk_mul_f32 %s, %s, s[24:25]" % (v(r, 2), v(r, 2)))
                A("v_pk_mul_f32 %s, %s, s[24:25]" % (v(r + 2, 2), v(r + 2, 2)))
                A(cvt(o + 2 * mt, r, r + 1))
                A(cvt(o + 2 * mt + 1, r + 2, r + 3))
            A("buffer_store_dwordx4 %s, v9, s[4:7], s22 offen%s%s" % (v(o, 4), " offset:1024" if ksl else "", stf))
        A("s_add_u32 s22, s22, 14336")
    A("s_endpgm")
    A.label(".k1_vw")
    srd(A, 12, 48, WBYTES)
    srd(A, 16, 50, WBYTES)
    bits(A, "v11", [(4, 2, 8 * 896), (0, 4, 8)])
    A("""
    v_add_u32 v12, %d, v11
    s_mul_i32 s24, s9, 229376
    s_lshl_b32 s25, s10, 7
    s_add_u32 s24, s24, s25
    s_mul_i32 s25, s8, %d
    s_add_u32 s24, s24, s25
    s_add_u32 s25, s24, %d
    s_lshl_b32 s26, s8, 2
    s_min_u32 s26, s26, 10
    s_lshl_b32 s27, s26, 18
    s_lshl_b32 s28, s9, 9
    s_add_u32 s27, s27, s28
    s_mov_b32 s30, 0x05040100
    s_mov_b32 s31, 0x07060302
    s_lshl_b32 s28, s8, 13
    v_add_u32 v13, s28, v9
    """ % (4 * 896, 64 * 896, 32 * 896))
    R = 144
    for k2 in range(2):
        for j in range(8):
            o = " offset:%d" % ((j & 3) * 896) if j & 3 else ""
            A("buffer_load_dwordx2 %s, %s, s[16:19], s%d offen%s" % (v(R + (k2 * 8 + j) * 2, 2), "v11" if j < 4 else "v12", 24 + k2, o))
    for m in range(8):
        A("s_add_u32 s%d, s27, %d" % (52 + m, (32 * (m >> 1) + 4 * (m & 1)) * 8192))

    def Av(kk, m):
        return a((kk * 8 + m) * 4, 4)

    def aload(kk):
        o = " offset:%d" % (kk * 64) if kk else ""
        for m in range(8):
            A("buffer_load_dwordx4 %s, v10, s[12:15], s%d offen%s" % (Av(kk, m), 52 + m, o))
    for kk in range(5):
        aload(kk)
    A("s_waitcnt vmcnt(40)")
    P = 176
    for k2 in range(2):
        for u in range(4):
            for p in range(4):
                A("v_perm_b32 %s, %s, %s, s%d" % (v(P + (k2 * 4 + u) * 4 + p), v(R + (k2 * 8 + 2 * p + 1) * 2 + (u >> 1)),
                                                 v(R + (k2 * 8 + 2 * p) * 2 + (u >> 1)), 30 + (u & 1)))
            A("ds_write_b128 v13, %s offset:%d" % (v(P + (k2 * 4 + u) * 4, 4), (k2 * 4 + u) * 1024))
    for kk in range(5, 8):
        aload(kk)
    fill()
    A("s_waitcnt lgkmcnt(0)")
    A("s_barrier")

    def accv(m, u):
        return 16 + (m * 4 + u) * 4

    def bread(kk):
        for u in range(4):
            A("ds_read_b128 %s, v9 offset:%d" % (v(R + (kk % 3) * 16 + u * 4, 4), (kk * 4 + u) * 1024))
    bread(0)
    bread(1)
    for kk in range(8):
        if kk + 2 < 8:
            bread(kk + 2)
        A("s_waitcnt vmcnt(%d) lgkmcnt(%d)" % (min(63, 5 + 64 - 8 * (kk + 1)), 4 * min(2, 7 - kk)))
        for m in range(8):
            for u in range(4):
                d = v(accv(m, u), 4)
                A("%s %s, %s, %s, %s" % (MF32, d, Av(kk, m), v(R + (kk % 3) * 16 + u * 4, 4), d if kk else "0"))
    A("""
    s_mul_i32 s22, s9, %d
    s_mul_i32 s23, s10, %d
    s_add_u32 s22, s22, s23
    s_lshl_b32 s23, s26, 10
    s_add_u32 s22, s22, s23
    s_add_u32 s22, s22, 0x%x
    s_nop 7
    """ % (28 * 14336, 4 * 14336, VW))
    for u in range(4):
        for ksl in range(4):
            o = R + (u * 4 + ksl) * 4
            for mt in range(2):
                r = accv(2 * ksl + mt, u)
                A(cvt(o + 2 * mt, r, r + 1))
                A(cvt(o + 2 * mt + 1, r + 2, r + 3))
            A("buffer_store_dwordx4 %s, v9, s[4:7], s22 offen%s%s" % (v(o, 4), " offset:%d" % (ksl * 1024) if ksl else "", stf))
        A("s_add_u32 s22, s22, 14336")
    A("s_endpgm")
    A.label(".k1_misc")
    srd(A, 12, 40, 2048 * 896)
    srd(A, 16, 42, 8 * 896)
    fill()
    A("""
    s_sub_u32 s9, s2, 224
    s_lshl_b32 s22, s9, 12
    s_add_u32 s22, s22, 0x%x
    v_mov_b32 v12, 0
    v_mov_b32 v13, 0
    v_mov_b32 v14, 0
    v_mov_b32 v15, 0
    buffer_store_dwordx4 v[12:15], v8, s[4:7], s22 offen%s
    s_lshr_b32 s26, s8, 1
    s_and_b32 s27, s8, 1
    s_mul_i32 s24, s26, %d
    s_mul_i32 s25, s27, %d
    s_add_u32 s24, s24, s25
    s_mul_i32 s25, s9, %d
    s_add_u32 s24, s24, s25
    s_mul_i32 s27, s27, 192
    s_sub_u32 s27, 256, s27
    """ % (ZERO0, stf, 28 * 16, 12 * 16, 64 * 896))
    bits(A, "v10", [(0, 4, 896), (5, 1, 32), (4, 1, 4)])
    bits(A, "v11", [(0, 4, 896), (5, 1, 4)])
    A("v_bfe_u32 v1, v0, 4, 1")
    A("v_mad_u32_u24 v11, v1, s27, v11")
    n = 0
    for sg in range(2):
        for tile in range(2):
            A("s_add_u32 s25, s24, %d" % ((32 * sg + 16 * tile) * 896))
            for b in range(2):
                for hf in range(2):
                    r = 16 + (((sg * 2 + b) * 2 + tile) * 2 + hf) * 4
                    base = 64 * hf if b == 0 else 128 + 32 * hf
                    for e in range(4):
                        A("buffer_load_dword %s, %s, s[12:15], s25 offen offset:%d" % (v(r + e), "v11" if b else "v10", base + 8 * e))
    A("""
    s_lshl_b32 s22, s9, 16
    s_lshl_b32 s23, s8, 13
    s_add_u32 s22, s22, s23
    s_add_u32 s22, s22, 0x%x
    s_waitcnt vmcnt(0)
    """ % XH)
    for sg in range(2):
        for i in range(8):
            if i == 4:
                A("s_add_u32 s22, s22, 4096")
            o = " offset:%d" % ((i & 3) * 1024) if i & 3 else ""
            A("buffer_store_dwordx4 %s, v9, s[4:7], s22 offen%s%s" % (v(16 + (sg * 8 + i) * 4, 4), o, stf))
        A("s_add_u32 s22, s22, %d" % (32768 - 4096))
    A("""
    s_cmp_ge_u32 s9, 2
    s_cbranch_scc1 .k1_end
    s_lshl_b32 s22, s9, 2
    s_add_u32 s22, s22, s8
    s_cmp_ge_u32 s22, 7
    s_cbranch_scc1 .k1_end
    s_lshl_b32 s23, s22, 7
    s_lshl_b32 s22, s22, 10
    s_add_u32 s22, s22, 0x%x
    s_add_u32 s24, s22, 8192
    """ % MEM)
    bits(A, "v10", [(4, 2, 32), (1, 1, 4), (2, 2, 2 * 896), (0, 1, 896)])
    for e in range(4):
        A("buffer_load_dword %s, v10, s[16:19], s23 offen offset:%d" % (v(4 + e), 8 * e))
    A("s_waitcnt vmcnt(0)")
    for e in range(4):
        A("v_min_u32 %s, -2, %s" % (v(4 + e), v(4 + e)))
    A("buffer_store_dwordx4 v[4:7], v9, s[4:7], s22 offen%s" % stf)
    A("buffer_store_dwordx4 v[4:7], v9, s[4:7], s24 offen%s" % stf)
    A.label(".k1_end")
    A("s_endpgm")
```

```python
from common import *
from chain import *
from k1 import srd

NEG = "0xf149f2ca"


def off(o):
    return " offset:%d" % o if o else ""


def signal(A, slot_expr_sgpr):
    L = A.newlabel("sig")
    A("s_waitcnt vmcnt(0)")
    A("s_barrier")
    A("s_cmp_lg_u32 %s, 0" % s(S_W))
    A("s_cbranch_scc1 %s" % L)
    A("s_mov_b64 exec, 1")
    A("v_mov_b32 v1, 0")
    A("v_mov_b32 v2, 1")
    A("buffer_atomic_add v2, v1, %s, %s offen" % (SRD, slot_expr_sgpr))
    A("s_mov_b64 exec, -1")
    A.label(L)


def wait_counter2(A, slot, target, abort, sleep=4):
    L = A.newlabel("wc")
    G = A.newlabel("wcg")
    A("v_mov_b32 v1, 0")
    A("s_mov_b32 s22, 0x%x" % (CNT + slot * 128))
    A.label(L)
    A("buffer_load_dword v2, v1, %s, s22 offen sc1" % SRD)
    A("s_waitcnt vmcnt(0)")
    A("v_readfirstlane_b32 s23, v2")
    A("s_cmp_ge_u32 s23, %d" % target)
    A("s_cbranch_scc1 %s" % G)
    spin_guard(A, abort)
    A("s_sleep %d" % sleep)
    A("s_branch %s" % L)
    A.label(G)


def poll_light(A, sreg, abort, sleep):
    L = A.newlabel("pl")
    G = A.newlabel("plg")
    A("v_mov_b32 v1, 0")
    A.label(L)
    A("buffer_load_dword v2, v1, %s, %s offen sc1" % (SRD, sreg))
    A("s_waitcnt vmcnt(0)")
    A("v_readfirstlane_b32 s23, v2")
    A("s_cmp_lg_u32 s23, -1")
    A("s_cbranch_scc1 %s" % G)
    spin_guard(A, abort)
    A("s_sleep %d" % sleep)
    A("s_branch %s" % L)
    A.label(G)


def xred(A, op, m, m2):
    for sw in ["v_permlane16_swap_b32", "v_permlane32_swap_b32"]:
        A("v_mov_b32 %s, %s" % (v(m2), v(m)))
        A("s_nop 1")
        A("%s %s, %s" % (sw, v(m), v(m2)))
        A("s_nop 0")
        A("%s %s, %s, %s" % (op, v(m), v(m), v(m2)))


def gen_aworker(A, abort):
    XB, ACC, TMP = 16, 64, 232
    S_H, S_I, S_PASS = 30, 31, 29
    A("""
    s_load_dwordx2 s[40:41], s[0:1], 0
    s_sub_u32 s22, {R}, {R0}
    s_mul_i32 s30, s22, 373
    s_lshr_b32 s30, s30, 12
    s_mul_i32 s23, s30, 11
    s_sub_u32 s31, s22, s23
    v_lshlrev_b32 v9, 4, v0
    v_add_u32 v10, 4096, v9
    v_add_u32 v11, 0x2000, v9
    v_add_u32 v12, 0x3000, v9
    v_add_u32 v14, 0xa800, v9
    s_mov_b32 s29, 0
    s_waitcnt lgkmcnt(0)
    """.format(R=s(S_ROLE), R0=R_AW))
    srd(A, 12, 40, 2048 * 896)
    bits(A, "v13", [(0, 4, 896), (4, 2, 16)])
    A("""
    s_mul_i32 s22, s30, %d
    s_mul_i32 s23, %s, %d
    s_add_u32 s22, s22, s23
    s_mul_i32 s24, %s, 7
    s_lshl_b32 s25, s30, 11
    s_add_u32 s25, s25, 0x%x
    """ % (28 * 14336, s(S_W), 7 * 14336, s(S_W), UB))
    for tau in range(7):
        A("s_add_u32 s%d, s22, %d" % (44 + tau, tau * 14336))
        A("s_add_u32 s26, s24, %d" % tau)
        A("s_lshr_b32 s27, s26, 1")
        A("s_lshl_b32 s27, s27, 15")
        A("s_and_b32 s26, s26, 1")
        A("s_lshl_b32 s26, s26, 10")
        A("s_add_u32 s27, s27, s26")
        A("s_add_u32 s%d, s27, s25" % (51 + tau))
    PASS = A.newlabel("aw_pass")
    A.label(PASS)
    A("s_mul_i32 s22, s29, 33")
    A("s_add_u32 s40, s22, s31")
    A("s_add_u32 s41, s40, 11")
    A("s_add_u32 s42, s40, 22")
    A("s_cmp_ge_u32 s42, 64")
    A("s_cselect_b32 s42, s41, s42")
    A("s_barrier")
    for q in range(4):
        A("s_add_u32 s22, %s, %d" % (s(S_W), 4 * q))
        A("s_min_u32 s22, s22, 13")
        A("s_mul_i32 s23, s22, 6144")
        A("s_lshl_b32 s22, s22, 6")
        for k in range(3):
            A("s_mul_i32 s24, s%d, %d" % (40 + k, 32 * 896))
            A("s_add_u32 s24, s24, s22")
            A("s_add_u32 s25, s24, %d" % (16 * 896))
            A("s_add_u32 m0, s23, %d" % (k * 2048))
            A("s_nop 0")
            A("buffer_load_dwordx4 v13, s[12:15], s24 offen lds")
            A("s_add_u32 m0, s23, %d" % (k * 2048 + 1024))
            A("s_nop 0")
            A("buffer_load_dwordx4 v13, s[12:15], s25 offen lds")

    def Wf(ks, tau):
        return a(((ks & 3) * 7 + tau) * 4, 4)

    def wload(ks, tau, base):
        return "buffer_load_dwordx4 %s, v%d, %s, s%d offen%s" % (Wf(ks, tau), 9 + (ks >> 2), SRD, 44 + tau, off((ks & 3) * 1024))

    def xread(ks, mt):
        o = (ks * 6 + mt) * 1024
        r = "v9"
        if o >= 0xa800:
            o -= 0xa800
            r = "v14"
        return "ds_read_b128 %s, %s%s" % (v(XB + ((ks & 1) * 6 + mt) * 4, 4), r, off(o))

    def gemm(swapped, first):
        for ks in range(3):
            for tau in range(7):
                A(wload(ks, tau, 0))
        if first:
            A("s_waitcnt vmcnt(21)")
            A("s_barrier")
        for mt in range(6):
            A(xread(0, mt))
        for ks in range(14):
            nl = min(2, 13 - ks)
            A("s_waitcnt vmcnt(%d) lgkmcnt(0)" % (7 * nl))
            n = 0
            for mt in range(6):
                for tau in range(7):
                    d = v(ACC + (mt * 7 + tau) * 4, 4)
                    x = v(XB + ((ks & 1) * 6 + mt) * 4, 4)
                    p, q = (Wf(ks, tau), x) if swapped else (x, Wf(ks, tau))
                    A("%s %s, %s, %s, %s" % (MF32, d, p, q, d if ks else "0"))
                    if n % 3 == 1:
                        i = n // 3
                        if i < 6 and ks + 1 < 14:
                            A(xread(ks + 1, i))
                        elif i >= 6 and i < 13 and ks + 3 < 14:
                            A(wload(ks + 3, i - 6, 0))
                    n += 1
        A("s_nop 7")

    tmp = [0]

    def T():
        tmp[0] = (tmp[0] + 1) % 6
        return TMP + 4 * tmp[0]

    for tau in range(7):
        A("s_add_u32 s%d, s%d, 0x%x" % (44 + tau, 44 + tau, VW))
    gemm(False, True)
    for k in range(3):
        A("s_mul_i32 s24, s%d, %d" % (40 + k, U_S))
        for tau in range(7):
            t = T()
            for mt in range(2):
                r = ACC + ((2 * k + mt) * 7 + tau) * 4
                A(cvt(t + 2 * mt, r, r + 1))
                A(cvt(t + 2 * mt + 1, r + 2, r + 3))
            A("s_add_u32 s25, s24, s%d" % (51 + tau))
            A("buffer_store_dwordx4 %s, v9, %s, s25 offen sc1" % (v(t, 4), SRD))
    A("s_lshl_b32 s26, s29, 7")
    A("s_add_u32 s26, s26, 0x%x" % (CNT + C_U * 128))
    signal(A, "s26")
    for tau in range(7):
        A("s_sub_u32 s%d, s%d, 0x%x" % (44 + tau, 44 + tau, VW - AW))
    gemm(True, False)
    for tau in range(7):
        A("s_sub_u32 s%d, s%d, 0x%x" % (44 + tau, 44 + tau, AW))
    A("""
    s_mul_i32 s26, {W}, 3072
    s_lshr_b32 s27, {W}, 1
    s_lshl_b32 s27, s27, 10
    s_and_b32 s28, {W}, 1
    s_lshl_b32 s28, s28, 2
    s_add_u32 s27, s27, s28
    s_add_u32 s27, s27, 12288
    s_lshl_b32 s28, s30, 6
    """.format(W=s(S_W)))
    for mt in range(6):
        A("s_add_u32 s22, s28, s%d" % (40 + (mt >> 1)))
        A("s_mul_i32 s22, s22, 28672")
        A("s_add_u32 s22, s22, 0x%x" % (TXB + (mt & 1) * 14336))
        A("s_add_u32 s23, s22, s27")
        A("s_add_u32 s22, s22, s26")
        for pp in range(3):
            t = T()
            r0 = ACC + (mt * 7 + 2 * pp) * 4
            r1 = r0 + 4
            A(cvt(t, r0, r0 + 1))
            A(cvt(t + 1, r1, r1 + 1))
            A(cvt(t + 2, r0 + 2, r0 + 3))
            A(cvt(t + 3, r1 + 2, r1 + 3))
            A("buffer_store_dwordx4 %s, v9, %s, s22 offen%s" % (v(t, 4), SRD, off(pp * 1024)))
        t = T()
        r0 = ACC + (mt * 7 + 6) * 4
        A(cvt(t, r0, r0 + 1))
        A(cvt(t + 1, r0 + 2, r0 + 3))
        A("buffer_store_dword %s, v9, %s, s23 offen" % (v(t), SRD))
        A("buffer_store_dword %s, v9, %s, s23 offen offset:8" % (v(t + 1), SRD))
    A("s_add_u32 s29, s29, 1")
    A("s_cmp_lt_u32 s29, 2")
    A("s_cbranch_scc1 %s" % PASS)
    A("s_waitcnt vmcnt(0)")
    A("s_barrier")

    MFR, SX, SM, CHK, VA, VB, VX, VM = 16, 72, 80, 88, 89, 90, 91, 92
    m, m2, PO = 93, 94, 96
    bits(A, v(VA), [(4, 2, 256), (2, 2, 64), (0, 1, 16)])
    bits(A, v(VB), [(5, 1, 256), (4, 1, 32), (2, 2, 64), (0, 1, 16)])
    bits(A, v(VX), [(5, 1, 1024), (4, 1, 512), (0, 4, 16)])
    A("""
    s_and_b32 s28, {W}, 1
    s_lshl_b32 s22, s28, 4
    v_and_b32 v1, 15, v0
    v_add_u32 v1, s22, v1
    v_lshrrev_b32 v2, 4, v0
    v_lshlrev_b32 v2, 2, v2
    v_sub_u32 {VM}, v1, v2
    s_lshr_b32 s29, {W}, 1
    s_mul_i32 s29, s29, 11
    s_add_u32 s29, s29, s31
    """.format(W=s(S_W), VM=v(VM)))
    for kt in range(2):
        for r in range(4):
            A("v_cmp_le_i32 %s, %d, %s" % (s(60 + 2 * (kt * 4 + r), 2), 16 * kt + r, v(VM)))
    pairs = []
    for w in range(4):
        q0 = 28 * (w >> 1) + 12 * (w & 1)
        pairs.append((w * 8192, VA, q0 * 128, 3 * w))
        pairs.append((w * 8192 + 256, VA, q0 * 128 + 32, 3 * w + 1))
        pairs.append((w * 8192 + 4096, VB, (q0 + 8) * 128, 3 * w + 2))
    for vv in range(2):
        pairs.append((2 * vv * 8192 + 4096 + 256, VB, (28 * vv + 24) * 128, 12 + vv))
    ITEM = A.newlabel("aw_item")
    A.label(ITEM)
    A("""
    s_lshl_b32 s22, s30, 6
    s_add_u32 s22, s22, s29
    s_lshl_b32 s22, s22, 1
    s_add_u32 s22, s22, s28
    s_mul_i32 s22, s22, 14336
    s_add_u32 s22, s22, 0x%x
    s_lshl_b32 s24, s29, 15
    s_add_u32 s24, s24, 0x%x
    s_lshl_b32 s26, s29, 14
    s_add_u32 s26, s26, 0x%x
    s_add_u32 s27, s26, 4096
    """ % (TXB, XH, MEMW))
    for p in range(14):
        A("buffer_load_dwordx4 %s, v%d, %s, s22 offen%s sc1" % (a(112 + 4 * p, 4), 9 + (p >> 2), SRD, off((p & 3) * 1024)))
    for p, (xc, _, _, ti) in enumerate(pairs):
        A("s_add_u32 s25, s24, %d" % (xc & ~4095))
        for kt in range(2):
            A("buffer_load_dwordx4 %s, %s, %s, s25 offen%s" % (a((kt * 14 + p) * 4, 4), v(VX), SRD, off((xc & 4095) + kt * 2048)))
    A("s_waitcnt vmcnt(0)")
    for p, (xc, _, _, ti) in enumerate(pairs):
        for kt in range(2):
            d = v(SX + 4 * kt, 4)
            A("%s %s, %s, %s, %s" % (MF32, d, a((kt * 14 + p) * 4, 4), a(112 + 4 * ti, 4), d if p else "0"))
    poll_light(A, "s26", abort, 8)
    ml = []
    for p, (_, vr, mc, _) in enumerate(pairs):
        ml.append(ld(v(MFR + 4 * p, 4), v(vr), "s27" if mc >= 4096 else "s26", mc & 4095))
    poll(A, ml, range(MFR, MFR + 56), CHK, abort, 1, 2)
    for p, (_, _, _, ti) in enumerate(pairs):
        d = v(SM + 4 * (p & 1), 4)
        A("%s %s, %s, %s, %s" % (MF32, d, v(MFR + 4 * p, 4), a(112 + 4 * ti, 4), d if p >= 2 else "0"))
    A("v_mov_b32 %s, %s" % (v(m2), NEG))
    for i in range(8):
        A("v_cndmask_b32 %s, %s, %s, %s" % (v(SX + i), v(m2), v(SX + i), s(60 + 2 * i, 2)))
    A("v_max3_f32 %s, %s, %s, %s" % (v(m), v(SX), v(SX + 1), v(SX + 2)))
    A("v_max3_f32 %s, %s, %s, %s" % (v(m), v(m), v(SX + 3), v(SX + 4)))
    A("v_max3_f32 %s, %s, %s, %s" % (v(m), v(m), v(SX + 5), v(SX + 6)))
    A("v_max_f32 %s, %s, %s" % (v(m), v(m), v(SX + 7)))
    A("v_add_f32 %s, %s, %s" % (v(SM), v(SM), v(SM + 4)))
    A("v_add_f32 %s, %s, %s" % (v(SM + 1), v(SM + 1), v(SM + 5)))
    A("v_max3_f32 %s, %s, %s, %s" % (v(m), v(m), v(SM), v(SM + 1)))
    xred(A, "v_max_f32", m, m2)
    for i in range(10):
        A("v_sub_f32 %s, %s, %s" % (v(SX + i), v(SX + i), v(m)))
    for i in range(10):
        A("v_exp_f32 %s, %s" % (v(SX + i), v(SX + i)))
    A("s_nop 0")
    A("v_add_f32 %s, %s, %s" % (v(m), v(SX), v(SX + 1)))
    for i in range(2, 10):
        A("v_add_f32 %s, %s, %s" % (v(m), v(m), v(SX + i)))
    xred(A, "v_add_f32", m, m2)
    A("v_rcp_f32 %s, %s" % (v(m), v(m)))
    A("""
    s_mul_i32 s22, s29, %d
    s_mul_i32 s23, s28, 20480
    s_add_u32 s22, s22, s23
    s_add_u32 s22, s22, 0x%x
    s_lshr_b32 s23, s30, 2
    s_lshl_b32 s23, s23, 10
    s_and_b32 s24, s30, 3
    s_lshl_b32 s24, s24, 2
    s_add_u32 s23, s23, s24
    s_add_u32 s23, s23, s22
    s_add_u32 s23, s23, 16384
    s_lshl_b32 s24, s30, 10
    s_add_u32 s22, s22, s24
    """ % (PX_S, PX))
    for i in range(10):
        A("v_mul_f32 %s, %s, %s" % (v(SX + i), v(SX + i), v(m)))
    for i in range(5):
        A(cvt(PO + i, SX + 2 * i, SX + 2 * i + 1))
        A("v_min_u32 %s, -2, %s" % (v(PO + i), v(PO + i)))
    A("buffer_store_dwordx4 %s, v9, %s, s22 offen sc1" % (v(PO, 4), SRD))
    A("buffer_store_dword %s, v9, %s, s23 offen sc1" % (v(PO + 4), SRD))
    A("s_add_u32 s29, s29, 22")
    A("s_cmp_lt_u32 s29, 64")
    A("s_cbranch_scc1 %s" % ITEM)
    A("s_endpgm")


def gen_shadow(A, abort):
    SETS = [16, 100]
    YA, YP, D, RT, CHK, IDX = 184, 200, 204, 212, 228, 229
    VG, VU, VU2, VL4, VLW, VO = 10, 11, 12, 13, 14, 15
    A("""
    s_load_dwordx2 s[40:41], s[0:1], 80
    s_sub_u32 s30, {R}, {R0}
    s_lshr_b32 s31, s30, 2
    s_and_b32 s29, s30, 3
    s_lshl_b32 s29, s29, 6
    v_lshlrev_b32 v9, 4, v0
    v_add_u32 {VL4}, 4096, v9
    s_mul_i32 s22, {W}, {C1}
    s_mul_i32 s23, s31, {C2}
    s_add_u32 s22, s22, s23
    s_add_u32 s22, s22, s29
    s_add_u32 s22, s22, 0x{VW:x}
    """.format(R=s(S_ROLE), R0=R_SH, VL4=v(VL4), W=s(S_W), C1=4 * 28 * 14336, C2=4 * 14336, VW=VW))
    bits(A, v(VG), [(0, 2, 14336), (4, 2, 256), (2, 2, 16)])
    for hh in range(4):
        for ks in range(14):
            if ks & 3 == 0:
                A("s_add_u32 s23, s22, %d" % (hh * 28 * 14336 + ks * 1024))
            A("buffer_load_dwordx4 %s, %s, %s, s23 offen%s" % (a((hh * 14 + ks) * 4, 4), v(VG), SRD, off((ks & 3) * 1024)))
    bits(A, v(VU), [(1, 1, 32768), (0, 1, 1024), (4, 2, 256), (2, 2, 16)])
    A("v_add_u32 %s, 4096, %s" % (v(VU2), v(VU)))
    idx_const(A, IDX)
    A("s_waitcnt lgkmcnt(0)")
    srd(A, 12, 40, 2048 * 1792)
    A("""
    s_lshl_b32 s44, s31, 16
    s_lshl_b32 s23, {W}, 13
    s_add_u32 s44, s44, s23
    s_add_u32 s44, s44, s29
    s_add_u32 s44, s44, 0x{UB:x}
    s_mov_b32 s45, 0x{MEMW:x}
    s_lshl_b32 s46, {W}, 12
    s_add_u32 s46, s46, 0x{PX:x}
    s_add_u32 s47, s46, 20480
    s_lshl_b32 s48, {W}, 10
    s_add_u32 s48, s48, 0x{PXM:x}
    s_add_u32 s49, s48, 20480
    s_mul_i32 s50, {W}, {RT}
    s_lshl_b32 s23, s30, 5
    s_add_u32 s50, s50, s23
    s_lshl_b32 s23, {W}, 11
    v_add_u32 {VLW}, s23, v9
    s_lshl_b32 s23, {W}, 10
    v_add_u32 v8, s23, v9
    s_mov_b32 {STEP}, 0
    """.format(W=s(S_W), UB=UB, MEMW=MEMW, PX=PX, PXM=PX + 16384, RT=16 * 1792, VLW=v(VLW), STEP=s(S_STEP)))
    bits(A, v(VO), [(0, 4, 1792), (4, 2, 8)])
    wait_counter2(A, C_U, NAW, abort)

    def mloads(X, sreg):
        return [ld(v(X + 4 * j, 4), "v9" if j < 4 else v(VL4), sreg, (j & 3) * 1024) for j in range(7)]

    def ploads(X, b):
        out = []
        for rt in range(2):
            for hh in range(4):
                out.append(ld(v(X + 28 + (rt * 5 + hh) * 4, 4), "v9", "s%d" % (b + rt), hh * 1024))
            out.append(ld(v(X + 28 + (rt * 5 + 4) * 4, 4), "v9", "s%d" % (b + 2 + rt)))
        return out

    def uloads(X):
        return [ld(v(X + 68 + 4 * hh, 4), v(VU) if hh < 2 else v(VU2), "s44", (hh & 1) * 2048) for hh in range(4)]

    for o in uloads(SETS[0]) + mloads(SETS[0], "s45") + ploads(SETS[0], 46):
        A(o)
    LOOP = A.newlabel("sh_loop")
    A.label(LOOP)
    for par in range(2):
        X, XN = SETS[par], SETS[1 - par]
        for i in range(16):
            A("v_mov_b32 %s, 0" % v(YA + i))
        OK = A.newlabel("sh_mok")
        A("s_waitcnt vmcnt(10)")
        for i in chk_ops(CHK, range(X, X + 28)):
            A(i)
        A("v_cmp_eq_u32 vcc, -1, %s" % v(CHK))
        A("s_cbranch_vccz %s" % OK)
        poll_light(A, "s45", abort, 2)
        poll(A, mloads(X, "s45"), range(X, X + 28), CHK, abort, 1, 1)
        A.label(OK)
        for j in range(7):
            for hh in range(4):
                A("%s %s, %s, %s, %s" % (SMF, v(YA + 4 * hh, 4), v(X + 4 * j, 4), a((hh * 7 + j) * 8, 8), v(IDX)))
        for i in range(4):
            A("s_mov_b32 s%d, s%d" % (52 + i, 46 + i))
            A("s_add_u32 s%d, s%d, %d" % (46 + i, 46 + i, PX_S))
        A("s_add_u32 s44, s44, %d" % U_S)
        A("s_add_u32 s45, s45, %d" % MEM_S)
        if par == 0:
            NW = A.newlabel("sh_nw")
            A("s_cmp_lg_u32 %s, 32" % s(S_STEP))
            A("s_cbranch_scc1 %s" % NW)
            wait_counter2(A, C_U + 1, NAW, abort)
            A.label(NW)
        for o in uloads(XN) + mloads(XN, "s45") + ploads(XN, 46):
            A(o)
        for hh in range(4):
            y = YA + 4 * hh
            A("v_add_f32 %s, %s, %s" % (v(y), v(y), v(y + 2)))
            A("v_add_f32 %s, %s, %s" % (v(y + 1), v(y + 1), v(y + 3)))
            A(cvt(YP + hh, y, y + 1))
        OK = A.newlabel("sh_pok")
        A("s_waitcnt vmcnt(21)")
        for i in chk_ops(CHK, range(X + 28, X + 68)):
            A(i)
        A("v_cmp_eq_u32 vcc, -1, %s" % v(CHK))
        A("s_cbranch_vccz %s" % OK)
        poll(A, ploads(X, 52), range(X + 28, X + 68), CHK, abort, 1, 4)
        A.label(OK)
        for hh in range(5):
            for rt in range(2):
                d = v(D + 4 * rt, 4)
                aop = v(X + 68 + 4 * hh, 4) if hh < 4 else v(YP, 4)
                A("%s %s, %s, %s, %s" % (MF32, d, aop, v(X + 28 + (rt * 5 + hh) * 4, 4), d if hh else "0"))
        A("s_nop 7")
        for rt in range(2):
            A("ds_write_b128 %s, %s%s" % (v(VLW), v(D + 4 * rt, 4), off(par * 8192 + rt * 1024)))
        A("s_waitcnt lgkmcnt(0)")
        A("s_barrier")
        SK = A.newlabel("sh_skip")
        A("s_cmp_ge_u32 %s, 2" % s(S_W))
        A("s_cbranch_scc1 %s" % SK)
        for k in range(4):
            A("ds_read_b128 %s, v8%s" % (v(RT + 4 * k, 4), off(par * 8192 + k * 2048)))
        A("s_waitcnt lgkmcnt(0)")
        A(pkadd(RT, RT, RT + 4))
        A(pkadd(RT + 2, RT + 2, RT + 6))
        A(pkadd(RT + 8, RT + 8, RT + 12))
        A(pkadd(RT + 10, RT + 10, RT + 14))
        A(pkadd(RT, RT, RT + 8))
        A(pkadd(RT + 2, RT + 2, RT + 10))
        A(cvt(RT, RT, RT + 1))
        A(cvt(RT + 1, RT + 2, RT + 3))
        A("buffer_store_dwordx2 %s, %s, s[12:15], s50 offen" % (v(RT, 2), v(VO)))
        A.label(SK)
        A("s_add_u32 s50, s50, %d" % (32 * 1792))
        A("s_add_u32 %s, %s, 1" % (s(S_STEP), s(S_STEP)))
    A("s_cmp_lt_u32 %s, 64" % s(S_STEP))
    A("s_cbranch_scc1 %s" % LOOP)
    A("s_waitcnt vmcnt(0)")
    A("s_endpgm")


def gen_bworker(A, abort):
    XB, RAW, WP, ACC = 16, 80, 112, 128
    VXR, VKM, VKE, VONE = 14, 15, 3, 4
    LOG2E = "0x3fb8aa3b"
    EPS = "0x358637bd"
    A("""
    s_load_dwordx8 s[48:55], s[0:1], 56
    s_sub_u32 s30, {R}, {R0}
    v_lshlrev_b32 v9, 4, v0
    s_mov_b32 s60, 0x05040100
    s_mov_b32 s61, 0x07060302
    s_mov_b32 s62, {L}
    s_mov_b32 s63, {E}
    s_waitcnt lgkmcnt(0)
    """.format(R=s(S_ROLE), R0=R_BW, L=LOG2E, E=EPS))
    srd(A, 12, 48, 2048 * 896)
    srd(A, 32, 50, 448 * 2688)
    srd(A, 36, 52, 448 * 896)
    srd(A, 40, 54, 2048 * 1792)
    bits(A, "v13", [(0, 4, 896), (4, 2, 16)])
    A("""
    s_mul_i32 s24, s30, %d
    s_mul_i32 s25, %s, %d
    s_add_u32 s24, s24, s25
    s_add_u32 s25, s24, %d
    s_lshl_b32 s23, %s, 11
    """ % (128 * 896, s(S_W), 32 * 896, 16 * 896, s(S_W)))
    for ks in range(14):
        for m in range(2):
            A("s_add_u32 m0, s23, %d" % (ks * 8192 + m * 1024 - ks * 64))
            A("s_nop 0")
            A("buffer_load_dwordx4 v13, s[12:15], s%d offen%s lds" % (24 + m, off(ks * 64)))

    def offs12():
        bits(A, "v10", [(4, 2, 8 * 2688), (0, 4, 4)])
        A("""
        v_and_b32 v1, 15, v0
        v_cmp_le_u32 vcc, 14, v1
        v_mov_b32 v2, 0x10000000
        s_nop 0
        v_cndmask_b32 v2, 0, v2, vcc
        v_add_u32 v10, v10, v2
        v_add_u32 v11, %d, v10
        v_add_u32 v12, %d, v10
        v_add_u32 v13, %d, v10
        """ % (2 * 2688, 4 * 2688, 6 * 2688))
    A("s_waitcnt vmcnt(0)")
    offs12()
    A("""
    v_cndmask_b32 {VKM}, 1.0, 0, vcc
    v_mul_f32 {VKE}, s63, {VKM}
    v_cmp_eq_u32 vcc, 14, v1
    v_mov_b32 v2, 0x3f803f80
    s_nop 0
    v_cndmask_b32 {VONE}, 0, v2, vcc
    v_lshlrev_b32 v8, 2, v0
    s_barrier
    """.format(VKM=v(VKM), VKE=v(VKE), VONE=v(VONE)))

    def acc(pr, u, mt):
        return ACC + ((pr * 2 + u) * 8 + mt) * 4

    def gemm(nks, sr, addr, step, rows, swapped):
        def raw(st):
            for pr in range(2):
                for j in range(8):
                    vr, o = addr(pr, j)
                    A("buffer_load_dword %s, %s, %s, s44 offen%s" % (v(RAW + st * 16 + pr * 8 + j), vr, sr, off(o)))
            A("s_add_u32 s44, s44, %d" % step)

        def xr(st):
            for mt in range(8):
                A("ds_read_b128 %s, %s%s" % (v(XB + st * 32 + mt * 4, 4), v(VXR), off(mt * 1024)))
            A("v_add_u32 %s, 0x2000, %s" % (v(VXR), v(VXR)))
        raw(0)
        A("v_mov_b32 %s, v9" % v(VXR))
        xr(0)
        for i in range(128):
            A("v_mov_b32 %s, 0" % v(ACC + i))
        A("s_mov_b32 s45, %d" % (nks // 2))
        L = A.newlabel("bg")
        A.label(L)
        for par in range(2):
            raw(1 - par)
            A("s_waitcnt vmcnt(16)")
            for pr in range(2):
                for u in range(2):
                    for p in range(4):
                        r0, r1 = rows[p]
                        b = RAW + par * 16 + pr * 8
                        A("v_perm_b32 %s, %s, %s, s%d" % (v(WP + (pr * 2 + u) * 4 + p), v(b + r1), v(b + r0), 60 + u))
            A("s_waitcnt lgkmcnt(0)")
            xr(1 - par)
            for mt in range(8):
                for pr in range(2):
                    for u in range(2):
                        d = v(acc(pr, u, mt), 4)
                        x = v(XB + par * 32 + mt * 4, 4)
                        w = v(WP + (pr * 2 + u) * 4, 4)
                        p_, q_ = (w, x) if swapped else (x, w)
                        A("%s %s, %s, %s, %s" % (MF32, d, p_, q_, d))
        A("s_sub_u32 s45, s45, 1")
        A("s_cmp_lg_u32 s45, 0")
        A("s_cbranch_scc1 %s" % L)
        A("s_waitcnt vmcnt(0) lgkmcnt(0)")
        A("s_nop 7")

    def phi(r, n, masked):
        t = XB
        for i in range(n):
            A("v_mul_f32 %s, s62, %s" % (v(t + i), v(r + i)))
        for i in range(n):
            A("v_min_f32 %s, 0, %s" % (v(t + i), v(t + i)))
        for i in range(n):
            A("v_exp_f32 %s, %s" % (v(t + i), v(t + i)))
        for i in range(n):
            A("v_max_f32 %s, 0, %s" % (v(r + i), v(r + i)))
        for i in range(n):
            A("v_add_f32 %s, %s, %s" % (v(r + i), v(r + i), v(t + i)))
        for i in range(n):
            if masked:
                A("v_fma_f32 %s, %s, %s, %s" % (v(r + i), v(r + i), v(VKM), v(VKE)))
            else:
                A("v_add_f32 %s, s63, %s" % (v(r + i), v(r + i)))

    rows12 = [(0, 1), (2, 3), (4, 5), (6, 7)]
    A("s_lshl_b32 s31, %s, 2" % s(S_W))
    A("s_mov_b32 s29, 0")
    P1 = A.newlabel("b_p1")
    A.label(P1)
    A("s_mul_i32 s44, s31, 56")
    A("s_add_u32 s44, s44, 896")
    gemm(14, "s[32:35]", lambda pr, j: ("v%d" % (10 + (j >> 1)), (j & 1) * 2688 + pr * 896), 32 * 2688, rows12, False)
    phi(ACC, 64, True)
    for pr in range(2):
        for u in range(2):
            for q in range(4):
                r = acc(pr, u, 2 * q)
                for i in range(4):
                    A(cvt(r + i, r + 2 * i, r + 2 * i + 1))
                    if pr == 1 and u == 0:
                        A("v_or_b32 %s, %s, %s" % (v(r + i), v(r + i), v(VONE)))
    A("s_nop 1")
    for q in range(4):
        for dt in range(2):
            for et in range(2):
                d = v(XB + (dt * 2 + et) * 4, 4)
                A("%s %s, %s, %s, %s" % (MF32, d, v(acc(0, dt, 2 * q), 4), v(acc(1, et, 2 * q), 4), d if q else "0"))
    A("s_lshl_b32 s22, s31, 12")
    A("s_add_u32 s22, s22, 0x%x" % KV)
    A("s_nop 7")
    for i in range(16):
        A("buffer_atomic_add_f32 %s, v8, %s, s22 offen%s" % (v(XB + i), SRD, off(i * 256)))
    A("s_add_u32 s31, s31, 1")
    A("s_add_u32 s29, s29, 1")
    A("s_cmp_lt_u32 s29, 4")
    A("s_waitcnt vmcnt(0)")
    A("s_cbranch_scc1 %s" % P1)
    A("s_mov_b32 s26, 0x%x" % (CNT + C_KV * 128))
    signal(A, "s26")
    for it in range(2):
        A("s_mul_i32 s44, %s, 224" % s(S_W))
        A("s_add_u32 s44, s44, %d" % (it * 112))
        gemm(14, "s[32:35]", lambda pr, j: ("v%d" % (10 + (j >> 1)), (j & 1) * 2688 + pr * 56), 32 * 2688, rows12, True)
        phi(ACC, 64, False)
        phi(ACC + 64, 64, False)
        for pr in range(2):
            for mt in range(8):
                for u in range(2):
                    r = acc(pr, u, mt)
                    A(cvt(r, r, r + 1))
                    A(cvt(r + 1, r + 2, r + 3))
                    for i in range(2):
                        A("v_accvgpr_write_b32 %s, %s" % (a(((2 * it + pr) * 8 + mt) * 4 + 2 * u + i), v(r + i)))
    wait_counter2(A, C_KV, 16, abort)
    A("s_barrier")
    bits(A, "v10", [(4, 2, 64)], 56)
    A("""
    v_cmp_gt_u32 vcc, 48, v0
    s_lshl_b32 s22, {W}, 15
    v_add_u32 v12, s22, v9
    v_cndmask_b32 v11, 0, -1, vcc
    s_lshl_b32 s22, {W}, 14
    s_add_u32 s22, s22, 0x{KV:x}
    """.format(W=s(S_W), KV=KV))
    for hh in range(4):
        b = ACC + hh * 24
        for i in range(16):
            A("buffer_load_dword %s, v8, %s, s22 offen%s sc1" % (v(b + i), SRD, off(i * 256)))
        for dt in range(2):
            for r in range(4):
                A("buffer_load_dword %s, v10, %s, s22 offen%s sc1" % (v(b + 16 + dt * 4 + r), SRD, off((dt * 8 + r) * 256)))
        A("s_add_u32 s22, s22, 4096")
        if hh == 1:
            A("s_waitcnt vmcnt(0)")
    A("s_waitcnt vmcnt(0)")
    F = RAW
    for hh in range(4):
        b = ACC + hh * 24
        for et in range(2):
            for dt in range(2):
                r = b + (dt * 2 + et) * 4
                A(cvt(F + hh * 12 + et * 4 + 2 * dt, r, r + 1))
                A(cvt(F + hh * 12 + et * 4 + 2 * dt + 1, r + 2, r + 3))
        for i in range(4):
            A(cvt(F + hh * 12 + 8 + i, b + 16 + 2 * i, b + 16 + 2 * i + 1))
    A("s_nop 1")
    for hh in range(4):
        for mt in range(8):
            for k in range(3):
                A("%s %s, %s, %s, 0" % (MF32, v(ACC + (mt * 3 + k) * 4, 4), v(F + hh * 12 + 4 * k, 4), a((hh * 8 + mt) * 4, 4)))
        A("s_nop 7")
        for mt in range(8):
            d = ACC + mt * 12
            A("v_add_f32 %s, s63, %s" % (v(d + 8), v(d + 8)))
            A("v_rcp_f32 %s, %s" % (v(d + 8), v(d + 8)))
            A("s_nop 0")
            for i in range(8):
                A("v_mul_f32 %s, %s, %s" % (v(d + i), v(d + i), v(d + 8)))
            for i in range(4):
                A(cvt(d + i, d + 2 * i, d + 2 * i + 1))
            A("v_and_b32 %s, %s, v11" % (v(d + 1), v(d + 1)))
            A("v_and_b32 %s, %s, v11" % (v(d + 3), v(d + 3)))
            A("ds_write_b128 v12, %s%s" % (v(d, 4), off((hh * 8 + mt) * 1024)))
        A("s_waitcnt lgkmcnt(0)")
    A("s_barrier")
    bits(A, "v10", [(4, 2, 8 * 896), (0, 4, 4)])
    A("v_add_u32 v11, %d, v10" % (4 * 896))
    bits(A, "v12", [(0, 4, 1792), (4, 2, 16)])
    A("s_mov_b32 s31, %s" % s(S_W))
    P3 = A.newlabel("b_p3")
    A.label(P3)
    A("s_lshl_b32 s44, s31, 7")
    gemm(16, "s[36:39]", lambda pr, j: ("v%d" % (10 + (j >> 2)), (j & 3) * 896 + pr * 64), 28 * 896,
         [(0, 2), (4, 6), (1, 3), (5, 7)], True)
    A("""
    s_mul_i32 s22, s30, %d
    s_lshl_b32 s23, s31, 7
    s_add_u32 s22, s22, s23
    s_add_u32 s22, s22, 896
    """ % (128 * 1792))
    for mt in range(8):
        for pr in range(2):
            t = XB + (mt * 2 + pr) * 4
            for r in range(4):
                A(cvt(t + r, acc(pr, 0, mt) + r, acc(pr, 1, mt) + r))
            A("buffer_store_dwordx4 %s, v12, s[40:43], s22 offen%s" % (v(t, 4), off(pr * 64)))
        A("s_add_u32 s22, s22, %d" % (16 * 1792))
    A("s_add_u32 s31, s31, 4")
    A("s_cmp_lt_u32 s31, 7")
    A("s_waitcnt vmcnt(0)")
    A("s_cbranch_scc1 %s" % P3)
    A("s_endpgm")
```

```python
import sys
from common import *
from chain import *
from k1 import gen_k1
from workers import *

HEADER = open("cdna_kernels/%s.s.ref" % NAME).read().split("; Override launch")[0]


def kdesc(A, name, nvgpr=512, acc=256, nsgpr=102):
    A.raw(".amdhsa_kernel %s" % name)
    A.raw("  .amdhsa_next_free_vgpr %d" % nvgpr)
    A.raw("  .amdhsa_next_free_sgpr %d" % nsgpr)
    A.raw("  .amdhsa_accum_offset %d" % acc)
    A.raw("  .amdhsa_group_segment_fixed_size 0")
    A.raw("  .amdhsa_kernarg_size 104")
    A.raw("  .amdhsa_user_sgpr_count 2")
    A.raw("  .amdhsa_user_sgpr_kernarg_segment_ptr 1")
    A.raw("  .amdhsa_system_sgpr_workgroup_id_x 1")
    A.raw(".end_amdhsa_kernel")


def kstart(A, name):
    A.raw(".globl %s" % name)
    A.raw(".p2align 8")
    A.raw(".type %s,@function" % name)
    A.label(name)


def gen_k2_entry(A):
    A("""
    s_load_dwordx2 s[4:5], s[0:1], 96
    v_lshrrev_b32 v1, 6, v0
    s_getreg_b32 s10, hwreg(HW_REG_XCC_ID)
    s_mov_b32 s6, 0x%x
    s_mov_b32 s7, 0x00020000
    v_readfirstlane_b32 s8, v1
    v_and_b32 v0, 63, v0
    s_and_b32 s10, s10, 7
    s_mov_b32 s19, 0x%x
    s_waitcnt lgkmcnt(0)
    s_and_b32 s5, s5, 0xffff
    s_cmp_lg_u32 s8, 0
    s_cbranch_scc1 .k2_wait_role
    s_mov_b32 s22, s10
    s_mov_b32 s23, 0
    v_mov_b32 v1, 0
    s_mov_b64 exec, 1
    """ % (WS_BYTES, SPIN_MAX))
    A.label(".k2_claim")
    A("""
    s_lshl_b32 s24, s22, 7
    s_add_u32 s24, s24, 0x%x
    v_mov_b32 v2, 1
    buffer_atomic_add v2, v1, s[4:7], s24 offen sc0
    s_waitcnt vmcnt(0)
    v_readfirstlane_b32 s25, v2
    s_cmp_lt_u32 s25, 32
    s_cbranch_scc1 .k2_got
    s_add_u32 s22, s22, 1
    s_and_b32 s22, s22, 7
    s_add_u32 s23, s23, 1
    s_cmp_lt_u32 s23, 8
    s_cbranch_scc1 .k2_claim
    s_mov_b32 s9, 256
    s_branch .k2_pub
    """ % (CNT + C_XCD * 128))
    A.label(".k2_got")
    A("""
    s_lshl_b32 s9, s22, 5
    s_add_u32 s9, s9, s25
    s_cmp_lg_u32 s22, 0
    s_cbranch_scc1 .k2_pub
    s_cmp_lg_u32 s10, 0
    s_cselect_b32 s25, 0x10001, 1
    v_mov_b32 v2, s25
    s_mov_b32 s24, 0x%x
    buffer_atomic_add v2, v1, s[4:7], s24 offen
    """ % (CNT + C_CHAIN * 128))
    A.label(".k2_pub")
    A("""
    v_mov_b32 v2, s9
    ds_write_b32 v1, v2
    s_mov_b64 exec, -1
    s_waitcnt lgkmcnt(0)
    """)
    A.label(".k2_wait_role")
    A("""
    s_barrier
    v_mov_b32 v1, 0
    ds_read_b32 v2, v1
    s_waitcnt lgkmcnt(0)
    v_readfirstlane_b32 s9, v2
    s_barrier
    """)


def build_full(diag=0):
    A = Asm()
    A.raw(HEADER.rstrip("\n"))
    K1 = "fold_kernel"
    K = NAME + "_kernel"
    A.raw("; @launch kernel=%s grid=(256,1,1) block=(256,1,1) lds=32768" % K1)
    A.raw("; @launch kernel=%s grid=(256,1,1) block=(256,1,1) lds=160000" % K)
    A.raw('.amdgcn_target "amdgcn-amd-amdhsa--gfx950"')
    A.raw(".text")
    A.raw("; diag%d" % diag)
    kstart(A, K1)
    gen_k1(A, " sc1" if PARAM.get("k1sc1") else "")
    kstart(A, K)
    gen_k2_entry(A)
    A("""
    s_cmp_lt_u32 s9, 16
    s_cbranch_scc1 .role_score
    s_cmp_lt_u32 s9, 30
    s_cbranch_scc1 .role_out
    s_cmp_eq_u32 s9, 30
    s_cbranch_scc1 .role_pf
    s_cmp_lt_u32 s9, %d
    s_cbranch_scc1 .role_none
    s_cmp_lt_u32 s9, %d
    s_cbranch_scc1 .role_aw
    s_cmp_lt_u32 s9, %d
    s_cbranch_scc1 .role_bw
    s_cmp_lt_u32 s9, %d
    s_cbranch_scc1 .role_sh
    """ % (R_AW, R_BW, R_SH, R_SH + 28))
    A.label(".role_none")
    A("s_endpgm")
    A.label(".abort")
    A("""
    s_load_dwordx2 s[4:5], s[0:1], 88
    s_mov_b32 s6, 256
    s_mov_b32 s7, 0x00020000
    s_mov_b64 exec, -1
    v_mov_b32 v1, 0
    v_mov_b32 v2, s9
    v_or_b32 v2, 0xdead0000, v2
    s_waitcnt lgkmcnt(0)
    s_and_b32 s5, s5, 0xffff
    buffer_store_dword v2, v1, s[4:7], 0 offen
    s_endpgm
    """)
    A.label(".role_pf")
    gen_pf(A, ".abort")
    A.label(".role_score")
    gen_score(A, ".abort", diag)
    A.label(".role_out")
    gen_out(A, ".abort", diag, wait_u=NAW)
    A.label(".role_sh")
    gen_shadow(A, ".abort")
    A.label(".role_aw")
    gen_aworker(A, ".abort")
    A.label(".role_bw")
    gen_bworker(A, ".abort")
    A.raw('.section .rodata,"a"')
    A.raw(".p2align 6")
    kdesc(A, K1)
    A.raw(".p2align 6")
    kdesc(A, K)
    return A.text()


if __name__ == "__main__":
    diag = 0
    for x in sys.argv[2:]:
        k, val = x.split("=")
        if k == "diag":
            diag = int(val)
        else:
            PARAM[k] = int(val)
    out = sys.argv[1]
    open(out, "w").write(build_full(diag))
```

```python
from common import *

SRD = "s[4:7]"
S_W, S_ROLE, S_XCC, S_STEP = 8, 9, 10, 11
S_MEM, S_MEM2, S_P, S_X, S_X2, S_Y, S_SLOW, S_SPIN = 12, 13, 14, 15, 16, 17, 18, 19
S_MEMN, S_XL = 20, 21
S_KB = 32
SPIN_MAX = 1 << 20

SMF = "v_smfmac_f32_16x16x64_bf16"
SMF32 = "v_smfmac_f32_16x16x32_bf16"
MF32 = "v_mfma_f32_16x16x32_bf16"
MF16 = "v_mfma_f32_16x16x16_bf16"

PARAM = dict(sc_sleep=8, oc_sleep=8, oc_msleep=1, sc_sets=2, oc_sets=2, spread=1, ymode=0, ahead=0)


def ld(dst, voff, soff, off=0, flags="sc1"):
    o = " offset:%d" % off if off else ""
    return "buffer_load_dwordx4 %s, %s, %s, %s offen%s %s" % (dst, voff, SRD, soff, o, flags)


def chk_ops(chk, regs):
    out = []
    regs = list(regs)
    out.append("v_max3_u32 %s, %s, %s, %s" % (v(chk), v(regs[0]), v(regs[1]), v(regs[2])))
    regs = regs[3:]
    while len(regs) >= 2:
        out.append("v_max3_u32 %s, %s, %s, %s" % (v(chk), v(chk), v(regs[0]), v(regs[1])))
        regs = regs[2:]
    if regs:
        out.append("v_max_u32 %s, %s, %s" % (v(chk), v(chk), v(regs[0])))
    return out


def spin_guard(A, abort):
    A("s_sub_u32 %s, %s, 1" % (s(S_SPIN), s(S_SPIN)))
    A("s_cbranch_scc1 %s" % abort)


class Stamps:
    def __init__(self, lvl):
        self.lvl = lvl

    def st(self, A, i):
        if self.lvl == 4:
            A("s_memrealtime s[%d:%d]" % (60 + 2 * i, 61 + 2 * i))
        elif self.lvl >= 2 or (self.lvl == 1 and i == 0):
            A("s_memtime s[%d:%d]" % (60 + 2 * i, 61 + 2 * i))

    LB = 131072

    def flush(self, A, n, tmp):
        if not self.lvl:
            return
        A("s_lshl_b32 s58, %s, 12" % s(S_W))
        A("s_lshl_b32 s59, %s, 6" % s(S_STEP))
        A("s_add_u32 s58, s58, s59")
        A("s_add_u32 s58, s58, %d" % self.LB)
        A("v_mbcnt_lo_u32_b32 %s, -1, 0" % v(tmp + 1))
        A("v_lshl_add_u32 %s, %s, 2, s58" % (v(tmp + 1), v(tmp + 1)))
        A("s_waitcnt lgkmcnt(0)")
        for i in range(n):
            if self.lvl == 1 and i not in (0, 4):
                continue
            A("v_writelane_b32 %s, s%d, %d" % (v(tmp), 60 + 2 * i, i))
        A("s_mov_b64 exec, 0xffff")
        A("ds_write_b32 %s, %s" % (v(tmp + 1), v(tmp)))
        A("s_mov_b64 exec, -1")

    def dump(self, A):
        if not self.lvl:
            return
        A("s_lshl_b32 s58, %s, 12" % s(S_W))
        A("s_add_u32 s59, s58, %d" % self.LB)
        A("v_mbcnt_lo_u32_b32 v0, -1, 0")
        A("v_mbcnt_hi_u32_b32 v0, -1, v0")
        A("v_lshlrev_b32 v0, 4, v0")
        A("v_add_u32 v1, s59, v0")
        for i in range(4):
            A("ds_read_b128 %s, v1 offset:%d" % (v(4 + 4 * i, 4), i * 1024))
        A("s_lshl_b32 s59, %s, 14" % s(S_ROLE))
        A("s_add_u32 s58, s58, s59")
        A("s_add_u32 s58, s58, 0x%x" % DBG)
        A("s_waitcnt lgkmcnt(0)")
        for i in range(4):
            A("buffer_store_dwordx4 %s, v0, %s, s58 offen offset:%d" % (v(4 + 4 * i, 4), SRD, i * 1024))


class Lg:
    def __init__(self):
        self.n = 0
        self.done = 0
        self.tag = {}

    def issue(self, op, tag):
        self.n += 1
        self.tag[tag] = self.n
        return op

    def wait(self, tag):
        if self.tag[tag] <= self.done:
            return ""
        self.done = self.tag[tag]
        k = self.n - self.tag[tag]
        assert k <= 15
        return "s_waitcnt lgkmcnt(%d)" % k


def wait_chain_mode(A, t0, abort):
    L = A.newlabel("cm")
    A("v_mov_b32 %s, 0" % v(t0))
    A("s_mov_b32 s22, 0x%x" % (CNT + C_CHAIN * 128))
    A.label(L)
    spin_guard(A, abort)
    A("buffer_load_dword %s, %s, %s, s22 offen sc1" % (v(t0 + 1), v(t0), SRD))
    A("s_waitcnt vmcnt(0)")
    A("v_readfirstlane_b32 s23, %s" % v(t0 + 1))
    A("s_and_b32 s24, s23, 0xffff")
    A("s_cmp_lt_u32 s24, 32")
    A("s_cbranch_scc1 %s" % L)
    A("s_lshr_b32 %s, s23, 16" % s(S_SLOW))


def wait_counter(A, t0, slot, target, abort):
    L = A.newlabel("wc")
    A("v_mov_b32 %s, 0" % v(t0))
    A("s_mov_b32 s22, 0x%x" % (CNT + slot * 128))
    A.label(L)
    spin_guard(A, abort)
    A("buffer_load_dword %s, %s, %s, s22 offen sc1" % (v(t0 + 1), v(t0), SRD))
    A("s_waitcnt vmcnt(0)")
    A("v_readfirstlane_b32 s23, %s" % v(t0 + 1))
    A("s_cmp_lt_u32 s23, %d" % target)
    A("s_cbranch_scc1 %s" % L)


def poll(A, loads, regs, CHK, abort, sets=2, sleep=0):
    L = A.newlabel("pm")
    G = A.newlabel("pmg")
    if sets == 2:
        for l in loads:
            A(l)
        A("s_nop 15")
        A("s_nop 7")
    A.label(L)
    for l in loads:
        A(l)
    A("s_waitcnt vmcnt(%d)" % (len(loads) if sets == 2 else 0))
    for i in chk_ops(CHK, regs):
        A(i)
    A("v_cmp_eq_u32 vcc, -1, %s" % v(CHK))
    A("s_cbranch_vccz %s" % G)
    spin_guard(A, abort)
    if sleep:
        A("s_sleep %d" % sleep)
    A("s_branch %s" % L)
    A.label(G)


def slot_consts(A, VLP, A1, memi):
    A("v_lshlrev_b32 v9, 4, v0")
    A("s_lshl_b32 s22, %s, 1" % s(S_W))
    for j in range(7):
        A("s_add_u32 s23, s22, %d" % j)
        A("s_cmp_ge_u32 s23, 7")
        A("s_cselect_b32 s24, 7, 0")
        A("s_sub_u32 s23, s23, s24")
        A("s_lshl_b32 s%d, s23, 11" % (S_KB + j))
    A("s_lshl_b32 s22, %s, 11" % s(S_W))
    A("v_add_u32 %s, s22, v9" % v(VLP))
    for i in range(3):
        A("s_lshr_b32 s23, s%d, 1" % (S_KB + 2 + 2 * i))
        A("s_add_u32 s23, s23, %d" % memi)
        A("v_add_u32 %s, s23, v9" % v(A1 + i))
    A("s_mov_b32 %s, 0x%x" % (s(S_MEM), MEM))
    A("s_lshr_b32 s23, s%d, 1" % (S_KB + 1))
    A("s_sub_u32 s23, s23, s22")
    A("s_add_u32 %s, s23, 0x%x" % (s(S_MEM2), MEM))


def mem_reads(lg, MA, A1):
    out = []
    for j in range(2, 7):
        i = (j - 2) >> 1
        out.append(lg.issue("ds_read_b128 %s, %s offset:%d" % (v(MA + 4 * j, 4), v(A1 + i), (j & 1) * 1024), "m%d" % j))
    return out


SC_MEMI, SC_XL = 8192, 16384
SRS = 56


def idx_const(A, IDX):
    A("""
    v_and_b32 v1, 2, v0
    v_mov_b32 v2, 0x4444
    v_mov_b32 v3, 0xeeee
    v_cmp_eq_u32 vcc, 0, v1
    s_nop 1
    v_cndmask_b32 %s, v3, v2, vcc
    """ % v(IDX))


def pkadd(d, a_, b_):
    return "v_pk_add_f32 %s, %s, %s" % (v(d, 2), v(a_, 2), v(b_, 2))


def cvt(d, a_, b_):
    return "v_cvt_pk_bf16_f32 %s, %s, %s" % (v(d), v(a_), v(b_))


PARAM.update(dict(sc_nd=2, oc_nd=2, sc_gap=24, oc_gap=24, pfa=3, upf=0, mask=0, fillz=1, dsp=5, sync=0, nobar=1, sc_dly=4, sc_f2=2, oc_f=3, nu1=4, oc_sleep=0, usp=4, sc_sleep=4))


PF_FL = ["sc1", "", "nt"]
PARAM.update(dict(upos=31, pffl=0, ufl=0, d0=8, dsp=3, upf=0, pfa=0, flag=1, sc_fpos=2, sc_sleep=0, sc_nfl=3, sc_fgap=10, sc_fd=0,
                  oc_nfl=3, oc_fgap=10, oc_fd=0, oc_mfd=24, nu0=0, u0=0, usp1=2, sc_sets=1, oc_sets=1))
MEM_FL = 12288
P_FL = 10240
S_NOFL = 50


def flag_wait(A, F, VF, sbase, abort, nfl, gap, dly):
    if not PARAM["flag"]:
        return
    L = A.newlabel("fw")
    G = A.newlabel("fwg")
    l = "buffer_load_dword %s, %s, %s, %s offen sc1" % (v(F), v(VF), SRD, sbase)
    A("s_cmp_lg_u32 %s, 0" % s(S_NOFL))
    A("s_cbranch_scc1 %s" % G)
    for k in range(nfl if gap else 0):
        A(l)
        nops(A, gap)
    A.label(L)
    A(l)
    spin_guard(A, abort)
    A("s_waitcnt vmcnt(%d)" % nfl)
    A("v_cmp_eq_u32 vcc, -1, %s" % v(F))
    A("s_cbranch_vccnz %s" % L)
    nops(A, dly)
    A.label(G)


def fadd(d, a_, b_):
    return "v_add_f32 %s, %s, %s" % (v(d), v(a_), v(b_))


def nops(A, n):
    while n > 0:
        k = min(n, 16)
        A("s_nop %d" % (k - 1))
        n -= k


def spec_poll(A, loads, chk, spec, zero, abort, sets, gap, nd):
    L = A.newlabel("sp")
    for k in range(sets - 1):
        for l in loads:
            A(l)
        nops(A, gap)
    A.label(L)
    for l in loads:
        A(l)
    spin_guard(A, abort)
    if PARAM["mask"]:
        A("s_mov_b64 exec, -1")
    for i in range(max(nd, len(zero))):
        A("v_mov_b64 %s, 0" % v(zero[i % len(zero)], 2))
    A("s_waitcnt vmcnt(%d)" % (len(loads) * (sets - 1)))
    for o in chk:
        A(o)
    for o in spec:
        A(o)
    if PARAM["mask"]:
        A("s_mov_b64 exec, vcc")
    A("s_cbranch_vccnz %s" % L)
    if PARAM["mask"]:
        A("s_mov_b64 exec, -1")


def gen_score(A, abort, diag=0, nsteps=63):
    MA, T, MH0, XR, SAB = 0, 28, 56, 64, 96
    BS, BS3, IDX, VLP, VH0, VH1, VP, VLW, VLR, CHK = 108, 110, 112, 113, 114, 115, 116, 117, 118, 119
    MH1 = MA
    SA = [SAB, SAB + 4, SAB + 8]
    S_A1, S_UP, S_UPS, S_PF, S_FB = 40, 43, 44, 46, 47
    st = Stamps(diag)

    def W(tau, j):
        i = (tau * 7 + j) * 8
        return a(i, 8) if i < 256 else v(120 + i - 256, 8)

    def Wh(tau, j, hf):
        i = (tau * 14 + 2 * j + hf) * 4
        return a(i, 4) if i < 256 else v(120 + i - 256, 4)

    slot_consts(A, VLP, 10, SC_MEMI)
    for i in range(3):
        A("s_lshr_b32 s23, s%d, 1" % (S_KB + 2 + 2 * i))
        A("s_add_u32 s23, s23, %d" % SC_MEMI)
        A("s_sub_u32 s%d, s23, s22" % (S_A1 + i))
    A("""
    s_mul_i32 s22, %s, %d
    s_mul_i32 s23, %s, %d
    s_add_u32 s22, s22, s23
    s_add_u32 s22, s22, 0x%x
    """ % (s(S_ROLE), 28 * 14336, s(S_W), 7 * 14336, AW))
    n = 0
    for tau in range(7):
        for j in range(7):
            A("s_add_u32 s23, s22, s%d" % (S_KB + j))
            for hf in range(2):
                A(ld(Wh(tau, j, hf), "v9", "s23", hf * 1024, "nt"))
                n += 1
                if n % 16 == 0 and n >= 48:
                    A("s_waitcnt vmcnt(40)")
        A("s_add_u32 s22, s22, 14336")
    idx_const(A, IDX)
    A("""
    v_bfe_u32 v1, v0, 2, 2
    v_bfe_u32 v2, v0, 4, 2
    v_xor_b32 v1, v1, v2
    v_and_b32 v2, 3, v0
    v_lshl_or_b32 v3, v1, 2, v2
    v_mov_b32 v4, 0x3f80
    v_mov_b32 v5, 0x3f800000
    """)
    for r in range(2):
        A("""
        v_cmp_eq_u32 vcc, %d, v3
        v_cmp_eq_u32 s[22:23], %d, v3
        s_nop 1
        v_cndmask_b32 v6, 0, v4, vcc
        v_cndmask_b32 v7, 0, v5, s[22:23]
        v_or_b32 %s, v6, v7
        """ % (2 * r, 2 * r + 1, v(BS + r)))
    A("""
    s_and_b32 s24, {W}, 1
    s_cmp_eq_u32 s24, 1
    s_cselect_b64 s[22:23], -1, 0
    v_cndmask_b32 {BS3}, {BS0}, {BS1}, s[22:23]
    v_mov_b32 {BS3b}, 0
    s_lshr_b32 s25, {W}, 1
    s_mul_i32 s25, s25, 28
    s_mul_i32 s26, s24, 12
    s_add_u32 s25, s25, s26
    s_lshl_b32 s25, s25, 7
    s_add_u32 s25, s25, {MEMI}
    s_sub_u32 s26, 16, s26
    s_lshl_b32 s26, s26, 7
    """.format(W=s(S_W), MEMI=SC_MEMI, BS3=v(BS3), BS3b=v(BS3 + 1), BS0=v(BS), BS1=v(BS + 1)))
    bits(A, v(VH0), [(5, 1, 256), (1, 2, 64), (4, 1, 32), (0, 1, 16)], "s25")
    A("s_add_u32 s25, s25, 1024")
    bits(A, v(VH1), [(1, 2, 64), (5, 1, 32), (0, 1, 16)], "s25")
    A("v_bfe_u32 v1, v0, 4, 1")
    A("v_mad_u32_u24 %s, v1, s26, %s" % (v(VH1), v(VH1)))
    A("""
    s_lshl_b32 s22, {R}, 9
    s_lshl_b32 s23, {W}, 6
    s_add_u32 s22, s22, s23
    s_lshr_b32 s23, {R}, 2
    s_lshl_b32 s23, s23, 9
    s_lshl_b32 s24, {W}, 5
    s_add_u32 s23, s23, s24
    s_and_b32 s24, {R}, 1
    s_lshl_b32 s24, s24, 4
    s_add_u32 s23, s23, s24
    s_and_b32 s24, {R}, 2
    s_lshl_b32 s24, s24, 1
    s_add_u32 s23, s23, s24
    s_add_u32 s23, s23, 8192
    s_mul_i32 s24, {W}, {RS2}
    s_add_u32 s25, s24, 64
    v_and_b32 v2, 16, v0
    v_cmp_ne_u32 vcc, 0, v2
    """.format(R=s(S_ROLE), W=s(S_W), RS2=2 * SRS * 4))
    bits(A, "v2", [(3, 1, 256), (2, 1, 32), (5, 1, 16), (0, 2, 4)], "s22")
    bits(A, "v3", [(0, 2, 128), (5, 1, 8)], "s23")
    A("v_cndmask_b32 %s, v2, v3, vcc" % v(VP))
    bits(A, "v2", [(5, 1, SRS * 4), (0, 1, 64), (3, 1, 32), (1, 1, 16), (2, 1, 8)], "s25")
    bits(A, "v3", [(5, 1, SRS * 4), (0, 2, 8)], "s24")
    A("v_cndmask_b32 %s, v2, v3, vcc" % v(VLR))
    A("s_mul_i32 s24, %s, %d" % (s(S_W), SRS * 32))
    bits(A, v(VLW), [(4, 2, 2 * SRS * 4), (0, 4, 4)], "s24")
    A("s_mov_b32 %s, 0" % s(S_STEP))
    A("s_mov_b32 %s, 0x%x" % (s(S_P), PM))
    A("s_mul_i32 %s, %s, 6144" % (s(S_X), s(S_W)))
    A("s_add_u32 %s, %s, 0x%x" % (s(S_X), s(S_X), XH))
    A("s_lshl_b32 %s, %s, 11" % (s(S_XL), s(S_W)))
    A("s_add_u32 %s, %s, %d" % (s(S_XL), s(S_XL), SC_XL))
    A("""
    s_lshl_b32 s22, {R}, 15
    s_add_u32 {UP}, s22, 0x{UB:x}
    s_mov_b32 {UPS}, {US}
    s_cmp_ge_u32 {R}, 14
    s_cselect_b32 {UP}, 0x{XH:x}, {UP}
    s_cselect_b32 {UPS}, {XS}, {UPS}
    s_cmp_eq_u32 {R}, 15
    s_cselect_b32 {UP}, 0x{XH2:x}, {UP}
    v_lshlrev_b32 {C}, 2, {VLP}
    s_lshl_b32 s22, {R}, 2
    s_mul_i32 s23, {W}, 65408
    s_add_u32 {PF}, s22, 0x{PMF:x}
    s_sub_u32 {PF}, {PF}, s23
    s_lshl_b32 {FB}, {W}, 6
    s_lshl_b32 s22, {R}, 8
    s_add_u32 {FB}, {FB}, s22
    s_mov_b32 {NOFL}, 1
    """.format(R=s(S_ROLE), W=s(S_W), UP=s(S_UP), UPS=s(S_UPS), UB=UB + 4096, US=U_S, XH=XH + XH_S, XH2=XH + XH_S + 4096, XS=XH_S,
               C=v(CHK), VLP=v(VLP), PF=s(S_PF), PMF=PM + P_FL, FB=s(S_FB), NOFL=s(S_NOFL)))
    if PARAM["upf"]:
        wait_counter(A, 1, C_U, NAW, abort)
    for i in range(PARAM["pfa"]):
        A("buffer_load_dword v5, %s, %s, %s offen %s" % (v(CHK), SRD, s(S_UP), PF_FL[PARAM["pffl"]]))
        A("s_add_u32 %s, %s, %s" % (s(S_UP), s(S_UP), s(S_UPS)))

    def xh_dma():
        out = []
        for k in range(4):
            out.append(["s_add_u32 m0, %s, %d" % (s(S_XL), k * 8192),
                        "s_add_u32 s22, %s, %d" % (s(S_X), k * 2048),
                        "buffer_load_dwordx4 %s, %s, s22 offen lds" % (v(VLP), SRD),
                        "buffer_load_dwordx4 %s, %s, s22 offen offset:1024 lds" % (v(VLP), SRD)])
        return out

    for g_ in xh_dma():
        for o in g_:
            A(o)
    wait_chain_mode(A, 1, abort)
    event(A, 1)
    for i in range(28):
        A("v_mov_b32 %s, 0" % v(T + i))
    A("v_mov_b32 v2, -1")
    A("v_mov_b32 v3, -1")
    for k in range(4):
        A("ds_write_b64 %s, v[2:3] offset:%d" % (v(VLR), k * SRS * 32))
    A("s_movk_i32 s45, 2000")

    def M(tau, j):
        return "%s %s, %s, %s, %s" % (SMF, v(T + 4 * tau, 4), v(MA + 4 * j, 4), W(tau, j), v(IDX))

    def TPr(tau):
        return T + 4 if tau == 6 else T + 8 * (tau >> 1) + 2 + (tau & 1)
    D = [T + 4, T + 12, T + 20, T + 24]
    DP = [T, T + 8]

    def c(tau):
        t = T + 4 * tau
        return [fadd(t, t, t + 2), fadd(t + 1, t + 1, t + 3), cvt(TPr(tau), t, t + 1)]

    def d(p):
        dst = DP[p >> 1] + 2 * (p & 1)
        return [cvt(dst, D[p], D[p] + 1), cvt(dst + 1, D[p] + 2, D[p] + 3)]

    def X(p):
        return "%s %s, %s, %s, 0" % (MF16, v(D[p], 4), v(TPr(2 * p), 2), v(BS if p < 3 else BS3, 2))

    def S(b, u):
        bop = v((MH0, MH1)[b], 8) if u == 0 else v(XR + (b * 2 + u - 1) * 8, 8)
        return "%s %s, %s, %s, %s" % (SMF, v(SA[u], 4), v(DP[b], 4), bop, v(IDX))

    LOOP = A.newlabel("sc_loop")
    A.label(LOOP)
    for i in range(12):
        A("v_mov_b32 %s, 0" % v(SAB + i))
    for i in range(3):
        A("v_add_u32 %s, s%d, %s" % (v(MA + 8 + 8 * i), S_A1 + i, v(VLP)))
    A("s_add_u32 %s, %s, %d" % (s(S_X), s(S_X), XH_S))
    A("s_waitcnt vmcnt(0)")
    for i in range(8):
        A("ds_read_b128 %s, %s offset:%d" % (v(XR + 4 * i, 4), v(VLP), SC_XL + (i >> 1) * 8192 + (i & 1) * 1024))
    st.st(A, 0)
    if diag == 5:
        A("s_mov_b32 s86, %s" % s(S_SPIN))
    A("v_bfe_u32 %s, %s, 4, 4" % (v(MH0), v(VLP)))
    A("v_lshl_add_u32 %s, %s, 2, %s" % (v(MH0), v(MH0), s(S_FB)))
    A("s_add_u32 s22, %s, %d" % (s(S_P), (MEM_FL - 16384) & 0xffffffff))
    flag_wait(A, MH0 + 1, MH0, "s22", abort, PARAM["sc_nfl"], PARAM["sc_fgap"], PARAM["sc_fd"])
    if diag == 5:
        A("s_mov_b32 s78, %s" % s(S_SPIN))
        A("s_memtime s[84:85]")
    spec_poll(A, [ld(v(MA, 4), v(VLP), s(S_MEM)), ld(v(MA + 4, 4), v(VLP), s(S_MEM2))],
              ["v_max_u32 %s, %s, %s" % (v(CHK), v(MA), v(MA + 4)), "v_cmp_eq_u32 vcc, -1, %s" % v(CHK)],
              [M(0, 0)], [T, T + 2], abort, PARAM["sc_sets"], PARAM["sc_gap"], PARAM["sc_nd"])
    st.st(A, 1)

    mf = [M(t, 0) for t in range(7)] + [M(t, 1) for t in range(7)]
    for t in range(7):
        for j in range(2, 7):
            mf.append(M(t, j))
        if t in (2, 4):
            mf.append(X((t >> 1) - 1))
    mf += [S(0, 1), X(2), S(0, 0), X(3), S(0, 2)]
    assert len(mf) == 56
    nv = {i: [] for i in range(56)}
    va = {i: [] for i in range(56)}

    def rd(j):
        return "ds_read_b128 %s, %s%s" % (v(MA + 4 * j, 4), v(MA + 8 * (j >> 1)), " offset:1024" if j & 1 else "")
    nv[0] += ["ds_write_b128 %s, %s offset:%d" % (v(VLP), v(MA, 4), SC_MEMI)]
    nv[1] += ["ds_write_b128 %s, %s offset:%d" % (v(VLP), v(MA + 4, 4), SC_MEMI + 1024)]
    nv[5] += ["s_waitcnt lgkmcnt(0)", "s_barrier", rd(3)]
    nv[6] += [rd(2), rd(5), rd(4)]
    nv[7] += [rd(6), "ds_read_b128 %s, %s" % (v(MH0, 4), v(VH0)), "ds_read_b128 %s, %s offset:512" % (v(MH0 + 4, 4), v(VH0))]
    nv[13] += ["s_waitcnt lgkmcnt(0)"]
    if PARAM["upf"]:
        va[4] += ["v_lshlrev_b32 %s, 2, %s" % (v(CHK), v(VLP))]
    dpos = []
    for k, g_ in enumerate(xh_dma()):
        if PARAM.get("nodma"):
            break
        p0 = PARAM["d0"] + 2 * PARAM["dsp"] * k
        nv[p0] += g_[:3]
        nv[p0 + PARAM["dsp"]] += g_[3:]
        dpos += [p0, p0 + PARAM["dsp"]]
    if PARAM["upf"]:
        p0 = PARAM["upos"]
        nv[p0] += ["buffer_load_dword %s, %s, %s, %s offen %s" % (v(CHK), v(CHK), SRD, s(S_UP), PF_FL[PARAM["pffl"]]),
                   "s_add_u32 %s, %s, %s" % (s(S_UP), s(S_UP), s(S_UPS))]
        dpos.append(p0)
    p0 = 19
    assert p0 not in dpos
    nv[p0] += ["s_waitcnt vmcnt(%d)" % len([x for x in dpos if x < p0]),
               "ds_read_b128 %s, %s" % (v(MH1, 4), v(VH1)), "ds_read_b128 %s, %s offset:256" % (v(MH1 + 4, 4), v(VH1))]
    nv[29] += ["s_waitcnt lgkmcnt(0)"]
    if PARAM.get("vw"):
        nv[PARAM["vw"]] += ["s_waitcnt vmcnt(0)"]
    nv[39] += ["s_add_u32 %s, %s, %d" % (s(S_MEM), s(S_MEM), MEM_S),
               "s_add_u32 %s, %s, %d" % (s(S_MEM2), s(S_MEM2), MEM_S)]
    if PARAM["sync"]:
        nv[PARAM["sync"]] += ["s_barrier"]
    for lst, p0 in [(c(0), 20), (c(1), 25), (c(2), 30), (d(0), 33), (["v_mov_b32 %s, 0" % v(T + 5)], 35), (c(3), 36),
                    (c(4), 41), (d(1), 44), (c(5), 47)]:
        for k, o in enumerate(lst):
            va[p0 + k].append(o)
    va[52] += c(6)
    va[54] += d(2)
    va[53] += ["v_lshlrev_b32 v8, 5, %s" % v(VLP)]
    nv[40] += ["s_mov_b32 %s, %s" % (s(S_NOFL), s(S_SLOW))]
    k5 = [0]

    def st5():
        if diag == 5:
            A("s_memtime s[%d:%d]" % (70 + 2 * k5[0], 71 + 2 * k5[0]))
            k5[0] += 1
    for i in range(56):
        if i:
            A(mf[i])
        for o in nv[i]:
            A(o)
        if i in (15, 32, 50):
            st5()
        for o in va[i]:
            A(o)
    def fst(pos):
        if PARAM["flag"] and PARAM["sc_fpos"] == pos:
            A("s_mov_b64 exec, 15")
            A("buffer_store_dword %s, v8, %s, %s offen" % (v(IDX), SRD, s(S_PF)))
            A("s_mov_b64 exec, -1")
            if PARAM.get("fack"):
                A("s_waitcnt vmcnt(0)")
            return True
        return False
    A("s_nop 3")
    for o in d(3):
        A(o)
    A("s_nop 1")
    for u in [1, 0, 2]:
        A(S(1, u))
    fst(0)
    for u in [1, 0, 2]:
        r = SA[u]
        A(fadd(r, r, r + 2))
        A(fadd(r + 1, r + 1, r + 3))
        A("ds_write2_b32 %s, %s, %s offset0:%d offset1:%d" % (v(VLW), v(r), v(r + 1), 16 * u, SRS + 16 * u))
    st.st(A, 2)
    fst(1)
    R = MH0
    zr = list(range(T, T + 28))

    def zero(n=1):
        for i in range(n):
            A("v_mov_b32 %s, 0" % v(zr.pop(0)))
    RT = A.newlabel("sc_rt")
    if PARAM["nobar"]:
        zero(PARAM["sc_dly"])
        A.label(RT)
    else:
        for i in range(3):
            A("s_nop 2")
            zero()
        A("s_waitcnt lgkmcnt(0)")
        A("s_barrier")
    for k in range(4):
        A("ds_read_b64 %s, %s offset:%d" % (v(R + 2 * k, 2), v(VLR), k * SRS * 32))
        zero()
    fst(2)
    for i in range(PARAM["sc_f2"]):
        A("s_nop 1")
        zero()
    A("s_waitcnt lgkmcnt(2)")
    A(pkadd(R, R, R + 2))
    A("s_waitcnt lgkmcnt(0)")
    A(pkadd(R + 4, R + 4, R + 6))
    A(pkadd(R, R, R + 4))
    m, m2 = R + 2, R + 3
    st5()
    A("v_max_f32 %s, %s, %s" % (v(m), v(R), v(R + 1)))
    RF = A.newlabel("sc_rf")
    RB = A.newlabel("sc_rb")
    for ror in [8, 4, 2, 1]:
        if PARAM["nobar"] and ror == 8:
            A("v_cmp_u_f32 vcc, %s, %s" % (v(R), v(R + 1)))
            A("s_cmp_eq_u32 %s, 0" % s(S_SLOW))
        elif PARAM["nobar"] and ror == 2:
            A("s_cbranch_vccnz %s" % RF)
            A.label(RB)
            A("s_nop 0")
        elif ror == 4:
            A("s_cmp_eq_u32 %s, 0" % s(S_SLOW))
            if not fst(3):
                A("s_nop 0")
        else:
            A("s_nop 1")
        A("v_max_f32_dpp %s, %s, %s row_ror:%d row_mask:0xf bank_mask:0xf" % (v(m), v(m), v(m), ror))
    A("v_mov_b32 %s, %s" % (v(m2), v(m)))
    A("s_nop 1")
    A("v_permlane16_swap_b32 %s, %s" % (v(m), v(m2)))
    A("v_max_f32 %s, %s, %s" % (v(m), v(m), v(m2)))
    A("v_sub_f32 %s, %s, %s" % (v(R), v(R), v(m)))
    A("v_sub_f32 %s, %s, %s" % (v(R + 1), v(R + 1), v(m)))
    A("v_exp_f32 %s, %s" % (v(R), v(R)))
    A("v_exp_f32 %s, %s" % (v(R + 1), v(R + 1)))
    if not fst(4):
        A("s_nop 0")
    A("v_add_f32 %s, %s, %s" % (v(m), v(R), v(R + 1)))
    for ror in [8, 4, 2, 1]:
        A("s_nop 1")
        A("v_add_f32_dpp %s, %s, %s row_ror:%d row_mask:0x%x bank_mask:0xf" % (v(m), v(m), v(m), ror, 0x5 if ror >= 4 else 0xf))
    A("v_mov_b32 %s, %s" % (v(m2), v(m)))
    A("s_nop 1")
    A("v_permlane16_swap_b32 %s, %s" % (v(m), v(m2)))
    A("v_add_f32 %s, %s, %s" % (v(m), v(m), v(m2)))
    A("v_rcp_f32 %s, %s" % (v(m), v(m)))
    A("s_nop 0")
    A("v_mul_f32 %s, %s, %s" % (v(R), v(R), v(m)))
    A("v_mul_f32 %s, %s, %s" % (v(R + 1), v(R + 1), v(m)))
    A("v_cvt_pk_bf16_f32 %s, %s, %s" % (v(R), v(R), v(R + 1)))
    A("v_min_u32 %s, -2, %s" % (v(R), v(R)))
    tails = []
    SL = A.newlabel("slowp")
    BK = A.newlabel("backp")
    A("s_cbranch_scc0 %s" % SL)
    A("buffer_store_dword %s, %s, %s, %s offen" % (v(R), v(VP), SRD, s(S_P)))
    A.label(BK)
    if PARAM.get("pack"):
        A("s_waitcnt vmcnt(0)")
    st.st(A, 3)
    if diag == 5:
        A("s_mov_b32 s80, %s" % s(S_SPIN))
    if diag:
        A("s_memrealtime s[68:69]")
    st.flush(A, 14, R + 4)

    def tail_slow():
        A.label(SL)
        A("buffer_store_dword %s, %s, %s, %s offen sc1" % (v(R), v(VP), SRD, s(S_P)))
        A("s_branch %s" % BK)
    tails.append(tail_slow)

    def tail_retry():
        A.label(RF)
        A("s_sub_u32 s45, s45, 1")
        A("s_cbranch_scc0 %s" % RT)
        A("s_cmp_eq_u32 %s, 0" % s(S_SLOW))
        A("s_branch %s" % RB)
    if PARAM["nobar"]:
        tails.append(tail_retry)
        A("v_mov_b32 %s, -1" % v(R + 2))
        A("v_mov_b32 %s, -1" % v(R + 3))
        for k in range(4):
            A("ds_write_b64 %s, %s offset:%d" % (v(VLR), v(R + 2, 2), k * SRS * 32))
        if diag == 5:
            A("s_mov_b32 s82, s45")
        A("s_movk_i32 s45, 2000")
    zero(len(zr))
    A("s_add_u32 %s, %s, 16384" % (s(S_P), s(S_P)))
    A("s_add_u32 %s, %s, 16384" % (s(S_PF), s(S_PF)))
    A("s_add_u32 %s, %s, 1" % (s(S_STEP), s(S_STEP)))
    if PARAM["sc_sleep"]:
        A("s_sleep %d" % PARAM["sc_sleep"])
    if PARAM["upf"]:
        NW = A.newlabel("sc_nw")
        A("s_cmp_lg_u32 %s, %d" % (s(S_STEP), 33 - PARAM["pfa"]))
        A("s_cbranch_scc1 %s" % NW)
        wait_counter(A, R, C_U + 1, NAW, abort)
        A.label(NW)
    A("s_cmp_lt_u32 %s, %d" % (s(S_STEP), nsteps))
    A("s_cbranch_scc1 %s" % LOOP)
    A("s_waitcnt vmcnt(0)")
    st.dump(A)
    event(A, 3)
    A("s_endpgm")
    for t in tails:
        t()


RED2 = 0
OC_MEMI = 4096
OC_WL = 12288


def gen_out(A, abort, diag=0, nsteps=63, wait_u=False):
    MA, YA, YP, U, P, D, WS = 0, 28, 60, 76, 108, 120, 128
    IDX, VLP, VPA, VPB, VLW, VLR, VST, CHK, VWL, R, A1 = 160, 161, 162, 163, 164, 165, 166, 167, 168, 169, 172
    Q, Z, VX = 68, 0, 72
    VFM, VFP, VFS = 165, 171, 175
    st = Stamps(diag)

    def W(i, j):
        x = (i * 7 + j) * 8
        return a(x, 8) if x < 256 else v(176 + x - 256, 8)

    def Wh(i, j, hf):
        x = (i * 14 + 2 * j + hf) * 4
        return a(x, 4) if x < 256 else v(176 + x - 256, 4)

    slot_consts(A, VLP, A1, OC_MEMI)
    A("""
    s_sub_u32 s30, %s, 16
    s_mul_i32 s22, %s, %d
    s_mul_i32 s23, s30, %d
    s_add_u32 s22, s22, s23
    s_add_u32 s22, s22, 0x%x
    s_mul_i32 s24, %s, 28672
    s_add_u32 s24, s24, %d
    """ % (s(S_ROLE), s(S_W), 4 * 28 * 14336, 2 * 14336, VW, s(S_W), OC_WL))
    n = 0
    for hh in range(4):
        for ct in range(2):
            A("s_add_u32 s25, s22, %d" % (hh * 28 * 14336 + ct * 14336))
            for j in range(7):
                if hh == 3:
                    A("s_add_u32 m0, s24, %d" % (ct * 14336 + j * 2048))
                A("s_add_u32 s23, s25, s%d" % (S_KB + j))
                for hf in range(2):
                    if hh < 3:
                        A(ld(Wh(2 * hh + ct, j, hf), "v9", "s23", hf * 1024, "nt"))
                    else:
                        o = " offset:1024" if hf else ""
                        A("buffer_load_dwordx4 v9, %s, s23 offen%s nt lds" % (SRD, o))
                    n += 1
                    if n % 16 == 0 and n >= 48:
                        A("s_waitcnt vmcnt(40)")
    idx_const(A, IDX)
    A("""
    s_lshl_b32 s24, {W}, 9
    s_add_u32 s24, s24, 8192
    v_lshl_add_u32 {VPB}, v0, 3, s24
    s_lshl_b32 s24, {W}, 10
    s_add_u32 s24, s24, {RED2}
    v_add_u32 {VLW}, s24, v9
    s_mul_i32 s24, {W}, 28672
    s_add_u32 s24, s24, {OC_WL}
    v_add_u32 {VWL}, s24, v9
    s_lshr_b32 s25, s30, 1
    s_lshl_b32 s25, s25, 10
    s_and_b32 s26, s30, 1
    s_lshl_b32 s26, s26, 5
    s_add_u32 s25, s25, s26
    """.format(W=s(S_W), VPB=v(VPB), VLW=v(VLW), VWL=v(VWL), RED2=RED2, OC_WL=OC_WL))
    for k in range(3):
        A("v_xor_b32 %s, %d, %s" % (v(VX + k), 1024 * (k + 1), v(VLW)))
    bits(A, v(VST), [(2, 2, 256), (4, 2, 64), (0, 2, 4)], "s25")
    A("""
    s_lshl_b32 s24, {W}, 4
    s_lshl_b32 s25, s30, 7
    s_add_u32 s24, s24, s25
    s_add_u32 s24, s24, {PF}
    v_and_b32 v1, 3, v0
    v_lshl_add_u32 {VFP}, v1, 2, s24
    s_lshl_b32 s24, s30, 4
    s_lshl_b32 s25, {W}, 2
    s_add_u32 s24, s24, s25
    s_add_u32 s24, s24, {MF}
    s_cmp_lt_u32 s30, 2
    s_cselect_b32 s48, -1, 0xffff
    s_mov_b32 s49, 0
    v_and_b32 v1, 15, v0
    v_lshl_add_u32 {VFS}, v1, 8, s24
    v_bfe_u32 v1, v0, 4, 1
    v_mul_u32_u24 v1, 224, v1
    v_add_u32 {VFS}, {VFS}, v1
    """.format(W=s(S_W), MF=MEM_FL, PF=P_FL, VFM=v(VFM), VFP=v(VFP), VFS=v(VFS)))
    A("s_mov_b32 %s, 0" % s(S_STEP))
    A("s_mov_b32 %s, 0x%x" % (s(S_P), PM))
    A("s_mul_i32 %s, %s, 6144" % (s(S_X), s(S_W)))
    A("s_lshl_b32 s24, s30, 15")
    A("s_add_u32 %s, %s, s24" % (s(S_X), s(S_X)))
    A("s_add_u32 %s, %s, 0x%x" % (s(S_X), s(S_X), UB))
    A("s_add_u32 %s, %s, 4096" % (s(S_X2), s(S_X)))
    A("s_mov_b32 %s, 0x%x" % (s(S_Y), CNT + (C_U + 1) * 128))
    wait_chain_mode(A, 1, abort)
    event(A, 1)
    if wait_u:
        wait_counter(A, 1, C_U, wait_u, abort)
    event(A, 2)
    A("s_mov_b32 %s, %s" % (s(S_NOFL), s(S_SLOW)))
    A("s_mov_b32 %s, 0x%x" % (s(S_MEMN), MEM + MEM_S))
    for i in range(4):
        A("v_mov_b32 %s, -1" % v(Z + 4 + i))
    A("ds_write_b128 %s, %s" % (v(VLW), v(Z + 4, 4)))
    if diag:
        A("s_mov_b32 s68, 0")
    for i in range(32):
        A("v_mov_b32 %s, 0" % v(YA + i))

    lg = Lg()
    frs = [(6, 0), (7, 0), (6, 1), (7, 1)] + [(6, j) for j in range(2, 7)] + [(7, j) for j in range(2, 7)]

    def stage(f):
        i, j = frs[f]
        return [lg.issue("ds_read_b128 %s, %s offset:%d" % (v(WS + 8 * (f & 3) + 4 * hf, 4), v(VWL), (i - 6) * 14336 + (2 * j + hf) * 1024),
                         "w%d" % f) for hf in range(2)]

    tails = []
    uloads = []
    for i in range(8):
        hh, ct = i >> 1, i & 1
        uloads.append(ld(v(U + ((hh >> 1) * 2 + ct) * 8 + (hh & 1) * 4, 4), v(VLP), s(S_X) if i < 4 else s(S_X2),
                         (i & 3) * 1024, PF_FL[PARAM["ufl"]]))
    nu0 = PARAM["nu0"]
    for f in range(4):
        for o in stage(f):
            A(o)
    A("s_waitcnt lgkmcnt(0)")
    lg.done = lg.n
    LOOP = A.newlabel("oc_loop")
    A.label(LOOP)
    if diag:
        st.flush(A, 10, P)
        A("s_mov_b32 s68, 0")
    for i in range(0, 8, 2):
        A("v_mov_b64 %s, 0" % v(D + i, 2))
    nops(A, PARAM["oc_mfd"])
    st.st(A, 0)
    ml = [ld(v(MA, 4), v(VLP), s(S_MEM)), ld(v(MA + 4, 4), v(VLP), s(S_MEM2))]
    for o in ml:
        A(o)
    for i in range(0, 32, 2):
        A("v_mov_b64 %s, 0" % v(YA + i, 2))
        if (i >> 1) % 4 == 3 and (i >> 3) < nu0:
            A(uloads[i >> 3])
    A("s_waitcnt vmcnt(%d)" % nu0)
    MF_ = A.newlabel("oc_mfail")
    MB_ = A.newlabel("oc_mback")
    A("v_max_u32 %s, %s, %s" % (v(CHK), v(MA), v(MA + 4)))
    A("v_cmp_eq_u32 vcc, -1, %s" % v(CHK))
    A("s_cbranch_vccnz %s" % MF_)
    A.label(MB_)

    def tail_mfail():
        A.label(MF_)
        spin_guard(A, abort)
        poll(A, ml, [MA, MA + 4, MA + 4], CHK, abort, 1, PARAM["oc_msleep"])
        A("s_branch %s" % MB_)
    tails.append(tail_mfail)
    st.st(A, 1)

    def yp(i):
        hh, ct = i >> 1, i & 1
        y = YA + 4 * i
        return [fadd(y, y, y + 2), fadd(y + 1, y + 1, y + 3), cvt(YP + 4 * ct + hh, y, y + 1)]

    order = [(i, j) for j in range(2) for i in [6, 7, 0, 1, 2, 3, 4, 5]]
    for L_, a0 in [(6, 0), (7, 3)]:
        reg = [(a0 + t, j) for t in range(3) for j in range(2, 7)]
        for k in range(20):
            if k % 3 == 0 and k < 15:
                order.append((L_, 2 + k // 3))
            else:
                order.append(reg.pop(0))
    vq = []
    nextf = 4
    upos = [-1] * nu0 + [PARAM["u0"] + PARAM["usp1"] * k for k in range(4 - nu0)]
    upos += [max(upos[-1], PARAM["u0"] - PARAM["usp"]) + PARAM["usp"] * (k + 1) for k in range(4)]
    fl = "buffer_load_dword %s, %s, %s, %s offen sc1" % (v(CHK), v(VFP), SRD, s(S_P))
    fpos = [55 - 3 * k for k in range(PARAM["oc_nfl"])] if PARAM["flag"] else []
    nxt = [2, 3, 0, 1]
    for n, (i, j) in enumerate(order):
        if i >= 6:
            f = frs.index((i, j))
            A(lg.wait("w%d" % f))
            bop = v(WS + 8 * (f & 3), 8)
        else:
            bop = W(i, j)
        if n == 16:
            A(lg.wait("m6"))
        A("%s %s, %s, %s, %s" % (SMF, v(YA + 4 * i, 4), v(MA + 4 * j, 4), bop, v(IDX)))
        if n < 2:
            A("ds_write_b128 %s, %s offset:%d" % (v(VLP), v(MA + 4 * n, 4), OC_MEMI + 1024 * n))
        elif n == 5:
            A("s_waitcnt lgkmcnt(0)")
            A("s_barrier")
            mr = mem_reads(lg, MA, A1)
            A(mr[0])
        elif n == 6:
            A(mr[1]); A(mr[2])
        elif n == 7:
            A(mr[3]); A(mr[4])
        elif n >= 8 and nextf < 14 and order.index(frs[nextf - 4]) < n:
            for o in stage(nextf):
                A(o)
            nextf += 1
        elif nextf >= 14 and nextf < 18 and order.index(frs[nextf - 4]) < n:
            for o in stage(nxt[nextf - 14]):
                A(o)
            nextf += 1
        if n in upos and not PARAM.get("nou"):
            A(uloads[upos.index(n)])
        if n in fpos:
            A(fl)
        if vq and vq[0][0] <= n:
            A(vq.pop(0)[1])
        if j == 6:
            vq += [(n + 2, o) for o in yp(i)]
    A("s_nop 4")
    for _, o in vq:
        A(o)
    assert nextf == 18
    st.st(A, 2)
    for r_, inc in [(S_MEM, MEM_S), (S_MEM2, MEM_S), (S_X, U_S), (S_X2, U_S)]:
        A("s_add_u32 %s, %s, %d" % (s(r_), s(r_), inc))
    A("s_waitcnt vmcnt(%d) lgkmcnt(0)" % len(fpos))
    st.st(A, 5)
    if diag == 5:
        A("s_mov_b32 s78, %s" % s(S_SPIN))
    flag_wait(A, CHK, VFP, s(S_P), abort, PARAM["oc_nfl"], 0, PARAM["oc_fd"])
    if diag == 5:
        A("s_mov_b32 s72, %s" % s(S_SPIN))
        A("s_memtime s[76:77]")
    pl = [ld(v(P, 4), v(VLP), s(S_P), 0), ld(v(P + 4, 4), v(VLP), s(S_P), 1024),
          "buffer_load_dwordx2 %s, %s, %s, %s offen sc1" % (v(P + 8, 2), v(VPB), SRD, s(S_P))]

    def O(b, ct):
        if b < 2:
            return "%s %s, %s, %s, %s" % (SMF, v(D + 4 * ct, 4), v(P + 4 * b, 4), v(U + (b * 2 + ct) * 8, 8), v(IDX))
        return "%s %s, %s, %s, %s" % (SMF32, v(D + 4 * ct, 4), v(P + 8, 2), v(YP + 4 * ct, 4), v(IDX))
    spec_poll(A, pl,
              ["v_max3_u32 %s, %s, %s, %s" % (v(CHK), v(P), v(P + 4), v(P + 8)),
               "v_max_u32 %s, %s, %s" % (v(CHK), v(CHK), v(P + 9)), "v_cmp_eq_u32 vcc, -1, %s" % v(CHK)],
              [O(2, 0)], [D, D + 2], abort, PARAM["oc_sets"], PARAM["oc_gap"], PARAM["oc_nd"])
    st.st(A, 3)
    if PARAM["flag"]:
        A("s_mov_b64 exec, s[48:49]")
        A("buffer_store_dword %s, %s, %s, %s offen" % (v(IDX), v(VFS), SRD, s(S_P)))
        A("s_mov_b64 exec, -1")
    A(O(2, 1))
    A(O(0, 0))
    A(O(1, 0))
    A(O(0, 1))
    A(O(1, 1))
    A("s_cmp_eq_u32 %s, 0" % s(S_SLOW))
    A(fadd(Q, D, D + 2))
    A(fadd(Q + 2, D + 1, D + 3))
    A("s_nop 3")
    A(fadd(Q + 1, D + 4, D + 6))
    A(fadd(Q + 3, D + 5, D + 7))
    A("ds_write_b128 %s, %s" % (v(VLW), v(Q, 4)))
    for k in range(3):
        A("ds_read_b128 %s, %s" % (v(Z + 4 * k, 4), v(VX + k)))
    zr = list(range(YA, YA + 32))

    def zero(n=1):
        for i in range(n):
            A("v_mov_b32 %s, 0" % v(zr.pop(0)))
    for i in range(PARAM["oc_f"]):
        A("s_nop 1")
        zero()
    A("s_waitcnt lgkmcnt(2)")
    A(pkadd(Q, Q, Z))
    A(pkadd(Q + 2, Q + 2, Z + 2))
    A("s_waitcnt lgkmcnt(0)")
    A("v_max3_u32 %s, %s, %s, %s" % (v(CHK), v(Z), v(Z + 4), v(Z + 8)))
    A("v_cmp_eq_u32 vcc, -1, %s" % v(CHK))
    A(pkadd(Z + 4, Z + 4, Z + 8))
    A(pkadd(Z + 6, Z + 6, Z + 10))
    A(pkadd(Q, Q, Z + 4))
    A(pkadd(Q + 2, Q + 2, Z + 6))
    A(cvt(R, Q, Q + 1))
    A(cvt(R + 1, Q + 2, Q + 3))
    A("v_min_u32 %s, -2, %s" % (v(R), v(R)))
    A("v_min_u32 %s, -2, %s" % (v(R + 1), v(R + 1)))
    SL = A.newlabel("slowm")
    BK = A.newlabel("backm")
    RS = A.newlabel("resetm")
    A("s_cbranch_vccnz %s" % BK)
    A("s_cbranch_scc0 %s" % SL)
    A("buffer_store_dword %s, %s, %s, %s offen" % (v(R), v(VST), SRD, s(S_MEMN)))
    A("buffer_store_dword %s, %s, %s, %s offen offset:16" % (v(R + 1), v(VST), SRD, s(S_MEMN)))
    A.label(RS)
    if PARAM.get("mack"):
        A("s_waitcnt vmcnt(0)")
    st.st(A, 4)
    for i in range(4):
        A("v_mov_b32 %s, -1" % v(Z + i))
    A("ds_write_b128 %s, %s" % (v(VLW), v(Z, 4)))
    for k in range(3):
        A("ds_write_b128 %s, %s" % (v(VX + k), v(Z, 4)))
    A.label(BK)
    if diag == 5:
        A("s_mov_b32 s74, %s" % s(S_SPIN))

    def tail_slow():
        A.label(SL)
        A("buffer_store_dword %s, %s, %s, %s offen sc1" % (v(R), v(VST), SRD, s(S_MEMN)))
        A("buffer_store_dword %s, %s, %s, %s offen offset:16 sc1" % (v(R + 1), v(VST), SRD, s(S_MEMN)))
        A("s_branch %s" % RS)
    tails.append(tail_slow)
    for r_, inc in [(S_MEMN, MEM_S), (S_P, 16384), (S_STEP, 1)]:
        A("s_add_u32 %s, %s, %d" % (s(r_), s(r_), inc))
    A("s_barrier")
    if wait_u:
        U1 = A.newlabel("oc_u1")
        A("s_cmp_eq_u32 %s, 33" % s(S_STEP))
        A("s_cbranch_scc1 %s" % U1)

        def tail_u1():
            A.label(U1)
            wait_counter(A, P, C_U + 1, wait_u, abort)
            A("s_branch %s" % LOOP)
        tails.append(tail_u1)
    A("s_cmp_lt_u32 %s, %d" % (s(S_STEP), nsteps))
    A("s_cbranch_scc1 %s" % LOOP)
    A("s_waitcnt vmcnt(0)")
    st.dump(A)
    event(A, 3)
    A("s_endpgm")
    for t in tails:
        t()


def gen_pf(A, abort):
    A("""
    s_mov_b32 {STEP}, 1
    v_lshlrev_b32 v1, 4, v0
    s_lshl_b32 s22, {W}, 11
    s_min_u32 s22, s22, 5120
    v_add_u32 v1, s22, v1
    s_mov_b32 {MEM}, 0x{M1:x}
    s_mov_b32 {X}, 0x{W1:x}
    """.format(W=s(S_W), STEP=s(S_STEP), X=s(S_X), MEM=s(S_MEM), M1=MEM + MEM_S, W1=MEMW + MEM_S))
    LOOP = A.newlabel("pf_loop")
    A.label(LOOP)
    poll(A, [ld(v(4, 4), "v1", s(S_MEM)), ld(v(8, 4), "v1", s(S_MEM), 1024)], [4, 8, 8], 2, abort, 1, 3)
    A("buffer_store_dwordx4 v[4:7], v1, %s, %s offen sc1" % (SRD, s(S_X)))
    A("buffer_store_dwordx4 v[8:11], v1, %s, %s offen offset:1024 sc1" % (SRD, s(S_X)))
    A("s_add_u32 %s, %s, %d" % (s(S_X), s(S_X), MEM_S))
    A("s_add_u32 %s, %s, %d" % (s(S_MEM), s(S_MEM), MEM_S))
    A("s_add_u32 %s, %s, 1" % (s(S_STEP), s(S_STEP)))
    A("s_waitcnt vmcnt(0)")
    A("s_sleep 16")
    A("s_cmp_lt_u32 %s, 64" % s(S_STEP))
    A("s_cbranch_scc1 %s" % LOOP)
    A("s_endpgm")


def gen_pf2(A, abort, ahead=3):
    A("""
    s_cmp_lg_u32 {W}, 0
    s_cbranch_scc1 .pf_end
    s_mov_b32 {STEP}, 0
    v_lshlrev_b32 v1, 7, v0
    v_mov_b32 v2, 0
    s_mov_b32 {Y}, 0x{XH:x}
    s_mov_b32 {MEM}, 0x{M0:x}
    s_mov_b32 {X}, 0x{M1:x}
    s_mov_b32 {P}, 0x{PM:x}
    """.format(W=s(S_W), STEP=s(S_STEP), X=s(S_X), Y=s(S_Y), XH=XH, MEM=s(S_MEM), M0=MEM, M1=MEM + MEM_S, PM=PM, P=s(S_P)))
    LOOP = A.newlabel("pf_loop")
    PL = A.newlabel("pf_poll")
    GO = A.newlabel("pf_go")
    A.label(LOOP)
    A("s_cmp_lt_u32 %s, %d" % (s(S_STEP), ahead))
    A("s_cbranch_scc1 %s" % GO)
    A.label(PL)
    spin_guard(A, abort)
    A("s_sleep 4")
    A("buffer_load_dword v3, v2, %s, %s offen sc1" % (SRD, s(S_MEM)))
    A("s_waitcnt vmcnt(0)")
    A("v_readfirstlane_b32 s22, v3")
    A("s_cmp_eq_u32 s22, -1")
    A("s_cbranch_scc1 %s" % PL)
    A("s_add_u32 %s, %s, %d" % (s(S_MEM), s(S_MEM), MEM_S))
    A.label(GO)
    A("buffer_load_dword v4, v1, %s, %s offen sc1" % (SRD, s(S_X)))
    A("buffer_load_dword v5, v1, %s, %s offen sc1" % (SRD, s(S_P)))
    A("s_add_u32 s22, %s, 8192" % s(S_P))
    A("buffer_load_dword v6, v1, %s, s22 offen sc1" % SRD)
    for i in range(4):
        A("buffer_load_dword v%d, v1, %s, %s offen sc1" % (7 + i, SRD, s(S_Y)))
        A("s_add_u32 %s, %s, 8192" % (s(S_Y), s(S_Y)))
    A("s_add_u32 %s, %s, %d" % (s(S_X), s(S_X), MEM_S))
    A("s_add_u32 %s, %s, 16384" % (s(S_P), s(S_P)))
    A("s_add_u32 %s, %s, 1" % (s(S_STEP), s(S_STEP)))
    A("s_cmp_lt_u32 %s, 63" % s(S_STEP))
    A("s_cbranch_scc1 %s" % LOOP)
    A("s_waitcnt vmcnt(0)")
    A.label(".pf_end")
    A("s_endpgm")
```

```python
NAME = "concat_heads__memory_aug_recurrent_mem_tr__linear_attn_block__prompt"

WS_BYTES = 0x10000000
AW = 0x0000000
VW = 0x0700000
UB = 0x1000000
U_S = 14 * 16 * 2 * 1024
XH = 0x2C00000
XH_S = 32768
SENT0 = 0x4000000
MEM_S = 16384
MEM = SENT0 - MEM_S
MEMW = MEM + 8192
PM = SENT0 + 0x100000
PX = SENT0 + 0x200000
PX_S = 40960
SENT1 = SENT0 + 0x500000
ZERO0 = 0x4800000
CNT = 0x4800000
KV = 0x4810000
ZERO1 = 0x4820000
DBG = 0x5000000
TXB = 0x6000000

C_XCD = 0
C_CHAIN = 8
C_U = 9
C_KV = 11

NAW = 176
R_AW, R_BW, R_SH = 32, 208, 224


def row_i(m, hb):
    return 4 * (m >> 1) + 2 * hb + (m & 1)


def mem_off(q, m):
    return (q >> 1) * 256 + row_i(m, q & 1) * 16


def chunk_q(w, b, sig):
    v = w >> 1
    odd = w & 1
    if b == 0:
        return 28 * v + 12 * odd + sig
    if sig & 1:
        return 28 * v + 24 + (sig >> 1)
    return 28 * v + 12 * odd + 8 + (sig >> 1)


def chunk_col(q, e):
    kb, ga, hb = q >> 3, (q >> 1) & 3, q & 1
    return 64 * kb + 16 * ga + 4 * (e >> 1) + 2 * hb + (e & 1)


def tile_pos(w, tau):
    if tau < 4:
        return 0, tau
    if tau < 6:
        return 1, tau - 4
    return 1, 2 + (w & 1)


def aw_col(t, n):
    w, tau = divmod(t, 7)
    b, tp = tile_pos(w, tau)
    sig = 2 * (n >> 2) + (tp >> 1)
    e = 4 * ((n >> 1) & 1) + 2 * (tp & 1) + (n & 1)
    return chunk_col(chunk_q(w, b, sig), e)


def vw_col(t, n):
    return 64 * (t >> 2) + 4 * n + (t & 3)


class Asm:
    def __init__(self):
        self.lines = []
        self.uid = 0

    def __call__(self, s):
        for l in s.strip("\n").split("\n"):
            l = l.strip()
            if l:
                self.lines.append("    " + l)

    def label(self, l):
        self.lines.append(l + ":")

    def raw(self, s):
        self.lines.append(s)

    def newlabel(self, p="L"):
        self.uid += 1
        return ".%s_%d" % (p, self.uid)

    def text(self):
        return "\n".join(self.lines) + "\n"


def v(i, n=1):
    return "v%d" % i if n == 1 else "v[%d:%d]" % (i, i + n - 1)


def a(i, n=1):
    return "a%d" % i if n == 1 else "a[%d:%d]" % (i, i + n - 1)


def s(i, n=1):
    return "s%d" % i if n == 1 else "s[%d:%d]" % (i, i + n - 1)


def bits(A, dst, terms, add=None, tmp="v1", stmp="s28", src="v0"):
    first = True
    if add is not None:
        A("v_mov_b32 %s, %s" % (dst, add))
        first = False
    for lo, w, mul in terms:
        A("v_bfe_u32 %s, %s, %d, %d" % (tmp, src, lo, w))
        p2 = mul & (mul - 1) == 0
        sh = mul.bit_length() - 1
        if first:
            if p2:
                A("v_lshlrev_b32 %s, %d, %s" % (dst, sh, tmp))
            else:
                A("v_mul_u32_u24 %s, %d, %s" % (dst, mul, tmp))
            first = False
        elif p2:
            A("v_lshl_add_u32 %s, %s, %d, %s" % (dst, tmp, sh, dst))
        else:
            A("s_mov_b32 %s, %d" % (stmp, mul))
            A("v_mad_u32_u24 %s, %s, %s, %s" % (dst, tmp, stmp, dst))


EV = {"on": 0}


def event(A, idx, slot="s9", base=0):
    if not EV["on"]:
        return
    A("s_memrealtime s[96:97]")
    A("s_lshl_b32 s98, %s, 8" % slot)
    A("s_lshl_b32 s99, s8, 6")
    A("s_add_u32 s98, s98, s99")
    A("s_add_u32 s98, s98, 0x%x" % (DBG + 0x100000 + base + idx * 4))
    A("s_waitcnt lgkmcnt(0)")
    A("v_mov_b32 v1, s96")
    A("buffer_store_dword v1, off, s[4:7], s98")


if __name__ == "__main__":
    cols = sorted(aw_col(t, n) for t in range(28) for n in range(16))
    assert cols == list(range(448))
    cols = sorted(vw_col(t, n) for t in range(28) for n in range(16))
    assert cols == list(range(448))
    print("ok")
```

```python
import struct
from common import *

MF32 = "v_mfma_f32_16x16x32_bf16"
CSC = struct.unpack("<I", struct.pack("<f", (1 / 16) * 1.4426950408889634))[0]
WBYTES = 448 * 8192


def srd(A, dst, lo, nbytes):
    A("s_mov_b32 s%d, s%d" % (dst, lo))
    A("s_and_b32 s%d, s%d, 0xffff" % (dst + 1, lo + 1))
    A("s_mov_b32 s%d, 0x%x" % (dst + 2, nbytes))
    A("s_mov_b32 s%d, 0x00020000" % (dst + 3))


def cvt(d, a_, b_):
    return "v_cvt_pk_bf16_f32 %s, %s, %s" % (v(d), v(a_), v(b_))


def gen_k1(A, stf=""):
    A("""
    s_cmp_ge_u32 s2, 256
    s_cbranch_scc1 .k1_end
    s_load_dwordx2 s[4:5], s[0:1], 96
    s_load_dwordx4 s[40:43], s[0:1], 0
    s_load_dwordx8 s[44:51], s[0:1], 16
    v_lshrrev_b32 v1, 6, v0
    v_lshlrev_b32 v8, 4, v0
    s_mov_b32 s6, 0x%x
    s_mov_b32 s7, 0x00020000
    v_readfirstlane_b32 s8, v1
    v_and_b32 v0, 63, v0
    v_mov_b32 v4, -1
    v_mov_b32 v5, -1
    v_mov_b32 v6, -1
    v_mov_b32 v7, -1
    v_lshlrev_b32 v9, 4, v0
    s_mul_i32 s22, s2, 20480
    s_add_u32 s22, s22, 0x%x
    s_waitcnt lgkmcnt(0)
    s_and_b32 s5, s5, 0xffff
    """ % (WS_BYTES, SENT0))

    event(A, 0, "s2", 0x20000)

    def fill():
        for i in range(5):
            A("buffer_store_dwordx4 v[4:7], v8, s[4:7], s22 offen%s" % stf)
            if i < 4:
                A("s_add_u32 s22, s22, 4096")
    A("""
    s_cmp_ge_u32 s2, 224
    s_cbranch_scc1 .k1_misc
    s_lshr_b32 s24, s2, 3
    s_cmp_ge_u32 s24, 14
    s_cselect_b32 s25, 14, 0
    s_sub_u32 s24, s24, s25
    s_cmp_ge_u32 s24, 7
    s_cselect_b32 s25, 7, 0
    s_cselect_b32 s26, 1, 0
    s_sub_u32 s10, s24, s25
    s_and_b32 s9, s2, 7
    s_lshl_b32 s9, s9, 1
    s_add_u32 s9, s9, s26
    """)
    bits(A, "v10", [(2, 2, 65536), (0, 2, 8192), (4, 2, 16)])
    A("s_cmp_ge_u32 s2, 112")
    A("s_cbranch_scc1 .k1_vw")
    srd(A, 12, 44, WBYTES)
    srd(A, 16, 46, WBYTES)
    bits(A, "v11", [(1, 3, 65536), (0, 1, 8192), (4, 2, 16)])
    bits(A, "v12", [(3, 1, 131072), (2, 1, 16384), (1, 1, 65536), (0, 1, 8192), (4, 2, 16)])
    A("""
    s_lshl_b32 s24, s9, 9
    s_lshl_b32 s25, s10, 19
    s_add_u32 s25, s25, s24
    s_lshr_b32 s26, s8, 1
    s_and_b32 s27, s8, 1
    s_mul_i32 s28, s26, %d
    s_add_u32 s28, s28, s24
    s_mul_i32 s29, s27, %d
    s_add_u32 s29, s29, s28
    s_lshl_b32 s27, s27, 15
    s_add_u32 s28, s28, s27
    """ % (28 * 8 * 8192, 12 * 8 * 8192))
    for m in range(4):
        A("s_add_u32 s%d, s25, %d" % (52 + m, (32 * (m >> 1) + 4 * (m & 1)) * 8192))
    for tau in range(6):
        c = 2 * (tau >> 1) + 4 * (tau & 1) if tau < 4 else 64 + 4 * (tau & 1)
        A("s_add_u32 s%d, s29, %d" % (56 + tau, c * 8192))
    A("s_add_u32 s62, s28, %d" % (192 * 8192))

    def Af(kk, m):
        return a((kk * 4 + m) * 4, 4)

    def Bf(kk, tau):
        return a(128 + (kk * 7 + tau) * 4, 4) if kk < 4 else v(128 + ((kk - 4) * 7 + tau) * 4, 4)

    def acc(m, tau):
        return 16 + (m * 7 + tau) * 4
    event(A, 3, "s2", 0x20000)
    for kk in range(8):
        if kk == 4:
            event(A, 4, "s2", 0x20000)
        o = " offset:%d" % (kk * 64) if kk else ""
        for m in range(4):
            A("buffer_load_dwordx4 %s, v10, s[12:15], s%d offen%s" % (Af(kk, m), 52 + m, o))
        for tau in range(7):
            A("buffer_load_dwordx4 %s, %s, s[16:19], s%d offen%s" % (Bf(kk, tau), "v11" if tau < 4 else "v12", 56 + tau, o))
    fill()
    event(A, 5, "s2", 0x20000)
    if EV["on"] == 2:
        A("s_waitcnt vmcnt(0)")
        event(A, 6, "s2", 0x20000)
    for kk in range(8):
        A("s_waitcnt vmcnt(%d)" % min(63, 5 + 88 - 11 * (kk + 1)))
        for m in range(4):
            for tau in range(7):
                d = v(acc(m, tau), 4)
                A("%s %s, %s, %s, %s" % (MF32, d, Af(kk, m), Bf(kk, tau), d if kk else "0"))
    event(A, 1, "s2", 0x20000)
    A("""
    s_mul_i32 s22, s9, %d
    s_mul_i32 s23, s8, %d
    s_add_u32 s22, s22, s23
    s_lshl_b32 s23, s10, 11
    s_add_u32 s22, s22, s23
    s_add_u32 s22, s22, 0x%x
    s_mov_b32 s24, 0x%x
    s_mov_b32 s25, 0x%x
    s_nop 7
    """ % (28 * 14336, 7 * 14336, AW, CSC, CSC))
    for tau in range(7):
        for ksl in range(2):
            o = 128 + (tau * 2 + ksl) * 4
            for mt in range(2):
                r = acc(2 * ksl + mt, tau)
                A("v_pk_mul_f32 %s, %s, s[24:25]" % (v(r, 2), v(r, 2)))
                A("v_pk_mul_f32 %s, %s, s[24:25]" % (v(r + 2, 2), v(r + 2, 2)))
                A(cvt(o + 2 * mt, r, r + 1))
                A(cvt(o + 2 * mt + 1, r + 2, r + 3))
            A("buffer_store_dwordx4 %s, v9, s[4:7], s22 offen%s%s" % (v(o, 4), " offset:1024" if ksl else "", stf))
        A("s_add_u32 s22, s22, 14336")
    if EV["on"]:
        A("s_waitcnt vmcnt(0)")
    event(A, 2, "s2", 0x20000)
    A("s_endpgm")
    A.label(".k1_vw")
    srd(A, 12, 48, WBYTES)
    srd(A, 16, 50, WBYTES)
    bits(A, "v11", [(4, 2, 8 * 896), (0, 4, 8)])
    A("""
    v_add_u32 v12, %d, v11
    s_mul_i32 s24, s9, 229376
    s_lshl_b32 s25, s10, 7
    s_add_u32 s24, s24, s25
    s_mul_i32 s25, s8, %d
    s_add_u32 s24, s24, s25
    s_add_u32 s25, s24, %d
    s_lshl_b32 s26, s8, 2
    s_min_u32 s26, s26, 10
    s_lshl_b32 s27, s26, 18
    s_lshl_b32 s28, s9, 9
    s_add_u32 s27, s27, s28
    s_mov_b32 s30, 0x05040100
    s_mov_b32 s31, 0x07060302
    s_lshl_b32 s28, s8, 13
    v_add_u32 v13, s28, v9
    """ % (4 * 896, 64 * 896, 32 * 896))
    R = 144
    for k2 in range(2):
        for j in range(8):
            o = " offset:%d" % ((j & 3) * 896) if j & 3 else ""
            A("buffer_load_dwordx2 %s, %s, s[16:19], s%d offen%s" % (v(R + (k2 * 8 + j) * 2, 2), "v11" if j < 4 else "v12", 24 + k2, o))
    for m in range(8):
        A("s_add_u32 s%d, s27, %d" % (52 + m, (32 * (m >> 1) + 4 * (m & 1)) * 8192))

    def Av(kk, m):
        return a((kk * 8 + m) * 4, 4)

    def aload(kk):
        o = " offset:%d" % (kk * 64) if kk else ""
        for m in range(8):
            A("buffer_load_dwordx4 %s, v10, s[12:15], s%d offen%s" % (Av(kk, m), 52 + m, o))
    for kk in range(5):
        aload(kk)
    A("s_waitcnt vmcnt(40)")
    P = 176
    for k2 in range(2):
        for u in range(4):
            for p in range(4):
                A("v_perm_b32 %s, %s, %s, s%d" % (v(P + (k2 * 4 + u) * 4 + p), v(R + (k2 * 8 + 2 * p + 1) * 2 + (u >> 1)),
                                                 v(R + (k2 * 8 + 2 * p) * 2 + (u >> 1)), 30 + (u & 1)))
            A("ds_write_b128 v13, %s offset:%d" % (v(P + (k2 * 4 + u) * 4, 4), (k2 * 4 + u) * 1024))
    for kk in range(5, 8):
        aload(kk)
    fill()
    A("s_waitcnt lgkmcnt(0)")
    A("s_barrier")

    def accv(m, u):
        return 16 + (m * 4 + u) * 4

    def bread(kk):
        for u in range(4):
            A("ds_read_b128 %s, v9 offset:%d" % (v(R + (kk % 3) * 16 + u * 4, 4), (kk * 4 + u) * 1024))
    bread(0)
    bread(1)
    for kk in range(8):
        if kk + 2 < 8:
            bread(kk + 2)
        A("s_waitcnt vmcnt(%d) lgkmcnt(%d)" % (min(63, 5 + 64 - 8 * (kk + 1)), 4 * min(2, 7 - kk)))
        for m in range(8):
            for u in range(4):
                d = v(accv(m, u), 4)
                A("%s %s, %s, %s, %s" % (MF32, d, Av(kk, m), v(R + (kk % 3) * 16 + u * 4, 4), d if kk else "0"))
    A("""
    s_mul_i32 s22, s9, %d
    s_mul_i32 s23, s10, %d
    s_add_u32 s22, s22, s23
    s_lshl_b32 s23, s26, 10
    s_add_u32 s22, s22, s23
    s_add_u32 s22, s22, 0x%x
    s_nop 7
    """ % (28 * 14336, 4 * 14336, VW))
    for u in range(4):
        for ksl in range(4):
            o = R + (u * 4 + ksl) * 4
            for mt in range(2):
                r = accv(2 * ksl + mt, u)
                A(cvt(o + 2 * mt, r, r + 1))
                A(cvt(o + 2 * mt + 1, r + 2, r + 3))
            A("buffer_store_dwordx4 %s, v9, s[4:7], s22 offen%s%s" % (v(o, 4), " offset:%d" % (ksl * 1024) if ksl else "", stf))
        A("s_add_u32 s22, s22, 14336")
    if EV["on"]:
        A("s_waitcnt vmcnt(0)")
    event(A, 2, "s2", 0x20000)
    A("s_endpgm")
    A.label(".k1_misc")
    srd(A, 12, 40, 2048 * 896)
    srd(A, 16, 42, 8 * 896)
    fill()
    A("""
    s_sub_u32 s9, s2, 224
    s_lshl_b32 s22, s9, 12
    s_add_u32 s22, s22, 0x%x
    v_mov_b32 v12, 0
    v_mov_b32 v13, 0
    v_mov_b32 v14, 0
    v_mov_b32 v15, 0
    buffer_store_dwordx4 v[12:15], v8, s[4:7], s22 offen%s
    s_lshr_b32 s26, s8, 1
    s_and_b32 s27, s8, 1
    s_mul_i32 s24, s26, %d
    s_mul_i32 s25, s27, %d
    s_add_u32 s24, s24, s25
    s_mul_i32 s25, s9, %d
    s_add_u32 s24, s24, s25
    s_mul_i32 s27, s27, 192
    s_sub_u32 s27, 256, s27
    """ % (ZERO0, stf, 28 * 16, 12 * 16, 64 * 896))
    bits(A, "v10", [(0, 4, 896), (5, 1, 32), (4, 1, 4)])
    bits(A, "v11", [(0, 4, 896), (5, 1, 4)])
    A("v_bfe_u32 v1, v0, 4, 1")
    A("v_mad_u32_u24 v11, v1, s27, v11")
    n = 0
    for sg in range(2):
        for tile in range(2):
            A("s_add_u32 s25, s24, %d" % ((32 * sg + 16 * tile) * 896))
            for b in range(2):
                for hf in range(2):
                    r = 16 + (((sg * 2 + b) * 2 + tile) * 2 + hf) * 4
                    base = 64 * hf if b == 0 else 128 + 32 * hf
                    for e in range(4):
                        A("buffer_load_dword %s, %s, s[12:15], s25 offen offset:%d" % (v(r + e), "v11" if b else "v10", base + 8 * e))
    A("""
    s_lshl_b32 s22, s9, 16
    s_lshl_b32 s23, s8, 13
    s_add_u32 s22, s22, s23
    s_add_u32 s22, s22, 0x%x
    s_waitcnt vmcnt(0)
    """ % XH)
    for sg in range(2):
        for i in range(8):
            if i == 4:
                A("s_add_u32 s22, s22, 4096")
            o = " offset:%d" % ((i & 3) * 1024) if i & 3 else ""
            A("buffer_store_dwordx4 %s, v9, s[4:7], s22 offen%s%s" % (v(16 + (sg * 8 + i) * 4, 4), o, stf))
        A("s_add_u32 s22, s22, %d" % (32768 - 4096))
    if EV["on"]:
        A("s_waitcnt vmcnt(0)")
    event(A, 2, "s2", 0x20000)
    A("""
    s_cmp_ge_u32 s9, 2
    s_cbranch_scc1 .k1_end
    s_lshl_b32 s22, s9, 2
    s_add_u32 s22, s22, s8
    s_lshl_b32 s23, s22, 7
    s_lshl_b32 s22, s22, 10
    s_add_u32 s22, s22, 0x%x
    s_add_u32 s24, s22, 8192
    """ % MEM)
    bits(A, "v10", [(4, 2, 32), (1, 1, 4), (2, 2, 2 * 896), (0, 1, 896)])
    for e in range(4):
        A("buffer_load_dword %s, v10, s[16:19], s23 offen offset:%d" % (v(4 + e), 8 * e))
    A("s_waitcnt vmcnt(0)")
    for e in range(4):
        A("v_min_u32 %s, -2, %s" % (v(4 + e), v(4 + e)))
    A("buffer_store_dwordx4 v[4:7], v9, s[4:7], s22 offen%s" % stf)
    A("buffer_store_dwordx4 v[4:7], v9, s[4:7], s24 offen%s" % stf)
    A.label(".k1_end")
    A("s_endpgm")
```

```python
from common import *
from chain import *
from k1 import srd

NEG = "0xf149f2ca"


def off(o):
    return " offset:%d" % o if o else ""


def signal(A, slot_expr_sgpr):
    L = A.newlabel("sig")
    A("s_waitcnt vmcnt(0)")
    A("s_barrier")
    A("s_cmp_lg_u32 %s, 0" % s(S_W))
    A("s_cbranch_scc1 %s" % L)
    A("s_mov_b64 exec, 1")
    A("v_mov_b32 v1, 0")
    A("v_mov_b32 v2, 1")
    A("buffer_atomic_add v2, v1, %s, %s offen" % (SRD, slot_expr_sgpr))
    A("s_mov_b64 exec, -1")
    A.label(L)


def wait_counter2(A, slot, target, abort, sleep=4):
    L = A.newlabel("wc")
    G = A.newlabel("wcg")
    A("v_mov_b32 v1, 0")
    A("s_mov_b32 s22, 0x%x" % (CNT + slot * 128))
    A.label(L)
    A("buffer_load_dword v2, v1, %s, s22 offen sc1" % SRD)
    A("s_waitcnt vmcnt(0)")
    A("v_readfirstlane_b32 s23, v2")
    A("s_cmp_ge_u32 s23, %d" % target)
    A("s_cbranch_scc1 %s" % G)
    spin_guard(A, abort)
    A("s_sleep %d" % sleep)
    A("s_branch %s" % L)
    A.label(G)


def poll_light(A, sreg, abort, sleep):
    L = A.newlabel("pl")
    G = A.newlabel("plg")
    A("v_mov_b32 v1, 0")
    A.label(L)
    A("buffer_load_dword v2, v1, %s, %s offen sc1" % (SRD, sreg))
    A("s_waitcnt vmcnt(0)")
    A("v_readfirstlane_b32 s23, v2")
    A("s_cmp_lg_u32 s23, -1")
    A("s_cbranch_scc1 %s" % G)
    spin_guard(A, abort)
    A("s_sleep %d" % sleep)
    A("s_branch %s" % L)
    A.label(G)


def xred(A, op, m, m2):
    for sw in ["v_permlane16_swap_b32", "v_permlane32_swap_b32"]:
        A("v_mov_b32 %s, %s" % (v(m2), v(m)))
        A("s_nop 1")
        A("%s %s, %s" % (sw, v(m), v(m2)))
        A("s_nop 0")
        A("%s %s, %s, %s" % (op, v(m), v(m), v(m2)))


def gen_aworker(A, abort):
    XB, ACC, TMP = 16, 64, 232
    S_H, S_I, S_PASS = 30, 31, 29
    A("""
    s_load_dwordx2 s[40:41], s[0:1], 0
    s_sub_u32 s22, {R}, {R0}
    s_mul_i32 s30, s22, 373
    s_lshr_b32 s30, s30, 12
    s_mul_i32 s23, s30, 11
    s_sub_u32 s31, s22, s23
    v_lshlrev_b32 v9, 4, v0
    v_add_u32 v10, 4096, v9
    v_add_u32 v11, 0x2000, v9
    v_add_u32 v12, 0x3000, v9
    v_add_u32 v14, 0xa800, v9
    s_mov_b32 s29, 0
    s_waitcnt lgkmcnt(0)
    """.format(R=s(S_ROLE), R0=R_AW))
    srd(A, 12, 40, 2048 * 896)
    bits(A, "v13", [(0, 4, 896), (4, 2, 16)])
    A("""
    s_mul_i32 s22, s30, %d
    s_mul_i32 s23, %s, %d
    s_add_u32 s22, s22, s23
    s_mul_i32 s24, %s, 7
    s_lshl_b32 s25, s30, 11
    s_add_u32 s25, s25, 0x%x
    """ % (28 * 14336, s(S_W), 7 * 14336, s(S_W), UB))
    for tau in range(7):
        A("s_add_u32 s%d, s22, %d" % (44 + tau, tau * 14336))
        A("s_add_u32 s26, s24, %d" % tau)
        A("s_lshr_b32 s27, s26, 1")
        A("s_lshl_b32 s27, s27, 15")
        A("s_and_b32 s26, s26, 1")
        A("s_lshl_b32 s26, s26, 10")
        A("s_add_u32 s27, s27, s26")
        A("s_add_u32 s%d, s27, s25" % (51 + tau))
    PASS = A.newlabel("aw_pass")
    A.label(PASS)
    A("s_mul_i32 s22, s29, 33")
    A("s_add_u32 s40, s22, s31")
    A("s_add_u32 s41, s40, 11")
    A("s_add_u32 s42, s40, 22")
    A("s_cmp_ge_u32 s42, 64")
    A("s_cselect_b32 s42, s41, s42")
    A("s_barrier")
    for q in range(4):
        A("s_add_u32 s22, %s, %d" % (s(S_W), 4 * q))
        A("s_min_u32 s22, s22, 13")
        A("s_mul_i32 s23, s22, 6144")
        A("s_lshl_b32 s22, s22, 6")
        for k in range(3):
            A("s_mul_i32 s24, s%d, %d" % (40 + k, 32 * 896))
            A("s_add_u32 s24, s24, s22")
            A("s_add_u32 s25, s24, %d" % (16 * 896))
            A("s_add_u32 m0, s23, %d" % (k * 2048))
            A("s_nop 0")
            A("buffer_load_dwordx4 v13, s[12:15], s24 offen lds")
            A("s_add_u32 m0, s23, %d" % (k * 2048 + 1024))
            A("s_nop 0")
            A("buffer_load_dwordx4 v13, s[12:15], s25 offen lds")

    def Wf(ks, tau):
        return a(((ks & 3) * 7 + tau) * 4, 4)

    def wload(ks, tau, base):
        return "buffer_load_dwordx4 %s, v%d, %s, s%d offen%s" % (Wf(ks, tau), 9 + (ks >> 2), SRD, 44 + tau, off((ks & 3) * 1024))

    def xread(ks, mt):
        o = (ks * 6 + mt) * 1024
        r = "v9"
        if o >= 0xa800:
            o -= 0xa800
            r = "v14"
        return "ds_read_b128 %s, %s%s" % (v(XB + ((ks & 1) * 6 + mt) * 4, 4), r, off(o))

    def gemm(swapped, first):
        for ks in range(3):
            for tau in range(7):
                A(wload(ks, tau, 0))
        if first:
            A("s_waitcnt vmcnt(21)")
            A("s_barrier")
        for mt in range(6):
            A(xread(0, mt))
        for ks in range(14):
            nl = min(2, 13 - ks)
            A("s_waitcnt vmcnt(%d) lgkmcnt(0)" % (7 * nl))
            n = 0
            for mt in range(6):
                for tau in range(7):
                    d = v(ACC + (mt * 7 + tau) * 4, 4)
                    x = v(XB + ((ks & 1) * 6 + mt) * 4, 4)
                    p, q = (Wf(ks, tau), x) if swapped else (x, Wf(ks, tau))
                    A("%s %s, %s, %s, %s" % (MF32, d, p, q, d if ks else "0"))
                    if n % 3 == 1:
                        i = n // 3
                        if i < 6 and ks + 1 < 14:
                            A(xread(ks + 1, i))
                        elif i >= 6 and i < 13 and ks + 3 < 14:
                            A(wload(ks + 3, i - 6, 0))
                    n += 1
        A("s_nop 7")

    tmp = [0]

    def T():
        tmp[0] = (tmp[0] + 1) % 6
        return TMP + 4 * tmp[0]

    for tau in range(7):
        A("s_add_u32 s%d, s%d, 0x%x" % (44 + tau, 44 + tau, VW))
    gemm(False, True)
    for k in range(3):
        A("s_mul_i32 s24, s%d, %d" % (40 + k, U_S))
        for tau in range(7):
            t = T()
            for mt in range(2):
                r = ACC + ((2 * k + mt) * 7 + tau) * 4
                A(cvt(t + 2 * mt, r, r + 1))
                A(cvt(t + 2 * mt + 1, r + 2, r + 3))
            A("s_add_u32 s25, s24, s%d" % (51 + tau))
            A("buffer_store_dwordx4 %s, v9, %s, s25 offen %s" % (v(t, 4), SRD, ["sc1", "sc0 sc1", "nt sc1", "nt sc0 sc1"][PARAM.get("ust", 0)]))
    A("s_lshl_b32 s26, s29, 7")
    A("s_add_u32 s26, s26, 0x%x" % (CNT + C_U * 128))
    signal(A, "s26")
    if EV["on"]:
        A("s_cmp_lg_u32 s29, 0")
        A("s_cbranch_scc1 .aw_ev1")
        event(A, 1)
        A.label(".aw_ev1")
    for tau in range(7):
        A("s_sub_u32 s%d, s%d, 0x%x" % (44 + tau, 44 + tau, VW - AW))
    gemm(True, False)
    for tau in range(7):
        A("s_sub_u32 s%d, s%d, 0x%x" % (44 + tau, 44 + tau, AW))
    A("""
    s_mul_i32 s26, {W}, 3072
    s_lshr_b32 s27, {W}, 1
    s_lshl_b32 s27, s27, 10
    s_and_b32 s28, {W}, 1
    s_lshl_b32 s28, s28, 2
    s_add_u32 s27, s27, s28
    s_add_u32 s27, s27, 12288
    s_lshl_b32 s28, s30, 6
    """.format(W=s(S_W)))
    for mt in range(6):
        A("s_add_u32 s22, s28, s%d" % (40 + (mt >> 1)))
        A("s_mul_i32 s22, s22, 28672")
        A("s_add_u32 s22, s22, 0x%x" % (TXB + (mt & 1) * 14336))
        A("s_add_u32 s23, s22, s27")
        A("s_add_u32 s22, s22, s26")
        for pp in range(3):
            t = T()
            r0 = ACC + (mt * 7 + 2 * pp) * 4
            r1 = r0 + 4
            A(cvt(t, r0, r0 + 1))
            A(cvt(t + 1, r1, r1 + 1))
            A(cvt(t + 2, r0 + 2, r0 + 3))
            A(cvt(t + 3, r1 + 2, r1 + 3))
            A("buffer_store_dwordx4 %s, v9, %s, s22 offen%s" % (v(t, 4), SRD, off(pp * 1024)))
        t = T()
        r0 = ACC + (mt * 7 + 6) * 4
        A(cvt(t, r0, r0 + 1))
        A(cvt(t + 1, r0 + 2, r0 + 3))
        A("buffer_store_dword %s, v9, %s, s23 offen" % (v(t), SRD))
        A("buffer_store_dword %s, v9, %s, s23 offen offset:8" % (v(t + 1), SRD))
    A("s_add_u32 s29, s29, 1")
    A("s_cmp_lt_u32 s29, 2")
    A("s_cbranch_scc1 %s" % PASS)
    A("s_waitcnt vmcnt(0)")
    A("s_barrier")

    event(A, 2)
    MFR, SX, SM, CHK, VA, VB, VX, VM = 16, 72, 80, 88, 89, 90, 91, 92
    m, m2, PO = 93, 94, 96
    bits(A, v(VA), [(4, 2, 256), (2, 2, 64), (0, 1, 16)])
    bits(A, v(VB), [(5, 1, 256), (4, 1, 32), (2, 2, 64), (0, 1, 16)])
    bits(A, v(VX), [(5, 1, 1024), (4, 1, 512), (0, 4, 16)])
    A("""
    s_and_b32 s28, {W}, 1
    s_lshl_b32 s22, s28, 4
    v_and_b32 v1, 15, v0
    v_add_u32 v1, s22, v1
    v_lshrrev_b32 v2, 4, v0
    v_lshlrev_b32 v2, 2, v2
    v_sub_u32 {VM}, v1, v2
    s_lshr_b32 s29, {W}, 1
    s_mul_i32 s29, s29, 11
    s_add_u32 s29, s29, s31
    """.format(W=s(S_W), VM=v(VM)))
    for kt in range(2):
        for r in range(4):
            A("v_cmp_le_i32 %s, %d, %s" % (s(60 + 2 * (kt * 4 + r), 2), 16 * kt + r, v(VM)))
    pairs = []
    for w in range(4):
        q0 = 28 * (w >> 1) + 12 * (w & 1)
        pairs.append((w * 8192, VA, q0 * 128, 3 * w))
        pairs.append((w * 8192 + 256, VA, q0 * 128 + 32, 3 * w + 1))
        pairs.append((w * 8192 + 4096, VB, (q0 + 8) * 128, 3 * w + 2))
    for vv in range(2):
        pairs.append((2 * vv * 8192 + 4096 + 256, VB, (28 * vv + 24) * 128, 12 + vv))
    ITEM = A.newlabel("aw_item")
    A.label(ITEM)
    A("""
    s_lshl_b32 s22, s30, 6
    s_add_u32 s22, s22, s29
    s_lshl_b32 s22, s22, 1
    s_add_u32 s22, s22, s28
    s_mul_i32 s22, s22, 14336
    s_add_u32 s22, s22, 0x%x
    s_lshl_b32 s24, s29, 15
    s_add_u32 s24, s24, 0x%x
    s_lshl_b32 s26, s29, 14
    s_add_u32 s26, s26, 0x%x
    s_add_u32 s27, s26, 4096
    """ % (TXB, XH, MEMW))
    for p in range(14):
        A("buffer_load_dwordx4 %s, v%d, %s, s22 offen%s sc1" % (a(112 + 4 * p, 4), 9 + (p >> 2), SRD, off((p & 3) * 1024)))
    for p, (xc, _, _, ti) in enumerate(pairs):
        A("s_add_u32 s25, s24, %d" % (xc & ~4095))
        for kt in range(2):
            A("buffer_load_dwordx4 %s, %s, %s, s25 offen%s" % (a((kt * 14 + p) * 4, 4), v(VX), SRD, off((xc & 4095) + kt * 2048)))
    A("s_waitcnt vmcnt(0)")
    for p, (xc, _, _, ti) in enumerate(pairs):
        for kt in range(2):
            d = v(SX + 4 * kt, 4)
            A("%s %s, %s, %s, %s" % (MF32, d, a((kt * 14 + p) * 4, 4), a(112 + 4 * ti, 4), d if p else "0"))
    poll_light(A, "s26", abort, 8)
    ml = []
    for p, (_, vr, mc, _) in enumerate(pairs):
        ml.append(ld(v(MFR + 4 * p, 4), v(vr), "s27" if mc >= 4096 else "s26", mc & 4095))
    poll(A, ml, range(MFR, MFR + 56), CHK, abort, 1, 2)
    for p, (_, _, _, ti) in enumerate(pairs):
        d = v(SM + 4 * (p & 1), 4)
        A("%s %s, %s, %s, %s" % (MF32, d, v(MFR + 4 * p, 4), a(112 + 4 * ti, 4), d if p >= 2 else "0"))
    A("v_mov_b32 %s, %s" % (v(m2), NEG))
    for i in range(8):
        A("v_cndmask_b32 %s, %s, %s, %s" % (v(SX + i), v(m2), v(SX + i), s(60 + 2 * i, 2)))
    A("v_max3_f32 %s, %s, %s, %s" % (v(m), v(SX), v(SX + 1), v(SX + 2)))
    A("v_max3_f32 %s, %s, %s, %s" % (v(m), v(m), v(SX + 3), v(SX + 4)))
    A("v_max3_f32 %s, %s, %s, %s" % (v(m), v(m), v(SX + 5), v(SX + 6)))
    A("v_max_f32 %s, %s, %s" % (v(m), v(m), v(SX + 7)))
    A("v_add_f32 %s, %s, %s" % (v(SM), v(SM), v(SM + 4)))
    A("v_add_f32 %s, %s, %s" % (v(SM + 1), v(SM + 1), v(SM + 5)))
    A("v_max3_f32 %s, %s, %s, %s" % (v(m), v(m), v(SM), v(SM + 1)))
    xred(A, "v_max_f32", m, m2)
    for i in range(10):
        A("v_sub_f32 %s, %s, %s" % (v(SX + i), v(SX + i), v(m)))
    for i in range(10):
        A("v_exp_f32 %s, %s" % (v(SX + i), v(SX + i)))
    A("s_nop 0")
    A("v_add_f32 %s, %s, %s" % (v(m), v(SX), v(SX + 1)))
    for i in range(2, 10):
        A("v_add_f32 %s, %s, %s" % (v(m), v(m), v(SX + i)))
    xred(A, "v_add_f32", m, m2)
    A("v_rcp_f32 %s, %s" % (v(m), v(m)))
    A("""
    s_mul_i32 s22, s29, %d
    s_mul_i32 s23, s28, 20480
    s_add_u32 s22, s22, s23
    s_add_u32 s22, s22, 0x%x
    s_lshr_b32 s23, s30, 2
    s_lshl_b32 s23, s23, 10
    s_and_b32 s24, s30, 3
    s_lshl_b32 s24, s24, 2
    s_add_u32 s23, s23, s24
    s_add_u32 s23, s23, s22
    s_add_u32 s23, s23, 16384
    s_lshl_b32 s24, s30, 10
    s_add_u32 s22, s22, s24
    """ % (PX_S, PX))
    for i in range(10):
        A("v_mul_f32 %s, %s, %s" % (v(SX + i), v(SX + i), v(m)))
    for i in range(5):
        A(cvt(PO + i, SX + 2 * i, SX + 2 * i + 1))
        A("v_min_u32 %s, -2, %s" % (v(PO + i), v(PO + i)))
    A("buffer_store_dwordx4 %s, v9, %s, s22 offen sc1" % (v(PO, 4), SRD))
    A("buffer_store_dword %s, v9, %s, s23 offen sc1" % (v(PO + 4), SRD))
    A("s_add_u32 s29, s29, 22")
    A("s_cmp_lt_u32 s29, 64")
    A("s_cbranch_scc1 %s" % ITEM)
    event(A, 3)
    A("s_endpgm")


def gen_shadow(A, abort):
    SETS = [16, 100]
    YA, YP, D, RT, CHK, IDX = 184, 200, 204, 212, 228, 229
    VG, VU, VU2, VL4, VLW, VO = 10, 11, 12, 13, 14, 15
    A("""
    s_load_dwordx2 s[40:41], s[0:1], 80
    s_sub_u32 s30, {R}, {R0}
    s_lshr_b32 s31, s30, 2
    s_and_b32 s29, s30, 3
    s_lshl_b32 s29, s29, 6
    v_lshlrev_b32 v9, 4, v0
    v_add_u32 {VL4}, 4096, v9
    s_mul_i32 s22, {W}, {C1}
    s_mul_i32 s23, s31, {C2}
    s_add_u32 s22, s22, s23
    s_add_u32 s22, s22, s29
    s_add_u32 s22, s22, 0x{VW:x}
    """.format(R=s(S_ROLE), R0=R_SH, VL4=v(VL4), W=s(S_W), C1=4 * 28 * 14336, C2=4 * 14336, VW=VW))
    bits(A, v(VG), [(0, 2, 14336), (4, 2, 256), (2, 2, 16)])
    for hh in range(4):
        for ks in range(14):
            if ks & 3 == 0:
                A("s_add_u32 s23, s22, %d" % (hh * 28 * 14336 + ks * 1024))
            A("buffer_load_dwordx4 %s, %s, %s, s23 offen%s" % (a((hh * 14 + ks) * 4, 4), v(VG), SRD, off((ks & 3) * 1024)))
    bits(A, v(VU), [(1, 1, 32768), (0, 1, 1024), (4, 2, 256), (2, 2, 16)])
    A("v_add_u32 %s, 4096, %s" % (v(VU2), v(VU)))
    idx_const(A, IDX)
    A("s_waitcnt lgkmcnt(0)")
    srd(A, 12, 40, 2048 * 1792)
    A("""
    s_lshl_b32 s44, s31, 16
    s_lshl_b32 s23, {W}, 13
    s_add_u32 s44, s44, s23
    s_add_u32 s44, s44, s29
    s_add_u32 s44, s44, 0x{UB:x}
    s_mov_b32 s45, 0x{MEMW:x}
    s_lshl_b32 s46, {W}, 12
    s_add_u32 s46, s46, 0x{PX:x}
    s_add_u32 s47, s46, 20480
    s_lshl_b32 s48, {W}, 10
    s_add_u32 s48, s48, 0x{PXM:x}
    s_add_u32 s49, s48, 20480
    s_mul_i32 s50, {W}, {RT}
    s_lshl_b32 s23, s30, 5
    s_add_u32 s50, s50, s23
    s_lshl_b32 s23, {W}, 11
    v_add_u32 {VLW}, s23, v9
    s_lshl_b32 s23, {W}, 10
    v_add_u32 v8, s23, v9
    s_mov_b32 {STEP}, 0
    """.format(W=s(S_W), UB=UB, MEMW=MEMW, PX=PX, PXM=PX + 16384, RT=16 * 1792, VLW=v(VLW), STEP=s(S_STEP)))
    bits(A, v(VO), [(0, 4, 1792), (4, 2, 8)])
    wait_counter2(A, C_U, NAW, abort)
    event(A, 1)

    def mloads(X, sreg):
        return [ld(v(X + 4 * j, 4), "v9" if j < 4 else v(VL4), sreg, (j & 3) * 1024) for j in range(7)]

    def ploads(X, b):
        out = []
        for rt in range(2):
            for hh in range(4):
                out.append(ld(v(X + 28 + (rt * 5 + hh) * 4, 4), "v9", "s%d" % (b + rt), hh * 1024))
            out.append(ld(v(X + 28 + (rt * 5 + 4) * 4, 4), "v9", "s%d" % (b + 2 + rt)))
        return out

    def uloads(X):
        return [ld(v(X + 68 + 4 * hh, 4), v(VU) if hh < 2 else v(VU2), "s44", (hh & 1) * 2048) for hh in range(4)]

    for o in uloads(SETS[0]) + mloads(SETS[0], "s45") + ploads(SETS[0], 46):
        A(o)
    LOOP = A.newlabel("sh_loop")
    A.label(LOOP)
    for par in range(2):
        X, XN = SETS[par], SETS[1 - par]
        for i in range(16):
            A("v_mov_b32 %s, 0" % v(YA + i))
        OK = A.newlabel("sh_mok")
        A("s_waitcnt vmcnt(10)")
        for i in chk_ops(CHK, range(X, X + 28)):
            A(i)
        A("v_cmp_eq_u32 vcc, -1, %s" % v(CHK))
        A("s_cbranch_vccz %s" % OK)
        poll_light(A, "s45", abort, 2)
        poll(A, mloads(X, "s45"), range(X, X + 28), CHK, abort, 1, 1)
        A.label(OK)
        for j in range(7):
            for hh in range(4):
                A("%s %s, %s, %s, %s" % (SMF, v(YA + 4 * hh, 4), v(X + 4 * j, 4), a((hh * 7 + j) * 8, 8), v(IDX)))
        for i in range(4):
            A("s_mov_b32 s%d, s%d" % (52 + i, 46 + i))
            A("s_add_u32 s%d, s%d, %d" % (46 + i, 46 + i, PX_S))
        A("s_add_u32 s44, s44, %d" % U_S)
        A("s_add_u32 s45, s45, %d" % MEM_S)
        if par == 0:
            NW = A.newlabel("sh_nw")
            A("s_cmp_lg_u32 %s, 32" % s(S_STEP))
            A("s_cbranch_scc1 %s" % NW)
            wait_counter2(A, C_U + 1, NAW, abort)
            event(A, 2)
            A.label(NW)
        for o in uloads(XN) + mloads(XN, "s45") + ploads(XN, 46):
            A(o)
        for hh in range(4):
            y = YA + 4 * hh
            A("v_add_f32 %s, %s, %s" % (v(y), v(y), v(y + 2)))
            A("v_add_f32 %s, %s, %s" % (v(y + 1), v(y + 1), v(y + 3)))
            A(cvt(YP + hh, y, y + 1))
        OK = A.newlabel("sh_pok")
        A("s_waitcnt vmcnt(21)")
        for i in chk_ops(CHK, range(X + 28, X + 68)):
            A(i)
        A("v_cmp_eq_u32 vcc, -1, %s" % v(CHK))
        A("s_cbranch_vccz %s" % OK)
        poll(A, ploads(X, 52), range(X + 28, X + 68), CHK, abort, 1, 4)
        A.label(OK)
        for hh in range(5):
            for rt in range(2):
                d = v(D + 4 * rt, 4)
                aop = v(X + 68 + 4 * hh, 4) if hh < 4 else v(YP, 4)
                A("%s %s, %s, %s, %s" % (MF32, d, aop, v(X + 28 + (rt * 5 + hh) * 4, 4), d if hh else "0"))
        A("s_nop 7")
        for rt in range(2):
            A("ds_write_b128 %s, %s%s" % (v(VLW), v(D + 4 * rt, 4), off(par * 8192 + rt * 1024)))
        A("s_waitcnt lgkmcnt(0)")
        A("s_barrier")
        SK = A.newlabel("sh_skip")
        A("s_cmp_ge_u32 %s, 2" % s(S_W))
        A("s_cbranch_scc1 %s" % SK)
        for k in range(4):
            A("ds_read_b128 %s, v8%s" % (v(RT + 4 * k, 4), off(par * 8192 + k * 2048)))
        A("s_waitcnt lgkmcnt(0)")
        A(pkadd(RT, RT, RT + 4))
        A(pkadd(RT + 2, RT + 2, RT + 6))
        A(pkadd(RT + 8, RT + 8, RT + 12))
        A(pkadd(RT + 10, RT + 10, RT + 14))
        A(pkadd(RT, RT, RT + 8))
        A(pkadd(RT + 2, RT + 2, RT + 10))
        A(cvt(RT, RT, RT + 1))
        A(cvt(RT + 1, RT + 2, RT + 3))
        A("buffer_store_dwordx2 %s, %s, s[12:15], s50 offen" % (v(RT, 2), v(VO)))
        A.label(SK)
        A("s_add_u32 s50, s50, %d" % (32 * 1792))
        A("s_add_u32 %s, %s, 1" % (s(S_STEP), s(S_STEP)))
    A("s_cmp_lt_u32 %s, 64" % s(S_STEP))
    A("s_cbranch_scc1 %s" % LOOP)
    A("s_waitcnt vmcnt(0)")
    event(A, 3)
    A("s_endpgm")


def gen_bworker(A, abort):
    XB, RAW, WP, ACC = 16, 80, 112, 128
    VXR, VKM, VKE, VONE = 14, 15, 3, 4
    LOG2E = "0x3fb8aa3b"
    EPS = "0x358637bd"
    A("""
    s_load_dwordx8 s[48:55], s[0:1], 56
    s_sub_u32 s30, {R}, {R0}
    v_lshlrev_b32 v9, 4, v0
    s_mov_b32 s60, 0x05040100
    s_mov_b32 s61, 0x07060302
    s_mov_b32 s62, {L}
    s_mov_b32 s63, {E}
    s_waitcnt lgkmcnt(0)
    """.format(R=s(S_ROLE), R0=R_BW, L=LOG2E, E=EPS))
    srd(A, 12, 48, 2048 * 896)
    srd(A, 32, 50, 448 * 2688)
    srd(A, 36, 52, 448 * 896)
    srd(A, 40, 54, 2048 * 1792)
    bits(A, "v13", [(0, 4, 896), (4, 2, 16)])
    A("""
    s_mul_i32 s24, s30, %d
    s_mul_i32 s25, %s, %d
    s_add_u32 s24, s24, s25
    s_add_u32 s25, s24, %d
    s_lshl_b32 s23, %s, 11
    """ % (128 * 896, s(S_W), 32 * 896, 16 * 896, s(S_W)))
    for ks in range(14):
        for m in range(2):
            A("s_add_u32 m0, s23, %d" % (ks * 8192 + m * 1024 - ks * 64))
            A("s_nop 0")
            A("buffer_load_dwordx4 v13, s[12:15], s%d offen%s lds" % (24 + m, off(ks * 64)))

    def offs12():
        bits(A, "v10", [(4, 2, 8 * 2688), (0, 4, 4)])
        A("""
        v_and_b32 v1, 15, v0
        v_cmp_le_u32 vcc, 14, v1
        v_mov_b32 v2, 0x10000000
        s_nop 0
        v_cndmask_b32 v2, 0, v2, vcc
        v_add_u32 v10, v10, v2
        v_add_u32 v11, %d, v10
        v_add_u32 v12, %d, v10
        v_add_u32 v13, %d, v10
        """ % (2 * 2688, 4 * 2688, 6 * 2688))
    A("s_waitcnt vmcnt(0)")
    offs12()
    A("""
    v_cndmask_b32 {VKM}, 1.0, 0, vcc
    v_mul_f32 {VKE}, s63, {VKM}
    v_cmp_eq_u32 vcc, 14, v1
    v_mov_b32 v2, 0x3f803f80
    s_nop 0
    v_cndmask_b32 {VONE}, 0, v2, vcc
    v_lshlrev_b32 v8, 2, v0
    s_barrier
    """.format(VKM=v(VKM), VKE=v(VKE), VONE=v(VONE)))

    def acc(pr, u, mt):
        return ACC + ((pr * 2 + u) * 8 + mt) * 4

    def gemm(nks, sr, addr, step, rows, swapped):
        def raw(st):
            for pr in range(2):
                for j in range(8):
                    vr, o = addr(pr, j)
                    A("buffer_load_dword %s, %s, %s, s44 offen%s" % (v(RAW + st * 16 + pr * 8 + j), vr, sr, off(o)))
            A("s_add_u32 s44, s44, %d" % step)

        def xr(st):
            for mt in range(8):
                A("ds_read_b128 %s, %s%s" % (v(XB + st * 32 + mt * 4, 4), v(VXR), off(mt * 1024)))
            A("v_add_u32 %s, 0x2000, %s" % (v(VXR), v(VXR)))
        raw(0)
        A("v_mov_b32 %s, v9" % v(VXR))
        xr(0)
        for i in range(128):
            A("v_mov_b32 %s, 0" % v(ACC + i))
        A("s_mov_b32 s45, %d" % (nks // 2))
        L = A.newlabel("bg")
        A.label(L)
        for par in range(2):
            raw(1 - par)
            A("s_waitcnt vmcnt(16)")
            for pr in range(2):
                for u in range(2):
                    for p in range(4):
                        r0, r1 = rows[p]
                        b = RAW + par * 16 + pr * 8
                        A("v_perm_b32 %s, %s, %s, s%d" % (v(WP + (pr * 2 + u) * 4 + p), v(b + r1), v(b + r0), 60 + u))
            A("s_waitcnt lgkmcnt(0)")
            xr(1 - par)
            for mt in range(8):
                for pr in range(2):
                    for u in range(2):
                        d = v(acc(pr, u, mt), 4)
                        x = v(XB + par * 32 + mt * 4, 4)
                        w = v(WP + (pr * 2 + u) * 4, 4)
                        p_, q_ = (w, x) if swapped else (x, w)
                        A("%s %s, %s, %s, %s" % (MF32, d, p_, q_, d))
        A("s_sub_u32 s45, s45, 1")
        A("s_cmp_lg_u32 s45, 0")
        A("s_cbranch_scc1 %s" % L)
        A("s_waitcnt vmcnt(0) lgkmcnt(0)")
        A("s_nop 7")

    def phi(r, n, masked):
        t = XB
        for i in range(n):
            A("v_mul_f32 %s, s62, %s" % (v(t + i), v(r + i)))
        for i in range(n):
            A("v_min_f32 %s, 0, %s" % (v(t + i), v(t + i)))
        for i in range(n):
            A("v_exp_f32 %s, %s" % (v(t + i), v(t + i)))
        for i in range(n):
            A("v_max_f32 %s, 0, %s" % (v(r + i), v(r + i)))
        for i in range(n):
            A("v_add_f32 %s, %s, %s" % (v(r + i), v(r + i), v(t + i)))
        for i in range(n):
            if masked:
                A("v_fma_f32 %s, %s, %s, %s" % (v(r + i), v(r + i), v(VKM), v(VKE)))
            else:
                A("v_add_f32 %s, s63, %s" % (v(r + i), v(r + i)))

    rows12 = [(0, 1), (2, 3), (4, 5), (6, 7)]
    A("s_lshl_b32 s31, %s, 2" % s(S_W))
    A("s_mov_b32 s29, 0")
    P1 = A.newlabel("b_p1")
    A.label(P1)
    A("s_mul_i32 s44, s31, 56")
    A("s_add_u32 s44, s44, 896")
    gemm(14, "s[32:35]", lambda pr, j: ("v%d" % (10 + (j >> 1)), (j & 1) * 2688 + pr * 896), 32 * 2688, rows12, False)
    phi(ACC, 64, True)
    for pr in range(2):
        for u in range(2):
            for q in range(4):
                r = acc(pr, u, 2 * q)
                for i in range(4):
                    A(cvt(r + i, r + 2 * i, r + 2 * i + 1))
                    if pr == 1 and u == 0:
                        A("v_or_b32 %s, %s, %s" % (v(r + i), v(r + i), v(VONE)))
    A("s_nop 1")
    for q in range(4):
        for dt in range(2):
            for et in range(2):
                d = v(XB + (dt * 2 + et) * 4, 4)
                A("%s %s, %s, %s, %s" % (MF32, d, v(acc(0, dt, 2 * q), 4), v(acc(1, et, 2 * q), 4), d if q else "0"))
    A("s_lshl_b32 s22, s31, 12")
    A("s_add_u32 s22, s22, 0x%x" % KV)
    A("s_nop 7")
    for i in range(16):
        A("buffer_atomic_add_f32 %s, v8, %s, s22 offen%s" % (v(XB + i), SRD, off(i * 256)))
    A("s_add_u32 s31, s31, 1")
    A("s_add_u32 s29, s29, 1")
    A("s_cmp_lt_u32 s29, 4")
    A("s_waitcnt vmcnt(0)")
    A("s_cbranch_scc1 %s" % P1)
    A("s_mov_b32 s26, 0x%x" % (CNT + C_KV * 128))
    signal(A, "s26")
    event(A, 1)
    for it in range(2):
        A("s_mul_i32 s44, %s, 224" % s(S_W))
        A("s_add_u32 s44, s44, %d" % (it * 112))
        gemm(14, "s[32:35]", lambda pr, j: ("v%d" % (10 + (j >> 1)), (j & 1) * 2688 + pr * 56), 32 * 2688, rows12, True)
        phi(ACC, 64, False)
        phi(ACC + 64, 64, False)
        for pr in range(2):
            for mt in range(8):
                for u in range(2):
                    r = acc(pr, u, mt)
                    A(cvt(r, r, r + 1))
                    A(cvt(r + 1, r + 2, r + 3))
                    for i in range(2):
                        A("v_accvgpr_write_b32 %s, %s" % (a(((2 * it + pr) * 8 + mt) * 4 + 2 * u + i), v(r + i)))
    wait_counter2(A, C_KV, 16, abort)
    A("s_barrier")
    bits(A, "v10", [(4, 2, 64)], 56)
    A("""
    v_cmp_gt_u32 vcc, 48, v0
    s_lshl_b32 s22, {W}, 15
    v_add_u32 v12, s22, v9
    v_cndmask_b32 v11, 0, -1, vcc
    s_lshl_b32 s22, {W}, 14
    s_add_u32 s22, s22, 0x{KV:x}
    """.format(W=s(S_W), KV=KV))
    for hh in range(4):
        b = ACC + hh * 24
        for i in range(16):
            A("buffer_load_dword %s, v8, %s, s22 offen%s sc1" % (v(b + i), SRD, off(i * 256)))
        for dt in range(2):
            for r in range(4):
                A("buffer_load_dword %s, v10, %s, s22 offen%s sc1" % (v(b + 16 + dt * 4 + r), SRD, off((dt * 8 + r) * 256)))
        A("s_add_u32 s22, s22, 4096")
        if hh == 1:
            A("s_waitcnt vmcnt(0)")
    A("s_waitcnt vmcnt(0)")
    F = RAW
    for hh in range(4):
        b = ACC + hh * 24
        for et in range(2):
            for dt in range(2):
                r = b + (dt * 2 + et) * 4
                A(cvt(F + hh * 12 + et * 4 + 2 * dt, r, r + 1))
                A(cvt(F + hh * 12 + et * 4 + 2 * dt + 1, r + 2, r + 3))
        for i in range(4):
            A(cvt(F + hh * 12 + 8 + i, b + 16 + 2 * i, b + 16 + 2 * i + 1))
    A("s_nop 1")
    for hh in range(4):
        for mt in range(8):
            for k in range(3):
                A("%s %s, %s, %s, 0" % (MF32, v(ACC + (mt * 3 + k) * 4, 4), v(F + hh * 12 + 4 * k, 4), a((hh * 8 + mt) * 4, 4)))
        A("s_nop 7")
        for mt in range(8):
            d = ACC + mt * 12
            A("v_add_f32 %s, s63, %s" % (v(d + 8), v(d + 8)))
            A("v_rcp_f32 %s, %s" % (v(d + 8), v(d + 8)))
            A("s_nop 0")
            for i in range(8):
                A("v_mul_f32 %s, %s, %s" % (v(d + i), v(d + i), v(d + 8)))
            for i in range(4):
                A(cvt(d + i, d + 2 * i, d + 2 * i + 1))
            A("v_and_b32 %s, %s, v11" % (v(d + 1), v(d + 1)))
            A("v_and_b32 %s, %s, v11" % (v(d + 3), v(d + 3)))
            A("ds_write_b128 v12, %s%s" % (v(d, 4), off((hh * 8 + mt) * 1024)))
        A("s_waitcnt lgkmcnt(0)")
    A("s_barrier")
    event(A, 2)
    bits(A, "v10", [(4, 2, 8 * 896), (0, 4, 4)])
    A("v_add_u32 v11, %d, v10" % (4 * 896))
    bits(A, "v12", [(0, 4, 1792), (4, 2, 16)])
    A("s_mov_b32 s31, %s" % s(S_W))
    P3 = A.newlabel("b_p3")
    A.label(P3)
    A("s_lshl_b32 s44, s31, 7")
    gemm(16, "s[36:39]", lambda pr, j: ("v%d" % (10 + (j >> 2)), (j & 3) * 896 + pr * 64), 28 * 896,
         [(0, 2), (4, 6), (1, 3), (5, 7)], True)
    A("""
    s_mul_i32 s22, s30, %d
    s_lshl_b32 s23, s31, 7
    s_add_u32 s22, s22, s23
    s_add_u32 s22, s22, 896
    """ % (128 * 1792))
    for mt in range(8):
        for pr in range(2):
            t = XB + (mt * 2 + pr) * 4
            for r in range(4):
                A(cvt(t + r, acc(pr, 0, mt) + r, acc(pr, 1, mt) + r))
            A("buffer_store_dwordx4 %s, v12, s[40:43], s22 offen%s" % (v(t, 4), off(pr * 64)))
        A("s_add_u32 s22, s22, %d" % (16 * 1792))
    A("s_add_u32 s31, s31, 4")
    A("s_cmp_lt_u32 s31, 7")
    A("s_waitcnt vmcnt(0)")
    A("s_cbranch_scc1 %s" % P3)
    event(A, 3)
    A("s_endpgm")
```

```python
import sys
from common import *
from chain import *
from k1 import gen_k1
from workers import *

HEADER = open("cdna_kernels/%s.s.ref" % NAME).read().split("; Override launch")[0]


def kdesc(A, name, nvgpr=512, acc=256, nsgpr=102):
    A.raw(".amdhsa_kernel %s" % name)
    A.raw("  .amdhsa_next_free_vgpr %d" % nvgpr)
    A.raw("  .amdhsa_next_free_sgpr %d" % nsgpr)
    A.raw("  .amdhsa_accum_offset %d" % acc)
    A.raw("  .amdhsa_group_segment_fixed_size 0")
    A.raw("  .amdhsa_kernarg_size 104")
    A.raw("  .amdhsa_user_sgpr_count 2")
    A.raw("  .amdhsa_user_sgpr_kernarg_segment_ptr 1")
    A.raw("  .amdhsa_system_sgpr_workgroup_id_x 1")
    A.raw(".end_amdhsa_kernel")


def kstart(A, name):
    A.raw(".globl %s" % name)
    A.raw(".p2align 8")
    A.raw(".type %s,@function" % name)
    A.label(name)


def gen_k2_entry(A):
    A("""
    s_load_dwordx2 s[4:5], s[0:1], 96
    v_lshrrev_b32 v1, 6, v0
    s_getreg_b32 s10, hwreg(HW_REG_XCC_ID)
    s_mov_b32 s6, 0x%x
    s_mov_b32 s7, 0x00020000
    v_readfirstlane_b32 s8, v1
    v_and_b32 v0, 63, v0
    s_and_b32 s10, s10, 7
    s_mov_b32 s19, 0x%x
    s_waitcnt lgkmcnt(0)
    s_and_b32 s5, s5, 0xffff
    s_cmp_lg_u32 s8, 0
    s_cbranch_scc1 .k2_wait_role
    s_mov_b32 s22, s10
    s_mov_b32 s23, 0
    v_mov_b32 v1, 0
    s_mov_b64 exec, 1
    """ % (WS_BYTES, SPIN_MAX))
    A.label(".k2_claim")
    A("""
    s_lshl_b32 s24, s22, 7
    s_add_u32 s24, s24, 0x%x
    v_mov_b32 v2, 1
    buffer_atomic_add v2, v1, s[4:7], s24 offen sc0
    s_waitcnt vmcnt(0)
    v_readfirstlane_b32 s25, v2
    s_cmp_lt_u32 s25, 32
    s_cbranch_scc1 .k2_got
    s_add_u32 s22, s22, 1
    s_and_b32 s22, s22, 7
    s_add_u32 s23, s23, 1
    s_cmp_lt_u32 s23, 8
    s_cbranch_scc1 .k2_claim
    s_mov_b32 s9, 256
    s_branch .k2_pub
    """ % (CNT + C_XCD * 128))
    A.label(".k2_got")
    A("""
    s_lshl_b32 s9, s22, 5
    s_add_u32 s9, s9, s25
    s_cmp_lg_u32 s22, 0
    s_cbranch_scc1 .k2_pub
    s_cmp_lg_u32 s10, 0
    s_cselect_b32 s25, 0x10001, 1
    v_mov_b32 v2, s25
    s_mov_b32 s24, 0x%x
    buffer_atomic_add v2, v1, s[4:7], s24 offen
    """ % (CNT + C_CHAIN * 128))
    A.label(".k2_pub")
    A("""
    v_mov_b32 v2, s9
    ds_write_b32 v1, v2
    s_mov_b64 exec, -1
    s_waitcnt lgkmcnt(0)
    """)
    A.label(".k2_wait_role")
    A("""
    s_barrier
    v_mov_b32 v1, 0
    ds_read_b32 v2, v1
    s_waitcnt lgkmcnt(0)
    v_readfirstlane_b32 s9, v2
    s_barrier
    """)


def build_full(diag=0):
    A = Asm()
    A.raw(HEADER.rstrip("\n"))
    K1 = "fold_kernel"
    K = NAME + "_kernel"
    A.raw("; @launch kernel=%s grid=(256,1,1) block=(256,1,1) lds=32768" % K1)
    A.raw("; @launch kernel=%s grid=(256,1,1) block=(256,1,1) lds=160000" % K)
    A.raw('.amdgcn_target "amdgcn-amd-amdhsa--gfx950"')
    A.raw(".text")
    A.raw("; diag%d" % diag)
    kstart(A, K1)
    gen_k1(A, " sc1" if PARAM.get("k1sc1") else "")
    kstart(A, K)
    gen_k2_entry(A)
    event(A, 0)
    A("""
    s_cmp_lt_u32 s9, 16
    s_cbranch_scc1 .role_score
    s_cmp_lt_u32 s9, 30
    s_cbranch_scc1 .role_out
    s_cmp_eq_u32 s9, 30
    s_cbranch_scc1 .role_pf
    s_cmp_lt_u32 s9, %d
    s_cbranch_scc1 .role_pf2
    s_cmp_lt_u32 s9, %d
    s_cbranch_scc1 .role_aw
    s_cmp_lt_u32 s9, %d
    s_cbranch_scc1 .role_bw
    s_cmp_lt_u32 s9, %d
    s_cbranch_scc1 .role_sh
    """ % (R_AW, R_BW, R_SH, R_SH + 28))
    A.label(".role_none")
    A("s_endpgm")
    A.label(".abort")
    A("""
    s_load_dwordx2 s[4:5], s[0:1], 88
    s_mov_b32 s6, 256
    s_mov_b32 s7, 0x00020000
    s_mov_b64 exec, -1
    v_mov_b32 v1, 0
    v_mov_b32 v2, s9
    v_or_b32 v2, 0xdead0000, v2
    s_waitcnt lgkmcnt(0)
    s_and_b32 s5, s5, 0xffff
    buffer_store_dword v2, v1, s[4:7], 0 offen
    s_endpgm
    """)
    A.label(".role_pf")
    gen_pf(A, ".abort")
    A.label(".role_pf2")
    gen_pf2(A, ".abort")
    A.label(".role_score")
    gen_score(A, ".abort", diag)
    A.label(".role_out")
    gen_out(A, ".abort", diag, wait_u=NAW)
    A.label(".role_sh")
    gen_shadow(A, ".abort")
    A.label(".role_aw")
    gen_aworker(A, ".abort")
    A.label(".role_bw")
    gen_bworker(A, ".abort")
    A.raw('.section .rodata,"a"')
    A.raw(".p2align 6")
    kdesc(A, K1)
    A.raw(".p2align 6")
    kdesc(A, K)
    return A.text()


if __name__ == "__main__":
    diag = 0
    for x in sys.argv[2:]:
        k, val = x.split("=")
        if k == "diag":
            diag = int(val)
        elif k == "ev":
            EV["on"] = int(val)
        else:
            PARAM[k] = int(val)
    out = sys.argv[1]
    open(out, "w").write(build_full(diag))
```

```python
from common import *

SRD = "s[4:7]"
S_W, S_ROLE, S_XCC, S_STEP = 8, 9, 10, 11
S_MEM, S_MEM2, S_P, S_X, S_X2, S_Y, S_SLOW, S_SPIN = 12, 13, 14, 15, 16, 17, 18, 19
S_MEMN, S_XL = 20, 21
S_KB = 32
SPIN_MAX = 1 << 20

SMF = "v_smfmac_f32_16x16x64_bf16"
SMF32 = "v_smfmac_f32_16x16x32_bf16"
MF32 = "v_mfma_f32_16x16x32_bf16"
MF16 = "v_mfma_f32_16x16x16_bf16"

PARAM = dict(sc_sleep=8, oc_sleep=8, oc_msleep=1, sc_sets=2, oc_sets=2, spread=1, ymode=0, ahead=0)


def ld(dst, voff, soff, off=0, flags="sc1"):
    o = " offset:%d" % off if off else ""
    return "buffer_load_dwordx4 %s, %s, %s, %s offen%s %s" % (dst, voff, SRD, soff, o, flags)


def chk_ops(chk, regs):
    out = []
    regs = list(regs)
    out.append("v_max3_u32 %s, %s, %s, %s" % (v(chk), v(regs[0]), v(regs[1]), v(regs[2])))
    regs = regs[3:]
    while len(regs) >= 2:
        out.append("v_max3_u32 %s, %s, %s, %s" % (v(chk), v(chk), v(regs[0]), v(regs[1])))
        regs = regs[2:]
    if regs:
        out.append("v_max_u32 %s, %s, %s" % (v(chk), v(chk), v(regs[0])))
    return out


def spin_guard(A, abort):
    A("s_sub_u32 %s, %s, 1" % (s(S_SPIN), s(S_SPIN)))
    A("s_cbranch_scc1 %s" % abort)


class Stamps:
    def __init__(self, lvl):
        self.lvl = lvl

    def st(self, A, i):
        if self.lvl == 4:
            A("s_memrealtime s[%d:%d]" % (60 + 2 * i, 61 + 2 * i))
        elif self.lvl >= 2 or (self.lvl == 1 and i == 0):
            A("s_memtime s[%d:%d]" % (60 + 2 * i, 61 + 2 * i))

    LB = 131072

    def flush(self, A, n, tmp):
        if not self.lvl:
            return
        A("s_lshl_b32 s58, %s, 12" % s(S_W))
        A("s_lshl_b32 s59, %s, 6" % s(S_STEP))
        A("s_add_u32 s58, s58, s59")
        A("s_add_u32 s58, s58, %d" % self.LB)
        A("v_mbcnt_lo_u32_b32 %s, -1, 0" % v(tmp + 1))
        A("v_lshl_add_u32 %s, %s, 2, s58" % (v(tmp + 1), v(tmp + 1)))
        A("s_waitcnt lgkmcnt(0)")
        for i in range(n):
            if self.lvl == 1 and i not in (0, 4):
                continue
            A("v_writelane_b32 %s, s%d, %d" % (v(tmp), 60 + 2 * i, i))
        A("s_mov_b64 exec, 0xffff")
        A("ds_write_b32 %s, %s" % (v(tmp + 1), v(tmp)))
        A("s_mov_b64 exec, -1")

    def dump(self, A):
        if not self.lvl:
            return
        A("s_lshl_b32 s58, %s, 12" % s(S_W))
        A("s_add_u32 s59, s58, %d" % self.LB)
        A("v_mbcnt_lo_u32_b32 v0, -1, 0")
        A("v_mbcnt_hi_u32_b32 v0, -1, v0")
        A("v_lshlrev_b32 v0, 4, v0")
        A("v_add_u32 v1, s59, v0")
        for i in range(4):
            A("ds_read_b128 %s, v1 offset:%d" % (v(4 + 4 * i, 4), i * 1024))
        A("s_lshl_b32 s59, %s, 14" % s(S_ROLE))
        A("s_add_u32 s58, s58, s59")
        A("s_add_u32 s58, s58, 0x%x" % DBG)
        A("s_waitcnt lgkmcnt(0)")
        for i in range(4):
            A("buffer_store_dwordx4 %s, v0, %s, s58 offen offset:%d" % (v(4 + 4 * i, 4), SRD, i * 1024))


class Lg:
    def __init__(self):
        self.n = 0
        self.done = 0
        self.tag = {}

    def issue(self, op, tag):
        self.n += 1
        self.tag[tag] = self.n
        return op

    def wait(self, tag):
        if self.tag[tag] <= self.done:
            return ""
        self.done = self.tag[tag]
        k = self.n - self.tag[tag]
        assert k <= 15
        return "s_waitcnt lgkmcnt(%d)" % k


def wait_chain_mode(A, t0, abort):
    L = A.newlabel("cm")
    A("v_mov_b32 %s, 0" % v(t0))
    A("s_mov_b32 s22, 0x%x" % (CNT + C_CHAIN * 128))
    A.label(L)
    spin_guard(A, abort)
    A("buffer_load_dword %s, %s, %s, s22 offen sc1" % (v(t0 + 1), v(t0), SRD))
    A("s_waitcnt vmcnt(0)")
    A("v_readfirstlane_b32 s23, %s" % v(t0 + 1))
    A("s_and_b32 s24, s23, 0xffff")
    A("s_cmp_lt_u32 s24, 32")
    A("s_cbranch_scc1 %s" % L)
    A("s_lshr_b32 %s, s23, 16" % s(S_SLOW))


def wait_counter(A, t0, slot, target, abort):
    L = A.newlabel("wc")
    A("v_mov_b32 %s, 0" % v(t0))
    A("s_mov_b32 s22, 0x%x" % (CNT + slot * 128))
    A.label(L)
    spin_guard(A, abort)
    A("buffer_load_dword %s, %s, %s, s22 offen sc1" % (v(t0 + 1), v(t0), SRD))
    A("s_waitcnt vmcnt(0)")
    A("v_readfirstlane_b32 s23, %s" % v(t0 + 1))
    A("s_cmp_lt_u32 s23, %d" % target)
    A("s_cbranch_scc1 %s" % L)


def poll(A, loads, regs, CHK, abort, sets=2, sleep=0):
    L = A.newlabel("pm")
    G = A.newlabel("pmg")
    if sets == 2:
        for l in loads:
            A(l)
        A("s_nop 15")
        A("s_nop 7")
    A.label(L)
    for l in loads:
        A(l)
    A("s_waitcnt vmcnt(%d)" % (len(loads) if sets == 2 else 0))
    for i in chk_ops(CHK, regs):
        A(i)
    A("v_cmp_eq_u32 vcc, -1, %s" % v(CHK))
    A("s_cbranch_vccz %s" % G)
    spin_guard(A, abort)
    if sleep:
        A("s_sleep %d" % sleep)
    A("s_branch %s" % L)
    A.label(G)


def slot_consts(A, VLP, A1, memi):
    A("v_lshlrev_b32 v9, 4, v0")
    A("s_lshl_b32 s22, %s, 1" % s(S_W))
    for j in range(7):
        A("s_add_u32 s23, s22, %d" % j)
        A("s_cmp_ge_u32 s23, 7")
        A("s_cselect_b32 s24, 7, 0")
        A("s_sub_u32 s23, s23, s24")
        A("s_lshl_b32 s%d, s23, 11" % (S_KB + j))
    A("s_lshl_b32 s22, %s, 11" % s(S_W))
    A("v_add_u32 %s, s22, v9" % v(VLP))
    for i in range(3):
        A("s_lshr_b32 s23, s%d, 1" % (S_KB + 2 + 2 * i))
        A("s_add_u32 s23, s23, %d" % memi)
        A("v_add_u32 %s, s23, v9" % v(A1 + i))
    A("s_mov_b32 %s, 0x%x" % (s(S_MEM), MEM))
    A("s_lshr_b32 s23, s%d, 1" % (S_KB + 1))
    A("s_sub_u32 s23, s23, s22")
    A("s_add_u32 %s, s23, 0x%x" % (s(S_MEM2), MEM))


def mem_reads(lg, MA, A1):
    out = []
    for j in range(2, 7):
        i = (j - 2) >> 1
        out.append(lg.issue("ds_read_b128 %s, %s offset:%d" % (v(MA + 4 * j, 4), v(A1 + i), (j & 1) * 1024), "m%d" % j))
    return out


SC_MEMI, SC_XL = 8192, 16384
SRS = 56


def idx_const(A, IDX):
    A("""
    v_and_b32 v1, 2, v0
    v_mov_b32 v2, 0x4444
    v_mov_b32 v3, 0xeeee
    v_cmp_eq_u32 vcc, 0, v1
    s_nop 1
    v_cndmask_b32 %s, v3, v2, vcc
    """ % v(IDX))


def pkadd(d, a_, b_):
    return "v_pk_add_f32 %s, %s, %s" % (v(d, 2), v(a_, 2), v(b_, 2))


def cvt(d, a_, b_):
    return "v_cvt_pk_bf16_f32 %s, %s, %s" % (v(d), v(a_), v(b_))


PARAM.update(dict(sc_nd=2, oc_nd=2, sc_gap=24, oc_gap=24, pfa=3, upf=0, mask=0, fillz=1, dsp=5, sync=0, nobar=1, sc_dly=4, sc_f2=2, oc_f=3, nu1=4, oc_sleep=0, usp=4, sc_sleep=4))


PF_FL = ["sc1", "", "nt"]
PARAM.update(dict(upos=31, pffl=0, ufl=0, d0=8, dsp=3, upf=0, pfa=0, flag=1, sc_fpos=2, sc_sleep=0, sc_nfl=3, sc_fgap=10, sc_fd=0,
                  oc_nfl=3, oc_fgap=10, oc_fd=0, oc_mfd=24, u0=0, usp1=2, sc_sets=1, oc_sets=1))
MEM_FL = 12288
P_FL = 10240
S_NOFL = 50


def flag_wait(A, F, VF, sbase, abort, nfl, gap, dly):
    if not PARAM["flag"]:
        return
    L = A.newlabel("fw")
    G = A.newlabel("fwg")
    l = "buffer_load_dword %s, %s, %s, %s offen sc1" % (v(F), v(VF), SRD, sbase)
    A("s_cmp_lg_u32 %s, 0" % s(S_NOFL))
    A("s_cbranch_scc1 %s" % G)
    for k in range(nfl):
        A(l)
        nops(A, gap)
    A.label(L)
    A(l)
    spin_guard(A, abort)
    A("s_waitcnt vmcnt(%d)" % nfl)
    A("v_cmp_eq_u32 vcc, -1, %s" % v(F))
    A("s_cbranch_vccnz %s" % L)
    nops(A, dly)
    A.label(G)


def fadd(d, a_, b_):
    return "v_add_f32 %s, %s, %s" % (v(d), v(a_), v(b_))


def nops(A, n):
    while n > 0:
        k = min(n, 16)
        A("s_nop %d" % (k - 1))
        n -= k


def spec_poll(A, loads, chk, spec, zero, abort, sets, gap, nd):
    L = A.newlabel("sp")
    for k in range(sets - 1):
        for l in loads:
            A(l)
        nops(A, gap)
    A.label(L)
    for l in loads:
        A(l)
    spin_guard(A, abort)
    if PARAM["mask"]:
        A("s_mov_b64 exec, -1")
    for i in range(max(nd, len(zero))):
        A("v_mov_b64 %s, 0" % v(zero[i % len(zero)], 2))
    A("s_waitcnt vmcnt(%d)" % (len(loads) * (sets - 1)))
    for o in chk:
        A(o)
    for o in spec:
        A(o)
    if PARAM["mask"]:
        A("s_mov_b64 exec, vcc")
    A("s_cbranch_vccnz %s" % L)
    if PARAM["mask"]:
        A("s_mov_b64 exec, -1")


def gen_score(A, abort, diag=0, nsteps=63):
    MA, T, MH0, XR, SAB = 0, 28, 56, 64, 96
    BS, BS3, IDX, VLP, VH0, VH1, VP, VLW, VLR, CHK = 108, 110, 112, 113, 114, 115, 116, 117, 118, 119
    MH1 = MA
    SA = [SAB, SAB + 4, SAB + 8]
    S_A1, S_UP, S_UPS, S_PF, S_FB = 40, 43, 44, 46, 47
    st = Stamps(diag)

    def W(tau, j):
        i = (tau * 7 + j) * 8
        return a(i, 8) if i < 256 else v(120 + i - 256, 8)

    def Wh(tau, j, hf):
        i = (tau * 14 + 2 * j + hf) * 4
        return a(i, 4) if i < 256 else v(120 + i - 256, 4)

    slot_consts(A, VLP, 10, SC_MEMI)
    for i in range(3):
        A("s_lshr_b32 s23, s%d, 1" % (S_KB + 2 + 2 * i))
        A("s_add_u32 s23, s23, %d" % SC_MEMI)
        A("s_sub_u32 s%d, s23, s22" % (S_A1 + i))
    A("""
    s_mul_i32 s22, %s, %d
    s_mul_i32 s23, %s, %d
    s_add_u32 s22, s22, s23
    s_add_u32 s22, s22, 0x%x
    """ % (s(S_ROLE), 28 * 14336, s(S_W), 7 * 14336, AW))
    n = 0
    for tau in range(7):
        for j in range(7):
            A("s_add_u32 s23, s22, s%d" % (S_KB + j))
            for hf in range(2):
                A(ld(Wh(tau, j, hf), "v9", "s23", hf * 1024, "nt"))
                n += 1
                if n % 16 == 0 and n >= 48:
                    A("s_waitcnt vmcnt(40)")
        A("s_add_u32 s22, s22, 14336")
    idx_const(A, IDX)
    A("""
    v_bfe_u32 v1, v0, 2, 2
    v_bfe_u32 v2, v0, 4, 2
    v_xor_b32 v1, v1, v2
    v_and_b32 v2, 3, v0
    v_lshl_or_b32 v3, v1, 2, v2
    v_mov_b32 v4, 0x3f80
    v_mov_b32 v5, 0x3f800000
    """)
    for r in range(2):
        A("""
        v_cmp_eq_u32 vcc, %d, v3
        v_cmp_eq_u32 s[22:23], %d, v3
        s_nop 1
        v_cndmask_b32 v6, 0, v4, vcc
        v_cndmask_b32 v7, 0, v5, s[22:23]
        v_or_b32 %s, v6, v7
        """ % (2 * r, 2 * r + 1, v(BS + r)))
    A("""
    s_and_b32 s24, {W}, 1
    s_cmp_eq_u32 s24, 1
    s_cselect_b64 s[22:23], -1, 0
    v_cndmask_b32 {BS3}, {BS0}, {BS1}, s[22:23]
    v_mov_b32 {BS3b}, 0
    s_lshr_b32 s25, {W}, 1
    s_mul_i32 s25, s25, 28
    s_mul_i32 s26, s24, 12
    s_add_u32 s25, s25, s26
    s_lshl_b32 s25, s25, 7
    s_add_u32 s25, s25, {MEMI}
    s_sub_u32 s26, 16, s26
    s_lshl_b32 s26, s26, 7
    """.format(W=s(S_W), MEMI=SC_MEMI, BS3=v(BS3), BS3b=v(BS3 + 1), BS0=v(BS), BS1=v(BS + 1)))
    bits(A, v(VH0), [(5, 1, 256), (1, 2, 64), (4, 1, 32), (0, 1, 16)], "s25")
    A("s_add_u32 s25, s25, 1024")
    bits(A, v(VH1), [(1, 2, 64), (5, 1, 32), (0, 1, 16)], "s25")
    A("v_bfe_u32 v1, v0, 4, 1")
    A("v_mad_u32_u24 %s, v1, s26, %s" % (v(VH1), v(VH1)))
    A("""
    s_lshl_b32 s22, {R}, 9
    s_lshl_b32 s23, {W}, 6
    s_add_u32 s22, s22, s23
    s_lshr_b32 s23, {R}, 2
    s_lshl_b32 s23, s23, 9
    s_lshl_b32 s24, {W}, 5
    s_add_u32 s23, s23, s24
    s_and_b32 s24, {R}, 1
    s_lshl_b32 s24, s24, 4
    s_add_u32 s23, s23, s24
    s_and_b32 s24, {R}, 2
    s_lshl_b32 s24, s24, 1
    s_add_u32 s23, s23, s24
    s_add_u32 s23, s23, 8192
    s_mul_i32 s24, {W}, {RS2}
    s_add_u32 s25, s24, 64
    v_and_b32 v2, 16, v0
    v_cmp_ne_u32 vcc, 0, v2
    """.format(R=s(S_ROLE), W=s(S_W), RS2=2 * SRS * 4))
    bits(A, "v2", [(3, 1, 256), (2, 1, 32), (5, 1, 16), (0, 2, 4)], "s22")
    bits(A, "v3", [(0, 2, 128), (5, 1, 8)], "s23")
    A("v_cndmask_b32 %s, v2, v3, vcc" % v(VP))
    bits(A, "v2", [(5, 1, SRS * 4), (0, 1, 64), (3, 1, 32), (1, 1, 16), (2, 1, 8)], "s25")
    bits(A, "v3", [(5, 1, SRS * 4), (0, 2, 8)], "s24")
    A("v_cndmask_b32 %s, v2, v3, vcc" % v(VLR))
    A("s_mul_i32 s24, %s, %d" % (s(S_W), SRS * 32))
    bits(A, v(VLW), [(4, 2, 2 * SRS * 4), (0, 4, 4)], "s24")
    A("s_mov_b32 %s, 0" % s(S_STEP))
    A("s_mov_b32 %s, 0x%x" % (s(S_P), PM))
    A("s_mul_i32 %s, %s, 6144" % (s(S_X), s(S_W)))
    A("s_add_u32 %s, %s, 0x%x" % (s(S_X), s(S_X), XH))
    A("s_lshl_b32 %s, %s, 11" % (s(S_XL), s(S_W)))
    A("s_add_u32 %s, %s, %d" % (s(S_XL), s(S_XL), SC_XL))
    A("""
    s_lshl_b32 s22, {R}, 15
    s_add_u32 {UP}, s22, 0x{UB:x}
    s_mov_b32 {UPS}, {US}
    s_cmp_ge_u32 {R}, 14
    s_cselect_b32 {UP}, 0x{XH:x}, {UP}
    s_cselect_b32 {UPS}, {XS}, {UPS}
    s_cmp_eq_u32 {R}, 15
    s_cselect_b32 {UP}, 0x{XH2:x}, {UP}
    v_lshlrev_b32 {C}, 2, {VLP}
    s_lshl_b32 s22, {R}, 2
    s_mul_i32 s23, {W}, 65408
    s_add_u32 {PF}, s22, 0x{PMF:x}
    s_sub_u32 {PF}, {PF}, s23
    s_lshl_b32 {FB}, {W}, 6
    s_lshl_b32 s22, {R}, 8
    s_add_u32 {FB}, {FB}, s22
    s_mov_b32 {NOFL}, 1
    """.format(R=s(S_ROLE), W=s(S_W), UP=s(S_UP), UPS=s(S_UPS), UB=UB + 4096, US=U_S, XH=XH + XH_S, XH2=XH + XH_S + 4096, XS=XH_S,
               C=v(CHK), VLP=v(VLP), PF=s(S_PF), PMF=PM + P_FL, FB=s(S_FB), NOFL=s(S_NOFL)))
    if PARAM["upf"]:
        wait_counter(A, 1, C_U, NAW, abort)
    for i in range(PARAM["pfa"]):
        A("buffer_load_dword v5, %s, %s, %s offen %s" % (v(CHK), SRD, s(S_UP), PF_FL[PARAM["pffl"]]))
        A("s_add_u32 %s, %s, %s" % (s(S_UP), s(S_UP), s(S_UPS)))

    def xh_dma():
        out = []
        for k in range(4):
            out.append(["s_add_u32 m0, %s, %d" % (s(S_XL), k * 8192),
                        "s_add_u32 s22, %s, %d" % (s(S_X), k * 2048),
                        "buffer_load_dwordx4 %s, %s, s22 offen lds" % (v(VLP), SRD),
                        "buffer_load_dwordx4 %s, %s, s22 offen offset:1024 lds" % (v(VLP), SRD)])
        return out

    for g_ in xh_dma():
        for o in g_:
            A(o)
    wait_chain_mode(A, 1, abort)
    event(A, 1)
    for i in range(28):
        A("v_mov_b32 %s, 0" % v(T + i))
    A("v_mov_b32 v2, -1")
    A("v_mov_b32 v3, -1")
    for k in range(4):
        A("ds_write_b64 %s, v[2:3] offset:%d" % (v(VLR), k * SRS * 32))
    A("s_movk_i32 s45, 2000")

    def M(tau, j):
        return "%s %s, %s, %s, %s" % (SMF, v(T + 4 * tau, 4), v(MA + 4 * j, 4), W(tau, j), v(IDX))

    def TPr(tau):
        return T + 4 if tau == 6 else T + 8 * (tau >> 1) + 2 + (tau & 1)
    D = [T + 4, T + 12, T + 20, T + 24]
    DP = [T, T + 8]

    def c(tau):
        t = T + 4 * tau
        return [fadd(t, t, t + 2), fadd(t + 1, t + 1, t + 3), cvt(TPr(tau), t, t + 1)]

    def d(p):
        dst = DP[p >> 1] + 2 * (p & 1)
        return [cvt(dst, D[p], D[p] + 1), cvt(dst + 1, D[p] + 2, D[p] + 3)]

    def X(p):
        return "%s %s, %s, %s, 0" % (MF16, v(D[p], 4), v(TPr(2 * p), 2), v(BS if p < 3 else BS3, 2))

    def S(b, u):
        bop = v((MH0, MH1)[b], 8) if u == 0 else v(XR + (b * 2 + u - 1) * 8, 8)
        return "%s %s, %s, %s, %s" % (SMF, v(SA[u], 4), v(DP[b], 4), bop, v(IDX))

    LOOP = A.newlabel("sc_loop")
    A.label(LOOP)
    for i in range(12):
        A("v_mov_b32 %s, 0" % v(SAB + i))
    for i in range(3):
        A("v_add_u32 %s, s%d, %s" % (v(MA + 8 + 8 * i), S_A1 + i, v(VLP)))
    A("s_add_u32 %s, %s, %d" % (s(S_X), s(S_X), XH_S))
    A("s_waitcnt vmcnt(0)")
    for i in range(8):
        A("ds_read_b128 %s, %s offset:%d" % (v(XR + 4 * i, 4), v(VLP), SC_XL + (i >> 1) * 8192 + (i & 1) * 1024))
    st.st(A, 0)
    if diag == 5:
        A("s_mov_b32 s86, %s" % s(S_SPIN))
    A("v_bfe_u32 %s, %s, 4, 4" % (v(MH0), v(VLP)))
    A("v_lshl_add_u32 %s, %s, 2, %s" % (v(MH0), v(MH0), s(S_FB)))
    A("s_add_u32 s22, %s, %d" % (s(S_P), (MEM_FL - 16384) & 0xffffffff))
    flag_wait(A, MH0 + 1, MH0, "s22", abort, PARAM["sc_nfl"], PARAM["sc_fgap"], PARAM["sc_fd"])
    if diag == 5:
        A("s_mov_b32 s78, %s" % s(S_SPIN))
        A("s_memtime s[84:85]")
    spec_poll(A, [ld(v(MA, 4), v(VLP), s(S_MEM)), ld(v(MA + 4, 4), v(VLP), s(S_MEM2))],
              ["v_max_u32 %s, %s, %s" % (v(CHK), v(MA), v(MA + 4)), "v_cmp_eq_u32 vcc, -1, %s" % v(CHK)],
              [M(0, 0)], [T, T + 2], abort, PARAM["sc_sets"], PARAM["sc_gap"], PARAM["sc_nd"])
    st.st(A, 1)

    mf = [M(t, 0) for t in range(7)] + [M(t, 1) for t in range(7)]
    for t in range(7):
        for j in range(2, 7):
            mf.append(M(t, j))
        if t in (2, 4):
            mf.append(X((t >> 1) - 1))
    mf += [S(0, 1), X(2), S(0, 0), X(3), S(0, 2)]
    assert len(mf) == 56
    nv = {i: [] for i in range(56)}
    va = {i: [] for i in range(56)}

    def rd(j):
        return "ds_read_b128 %s, %s%s" % (v(MA + 4 * j, 4), v(MA + 8 * (j >> 1)), " offset:1024" if j & 1 else "")
    nv[0] += ["ds_write_b128 %s, %s offset:%d" % (v(VLP), v(MA, 4), SC_MEMI)]
    nv[1] += ["ds_write_b128 %s, %s offset:%d" % (v(VLP), v(MA + 4, 4), SC_MEMI + 1024)]
    nv[5] += ["s_waitcnt lgkmcnt(0)", "s_barrier", rd(3)]
    nv[6] += [rd(2), rd(5), rd(4)]
    nv[7] += [rd(6), "ds_read_b128 %s, %s" % (v(MH0, 4), v(VH0)), "ds_read_b128 %s, %s offset:512" % (v(MH0 + 4, 4), v(VH0))]
    nv[13] += ["s_waitcnt lgkmcnt(0)"]
    if PARAM["upf"]:
        va[4] += ["v_lshlrev_b32 %s, 2, %s" % (v(CHK), v(VLP))]
    dpos = []
    for k, g_ in enumerate(xh_dma()):
        p0 = PARAM["d0"] + 2 * PARAM["dsp"] * k
        nv[p0] += g_[:3]
        nv[p0 + PARAM["dsp"]] += g_[3:]
        dpos += [p0, p0 + PARAM["dsp"]]
    if PARAM["upf"]:
        p0 = PARAM["upos"]
        nv[p0] += ["buffer_load_dword %s, %s, %s, %s offen %s" % (v(CHK), v(CHK), SRD, s(S_UP), PF_FL[PARAM["pffl"]]),
                   "s_add_u32 %s, %s, %s" % (s(S_UP), s(S_UP), s(S_UPS))]
        dpos.append(p0)
    p0 = 19
    assert p0 not in dpos
    nv[p0] += ["s_waitcnt vmcnt(%d)" % len([x for x in dpos if x < p0]),
               "ds_read_b128 %s, %s" % (v(MH1, 4), v(VH1)), "ds_read_b128 %s, %s offset:256" % (v(MH1 + 4, 4), v(VH1))]
    nv[29] += ["s_waitcnt lgkmcnt(0)"]
    nv[39] += ["s_add_u32 %s, %s, %d" % (s(S_MEM), s(S_MEM), MEM_S),
               "s_add_u32 %s, %s, %d" % (s(S_MEM2), s(S_MEM2), MEM_S)]
    if PARAM["sync"]:
        nv[PARAM["sync"]] += ["s_barrier"]
    for lst, p0 in [(c(0), 20), (c(1), 25), (c(2), 30), (d(0), 33), (["v_mov_b32 %s, 0" % v(T + 5)], 35), (c(3), 36),
                    (c(4), 41), (d(1), 44), (c(5), 47)]:
        for k, o in enumerate(lst):
            va[p0 + k].append(o)
    va[52] += c(6)
    va[54] += d(2)
    va[53] += ["v_lshlrev_b32 v8, 5, %s" % v(VLP)]
    nv[40] += ["s_mov_b32 %s, %s" % (s(S_NOFL), s(S_SLOW))]
    k5 = [0]

    def st5():
        if diag == 5:
            A("s_memtime s[%d:%d]" % (70 + 2 * k5[0], 71 + 2 * k5[0]))
            k5[0] += 1
    for i in range(56):
        if i:
            A(mf[i])
        for o in nv[i]:
            A(o)
        if i in (15, 32, 50):
            st5()
        for o in va[i]:
            A(o)
    def fst(pos):
        if PARAM["flag"] and PARAM["sc_fpos"] == pos:
            A("s_mov_b64 exec, 15")
            A("buffer_store_dword %s, v8, %s, %s offen" % (v(IDX), SRD, s(S_PF)))
            A("s_mov_b64 exec, -1")
            return True
        return False
    A("s_nop 3")
    for o in d(3):
        A(o)
    A("s_nop 1")
    for u in [1, 0, 2]:
        A(S(1, u))
    fst(0)
    for u in [1, 0, 2]:
        r = SA[u]
        A(fadd(r, r, r + 2))
        A(fadd(r + 1, r + 1, r + 3))
        A("ds_write2_b32 %s, %s, %s offset0:%d offset1:%d" % (v(VLW), v(r), v(r + 1), 16 * u, SRS + 16 * u))
    st.st(A, 2)
    fst(1)
    R = MH0
    zr = list(range(T, T + 28))

    def zero(n=1):
        for i in range(n):
            A("v_mov_b32 %s, 0" % v(zr.pop(0)))
    RT = A.newlabel("sc_rt")
    if PARAM["nobar"]:
        zero(PARAM["sc_dly"])
        A.label(RT)
    else:
        for i in range(3):
            A("s_nop 2")
            zero()
        A("s_waitcnt lgkmcnt(0)")
        A("s_barrier")
    for k in range(4):
        A("ds_read_b64 %s, %s offset:%d" % (v(R + 2 * k, 2), v(VLR), k * SRS * 32))
        zero()
    fst(2)
    for i in range(PARAM["sc_f2"]):
        A("s_nop 1")
        zero()
    A("s_waitcnt lgkmcnt(2)")
    A(pkadd(R, R, R + 2))
    A("s_waitcnt lgkmcnt(0)")
    A(pkadd(R + 4, R + 4, R + 6))
    A(pkadd(R, R, R + 4))
    m, m2 = R + 2, R + 3
    st5()
    A("v_max_f32 %s, %s, %s" % (v(m), v(R), v(R + 1)))
    RF = A.newlabel("sc_rf")
    RB = A.newlabel("sc_rb")
    for ror in [8, 4, 2, 1]:
        if PARAM["nobar"] and ror == 8:
            A("v_cmp_u_f32 vcc, %s, %s" % (v(R), v(R + 1)))
            A("s_cmp_eq_u32 %s, 0" % s(S_SLOW))
        elif PARAM["nobar"] and ror == 2:
            A("s_cbranch_vccnz %s" % RF)
            A.label(RB)
            A("s_nop 0")
        elif ror == 4:
            A("s_cmp_eq_u32 %s, 0" % s(S_SLOW))
            if not fst(3):
                A("s_nop 0")
        else:
            A("s_nop 1")
        A("v_max_f32_dpp %s, %s, %s row_ror:%d row_mask:0xf bank_mask:0xf" % (v(m), v(m), v(m), ror))
    A("v_mov_b32 %s, %s" % (v(m2), v(m)))
    A("s_nop 1")
    A("v_permlane16_swap_b32 %s, %s" % (v(m), v(m2)))
    A("v_max_f32 %s, %s, %s" % (v(m), v(m), v(m2)))
    A("v_sub_f32 %s, %s, %s" % (v(R), v(R), v(m)))
    A("v_sub_f32 %s, %s, %s" % (v(R + 1), v(R + 1), v(m)))
    A("v_exp_f32 %s, %s" % (v(R), v(R)))
    A("v_exp_f32 %s, %s" % (v(R + 1), v(R + 1)))
    if not fst(4):
        A("s_nop 0")
    A("v_add_f32 %s, %s, %s" % (v(m), v(R), v(R + 1)))
    for ror in [8, 4, 2, 1]:
        A("s_nop 1")
        A("v_add_f32_dpp %s, %s, %s row_ror:%d row_mask:0x%x bank_mask:0xf" % (v(m), v(m), v(m), ror, 0x5 if ror >= 4 else 0xf))
    A("v_mov_b32 %s, %s" % (v(m2), v(m)))
    A("s_nop 1")
    A("v_permlane16_swap_b32 %s, %s" % (v(m), v(m2)))
    A("v_add_f32 %s, %s, %s" % (v(m), v(m), v(m2)))
    A("v_rcp_f32 %s, %s" % (v(m), v(m)))
    A("s_nop 0")
    A("v_mul_f32 %s, %s, %s" % (v(R), v(R), v(m)))
    A("v_mul_f32 %s, %s, %s" % (v(R + 1), v(R + 1), v(m)))
    A("v_cvt_pk_bf16_f32 %s, %s, %s" % (v(R), v(R), v(R + 1)))
    A("v_min_u32 %s, -2, %s" % (v(R), v(R)))
    tails = []
    SL = A.newlabel("slowp")
    BK = A.newlabel("backp")
    A("s_cbranch_scc0 %s" % SL)
    A("buffer_store_dword %s, %s, %s, %s offen" % (v(R), v(VP), SRD, s(S_P)))
    A.label(BK)
    st.st(A, 3)
    if diag == 5:
        A("s_mov_b32 s80, %s" % s(S_SPIN))
    if diag:
        A("s_memrealtime s[68:69]")
    st.flush(A, 14, R + 4)

    def tail_slow():
        A.label(SL)
        A("buffer_store_dword %s, %s, %s, %s offen sc1" % (v(R), v(VP), SRD, s(S_P)))
        A("s_branch %s" % BK)
    tails.append(tail_slow)

    def tail_retry():
        A.label(RF)
        A("s_sub_u32 s45, s45, 1")
        A("s_cbranch_scc0 %s" % RT)
        A("s_cmp_eq_u32 %s, 0" % s(S_SLOW))
        A("s_branch %s" % RB)
    if PARAM["nobar"]:
        tails.append(tail_retry)
        A("v_mov_b32 %s, -1" % v(R + 2))
        A("v_mov_b32 %s, -1" % v(R + 3))
        for k in range(4):
            A("ds_write_b64 %s, %s offset:%d" % (v(VLR), v(R + 2, 2), k * SRS * 32))
        if diag == 5:
            A("s_mov_b32 s82, s45")
        A("s_movk_i32 s45, 2000")
    zero(len(zr))
    A("s_add_u32 %s, %s, 16384" % (s(S_P), s(S_P)))
    A("s_add_u32 %s, %s, 16384" % (s(S_PF), s(S_PF)))
    A("s_add_u32 %s, %s, 1" % (s(S_STEP), s(S_STEP)))
    if PARAM["sc_sleep"]:
        A("s_sleep %d" % PARAM["sc_sleep"])
    if PARAM["upf"]:
        NW = A.newlabel("sc_nw")
        A("s_cmp_lg_u32 %s, %d" % (s(S_STEP), 33 - PARAM["pfa"]))
        A("s_cbranch_scc1 %s" % NW)
        wait_counter(A, R, C_U + 1, NAW, abort)
        A.label(NW)
    A("s_cmp_lt_u32 %s, %d" % (s(S_STEP), nsteps))
    A("s_cbranch_scc1 %s" % LOOP)
    A("s_waitcnt vmcnt(0)")
    st.dump(A)
    event(A, 3)
    A("s_endpgm")
    for t in tails:
        t()


RED2 = 0
OC_MEMI = 4096
OC_WL = 12288


def gen_out(A, abort, diag=0, nsteps=63, wait_u=False):
    MA, YA, YP, U, P, D, WS = 0, 28, 60, 76, 108, 120, 128
    IDX, VLP, VPA, VPB, VLW, VLR, VST, CHK, VWL, R, A1 = 160, 161, 162, 163, 164, 165, 166, 167, 168, 169, 172
    Q, Z, VX = 68, 0, 72
    VFM, VFP, VFS = 165, 171, 175
    st = Stamps(diag)

    def W(i, j):
        x = (i * 7 + j) * 8
        return a(x, 8) if x < 256 else v(176 + x - 256, 8)

    def Wh(i, j, hf):
        x = (i * 14 + 2 * j + hf) * 4
        return a(x, 4) if x < 256 else v(176 + x - 256, 4)

    slot_consts(A, VLP, A1, OC_MEMI)
    A("""
    s_sub_u32 s30, %s, 16
    s_mul_i32 s22, %s, %d
    s_mul_i32 s23, s30, %d
    s_add_u32 s22, s22, s23
    s_add_u32 s22, s22, 0x%x
    s_mul_i32 s24, %s, 28672
    s_add_u32 s24, s24, %d
    """ % (s(S_ROLE), s(S_W), 4 * 28 * 14336, 2 * 14336, VW, s(S_W), OC_WL))
    n = 0
    for hh in range(4):
        for ct in range(2):
            A("s_add_u32 s25, s22, %d" % (hh * 28 * 14336 + ct * 14336))
            for j in range(7):
                if hh == 3:
                    A("s_add_u32 m0, s24, %d" % (ct * 14336 + j * 2048))
                A("s_add_u32 s23, s25, s%d" % (S_KB + j))
                for hf in range(2):
                    if hh < 3:
                        A(ld(Wh(2 * hh + ct, j, hf), "v9", "s23", hf * 1024, "nt"))
                    else:
                        o = " offset:1024" if hf else ""
                        A("buffer_load_dwordx4 v9, %s, s23 offen%s nt lds" % (SRD, o))
                    n += 1
                    if n % 16 == 0 and n >= 48:
                        A("s_waitcnt vmcnt(40)")
    idx_const(A, IDX)
    A("""
    s_lshl_b32 s24, {W}, 9
    s_add_u32 s24, s24, 8192
    v_lshl_add_u32 {VPB}, v0, 3, s24
    s_lshl_b32 s24, {W}, 10
    s_add_u32 s24, s24, {RED2}
    v_add_u32 {VLW}, s24, v9
    s_mul_i32 s24, {W}, 28672
    s_add_u32 s24, s24, {OC_WL}
    v_add_u32 {VWL}, s24, v9
    s_lshr_b32 s25, s30, 1
    s_lshl_b32 s25, s25, 10
    s_and_b32 s26, s30, 1
    s_lshl_b32 s26, s26, 5
    s_add_u32 s25, s25, s26
    """.format(W=s(S_W), VPB=v(VPB), VLW=v(VLW), VWL=v(VWL), RED2=RED2, OC_WL=OC_WL))
    for k in range(3):
        A("v_xor_b32 %s, %d, %s" % (v(VX + k), 1024 * (k + 1), v(VLW)))
    bits(A, v(VST), [(2, 2, 256), (4, 2, 64), (0, 2, 4)], "s25")
    A("""
    s_lshl_b32 s24, {W}, 4
    s_lshl_b32 s25, s30, 7
    s_add_u32 s24, s24, s25
    s_add_u32 s24, s24, {PF}
    v_and_b32 v1, 3, v0
    v_lshl_add_u32 {VFP}, v1, 2, s24
    s_lshl_b32 s24, s30, 4
    s_lshl_b32 s25, {W}, 2
    s_add_u32 s24, s24, s25
    s_add_u32 s24, s24, {MF}
    s_cmp_lt_u32 s30, 2
    s_cselect_b32 s48, -1, 0xffff
    s_mov_b32 s49, 0
    v_and_b32 v1, 15, v0
    v_lshl_add_u32 {VFS}, v1, 8, s24
    v_bfe_u32 v1, v0, 4, 1
    v_mul_u32_u24 v1, 224, v1
    v_add_u32 {VFS}, {VFS}, v1
    """.format(W=s(S_W), MF=MEM_FL, PF=P_FL, VFM=v(VFM), VFP=v(VFP), VFS=v(VFS)))
    A("s_mov_b32 %s, 0" % s(S_STEP))
    A("s_mov_b32 %s, 0x%x" % (s(S_P), PM))
    A("s_mul_i32 %s, %s, 6144" % (s(S_X), s(S_W)))
    A("s_lshl_b32 s24, s30, 15")
    A("s_add_u32 %s, %s, s24" % (s(S_X), s(S_X)))
    A("s_add_u32 %s, %s, 0x%x" % (s(S_X), s(S_X), UB))
    A("s_add_u32 %s, %s, 4096" % (s(S_X2), s(S_X)))
    A("s_mov_b32 %s, 0x%x" % (s(S_Y), CNT + (C_U + 1) * 128))
    wait_chain_mode(A, 1, abort)
    event(A, 1)
    if wait_u:
        wait_counter(A, 1, C_U, wait_u, abort)
    event(A, 2)
    A("s_mov_b32 %s, %s" % (s(S_NOFL), s(S_SLOW)))
    A("s_mov_b32 %s, 0x%x" % (s(S_MEMN), MEM + MEM_S))
    for i in range(4):
        A("v_mov_b32 %s, -1" % v(Z + 4 + i))
    A("ds_write_b128 %s, %s" % (v(VLW), v(Z + 4, 4)))
    if diag:
        A("s_mov_b32 s68, 0")
    for i in range(32):
        A("v_mov_b32 %s, 0" % v(YA + i))

    lg = Lg()
    frs = [(6, 0), (7, 0), (6, 1), (7, 1)] + [(6, j) for j in range(2, 7)] + [(7, j) for j in range(2, 7)]

    def stage(f):
        i, j = frs[f]
        return [lg.issue("ds_read_b128 %s, %s offset:%d" % (v(WS + 8 * (f & 3) + 4 * hf, 4), v(VWL), (i - 6) * 14336 + (2 * j + hf) * 1024),
                         "w%d" % f) for hf in range(2)]

    tails = []
    uloads = []
    for i in range(8):
        hh, ct = i >> 1, i & 1
        uloads.append(ld(v(U + ((hh >> 1) * 2 + ct) * 8 + (hh & 1) * 4, 4), v(VLP), s(S_X) if i < 4 else s(S_X2),
                         (i & 3) * 1024, PF_FL[PARAM["ufl"]]))
    nu1 = PARAM["nu1"]
    def prestage():
        for f in range(4):
            for o in stage(f):
                A(o)
        for i in range(0, 8, 2):
            A("v_mov_b64 %s, 0" % v(D + i, 2))
    prestage()
    A("s_waitcnt lgkmcnt(0)")
    lg.done = lg.n
    LOOP = A.newlabel("oc_loop")
    A.label(LOOP)
    nops(A, PARAM["oc_mfd"])
    st.st(A, 0)
    poll(A, [ld(v(MA, 4), v(VLP), s(S_MEM)), ld(v(MA + 4, 4), v(VLP), s(S_MEM2))], [MA, MA + 4, MA + 4], CHK, abort,
         1, PARAM["oc_msleep"])
    st.st(A, 1)

    def yp(i):
        hh, ct = i >> 1, i & 1
        y = YA + 4 * i
        return [fadd(y, y, y + 2), fadd(y + 1, y + 1, y + 3), cvt(YP + 4 * ct + hh, y, y + 1)]

    order = [(i, j) for j in range(2) for i in [6, 7, 0, 1, 2, 3, 4, 5]]
    for L_, a0 in [(6, 0), (7, 3)]:
        reg = [(a0 + t, j) for t in range(3) for j in range(2, 7)]
        for k in range(20):
            if k % 3 == 0 and k < 15:
                order.append((L_, 2 + k // 3))
            else:
                order.append(reg.pop(0))
    vq = []
    nextf = 4
    upos = [PARAM["u0"] + PARAM["usp1"] * k for k in range(4)]
    upos += [upos[-1] + PARAM["usp"] * (k + 1) for k in range(4)]
    if wait_u and PARAM.get("cntld"):
        uloads.insert(4, "buffer_load_dword %s, off, %s, %s sc1" % (v(VPA), SRD, s(S_Y)))
        upos.insert(4, upos[3] + 1)
    for n, (i, j) in enumerate(order):
        if i >= 6:
            f = frs.index((i, j))
            A(lg.wait("w%d" % f))
            bop = v(WS + 8 * (f & 3), 8)
        else:
            bop = W(i, j)
        if n == 16:
            A(lg.wait("m6"))
        A("%s %s, %s, %s, %s" % (SMF, v(YA + 4 * i, 4), v(MA + 4 * j, 4), bop, v(IDX)))
        if n < 2:
            A("ds_write_b128 %s, %s offset:%d" % (v(VLP), v(MA + 4 * n, 4), OC_MEMI + 1024 * n))
        elif n == 5:
            A("s_waitcnt lgkmcnt(0)")
            A("s_barrier")
            mr = mem_reads(lg, MA, A1)
            A(mr[0])
        elif n == 6:
            A(mr[1]); A(mr[2])
        elif n == 7:
            A(mr[3]); A(mr[4])
        elif n >= 8 and nextf < 14 and order.index(frs[nextf - 4]) < n:
            for o in stage(nextf):
                A(o)
            nextf += 1
        if n in upos:
            A(uloads[upos.index(n)])
        if vq and vq[0][0] <= n:
            A(vq.pop(0)[1])
        if j == 6:
            vq += [(n + 2, o) for o in yp(i)]
    A("s_nop 4")
    for _, o in vq:
        A(o)
    st.st(A, 2)
    prestage()
    for i in range(0, 32, 2):
        A("v_mov_b64 %s, 0" % v(YA + i, 2))
    if diag:
        st.flush(A, 10, P)
        A("s_mov_b32 s68, 0")
    for r_, inc in [(S_MEM, MEM_S), (S_MEM2, MEM_S), (S_X, U_S), (S_X2, U_S)]:
        A("s_add_u32 %s, %s, %d" % (s(r_), s(r_), inc))
    if PARAM["oc_sleep"]:
        A("s_sleep %d" % PARAM["oc_sleep"])
    A("s_waitcnt vmcnt(0) lgkmcnt(0)")
    st.st(A, 5)
    if diag == 5:
        A("s_mov_b32 s78, %s" % s(S_SPIN))
    flag_wait(A, CHK, VFP, s(S_P), abort, PARAM["oc_nfl"], PARAM["oc_fgap"], PARAM["oc_fd"])
    if diag == 5:
        A("s_mov_b32 s72, %s" % s(S_SPIN))
        A("s_memtime s[76:77]")
    pl = [ld(v(P, 4), v(VLP), s(S_P), 0), ld(v(P + 4, 4), v(VLP), s(S_P), 1024),
          "buffer_load_dwordx2 %s, %s, %s, %s offen sc1" % (v(P + 8, 2), v(VPB), SRD, s(S_P))]

    def O(b, ct):
        if b < 2:
            return "%s %s, %s, %s, %s" % (SMF, v(D + 4 * ct, 4), v(P + 4 * b, 4), v(U + (b * 2 + ct) * 8, 8), v(IDX))
        return "%s %s, %s, %s, %s" % (SMF32, v(D + 4 * ct, 4), v(P + 8, 2), v(YP + 4 * ct, 4), v(IDX))
    spec_poll(A, pl,
              ["v_max3_u32 %s, %s, %s, %s" % (v(CHK), v(P), v(P + 4), v(P + 8)),
               "v_max_u32 %s, %s, %s" % (v(CHK), v(CHK), v(P + 9)), "v_cmp_eq_u32 vcc, -1, %s" % v(CHK)],
              [O(2, 0)], [D, D + 2], abort, PARAM["oc_sets"], PARAM["oc_gap"], PARAM["oc_nd"])
    st.st(A, 3)
    if PARAM["flag"]:
        A("s_mov_b64 exec, s[48:49]")
        A("buffer_store_dword %s, %s, %s, %s offen" % (v(IDX), v(VFS), SRD, s(S_P)))
        A("s_mov_b64 exec, -1")
    A(O(2, 1))
    A(O(0, 0))
    A(O(1, 0))
    A(O(0, 1))
    A(O(1, 1))
    A("s_cmp_eq_u32 %s, 0" % s(S_SLOW))
    A(fadd(Q, D, D + 2))
    A(fadd(Q + 2, D + 1, D + 3))
    A("s_nop 3")
    A(fadd(Q + 1, D + 4, D + 6))
    A(fadd(Q + 3, D + 5, D + 7))
    A("ds_write_b128 %s, %s" % (v(VLW), v(Q, 4)))
    for k in range(3):
        A("ds_read_b128 %s, %s" % (v(Z + 4 * k, 4), v(VX + k)))
    zr = list(range(YA, YA + 32))

    def zero(n=1):
        for i in range(n):
            A("v_mov_b32 %s, 0" % v(zr.pop(0)))
    for i in range(PARAM["oc_f"]):
        A("s_nop 1")
        zero()
    A("s_waitcnt lgkmcnt(2)")
    A(pkadd(Q, Q, Z))
    A(pkadd(Q + 2, Q + 2, Z + 2))
    A("s_waitcnt lgkmcnt(0)")
    A("v_max3_u32 %s, %s, %s, %s" % (v(CHK), v(Z), v(Z + 4), v(Z + 8)))
    A("v_cmp_eq_u32 vcc, -1, %s" % v(CHK))
    A(pkadd(Z + 4, Z + 4, Z + 8))
    A(pkadd(Z + 6, Z + 6, Z + 10))
    A(pkadd(Q, Q, Z + 4))
    A(pkadd(Q + 2, Q + 2, Z + 6))
    A(cvt(R, Q, Q + 1))
    A(cvt(R + 1, Q + 2, Q + 3))
    A("v_min_u32 %s, -2, %s" % (v(R), v(R)))
    A("v_min_u32 %s, -2, %s" % (v(R + 1), v(R + 1)))
    SL = A.newlabel("slowm")
    BK = A.newlabel("backm")
    RS = A.newlabel("resetm")
    A("s_cbranch_vccnz %s" % BK)
    A("s_cbranch_scc0 %s" % SL)
    A("buffer_store_dword %s, %s, %s, %s offen" % (v(R), v(VST), SRD, s(S_MEMN)))
    A("buffer_store_dword %s, %s, %s, %s offen offset:16" % (v(R + 1), v(VST), SRD, s(S_MEMN)))
    A.label(RS)
    st.st(A, 4)
    for i in range(4):
        A("v_mov_b32 %s, -1" % v(Z + i))
    A("ds_write_b128 %s, %s" % (v(VLW), v(Z, 4)))
    for k in range(3):
        A("ds_write_b128 %s, %s" % (v(VX + k), v(Z, 4)))
    A.label(BK)
    if diag == 5:
        A("s_mov_b32 s74, %s" % s(S_SPIN))

    def tail_slow():
        A.label(SL)
        A("buffer_store_dword %s, %s, %s, %s offen sc1" % (v(R), v(VST), SRD, s(S_MEMN)))
        A("buffer_store_dword %s, %s, %s, %s offen offset:16 sc1" % (v(R + 1), v(VST), SRD, s(S_MEMN)))
        A("s_branch %s" % RS)
    tails.append(tail_slow)
    for r_, inc in [(S_MEMN, MEM_S), (S_P, 16384), (S_STEP, 1)]:
        A("s_add_u32 %s, %s, %d" % (s(r_), s(r_), inc))
    A("s_barrier")
    if wait_u:
        U1 = A.newlabel("oc_u1")
        A("s_cmp_eq_u32 %s, 33" % s(S_STEP))
        A("s_cbranch_scc1 %s" % U1)

        def tail_u1():
            A.label(U1)
            wait_counter(A, R + 1, C_U + 1, wait_u, abort)
            A("s_branch %s" % LOOP)
        tails.append(tail_u1)
    A("s_cmp_lt_u32 %s, %d" % (s(S_STEP), nsteps))
    A("s_cbranch_scc1 %s" % LOOP)
    A("s_waitcnt vmcnt(0)")
    st.dump(A)
    event(A, 3)
    A("s_endpgm")
    for t in tails:
        t()


def gen_pf(A, abort):
    A("""
    s_mov_b32 {STEP}, 1
    v_lshlrev_b32 v1, 4, v0
    s_lshl_b32 s22, {W}, 11
    s_min_u32 s22, s22, 5120
    v_add_u32 v1, s22, v1
    s_mov_b32 {MEM}, 0x{M1:x}
    s_mov_b32 {X}, 0x{W1:x}
    """.format(W=s(S_W), STEP=s(S_STEP), X=s(S_X), MEM=s(S_MEM), M1=MEM + MEM_S, W1=MEMW + MEM_S))
    LOOP = A.newlabel("pf_loop")
    A.label(LOOP)
    poll(A, [ld(v(4, 4), "v1", s(S_MEM)), ld(v(8, 4), "v1", s(S_MEM), 1024)], [4, 8, 8], 2, abort, 1, 3)
    A("buffer_store_dwordx4 v[4:7], v1, %s, %s offen sc1" % (SRD, s(S_X)))
    A("buffer_store_dwordx4 v[8:11], v1, %s, %s offen offset:1024 sc1" % (SRD, s(S_X)))
    A("s_add_u32 %s, %s, %d" % (s(S_X), s(S_X), MEM_S))
    A("s_add_u32 %s, %s, %d" % (s(S_MEM), s(S_MEM), MEM_S))
    A("s_add_u32 %s, %s, 1" % (s(S_STEP), s(S_STEP)))
    A("s_waitcnt vmcnt(0)")
    A("s_sleep 16")
    A("s_cmp_lt_u32 %s, 64" % s(S_STEP))
    A("s_cbranch_scc1 %s" % LOOP)
    A("s_endpgm")


def gen_pf2(A, abort, ahead=3):
    A("""
    s_cmp_lg_u32 {W}, 0
    s_cbranch_scc1 .pf_end
    s_mov_b32 {STEP}, 0
    v_lshlrev_b32 v1, 7, v0
    v_mov_b32 v2, 0
    s_mov_b32 {Y}, 0x{XH:x}
    s_mov_b32 {MEM}, 0x{M0:x}
    s_mov_b32 {X}, 0x{M1:x}
    s_mov_b32 {P}, 0x{PM:x}
    """.format(W=s(S_W), STEP=s(S_STEP), X=s(S_X), Y=s(S_Y), XH=XH, MEM=s(S_MEM), M0=MEM, M1=MEM + MEM_S, PM=PM, P=s(S_P)))
    LOOP = A.newlabel("pf_loop")
    PL = A.newlabel("pf_poll")
    GO = A.newlabel("pf_go")
    A.label(LOOP)
    A("s_cmp_lt_u32 %s, %d" % (s(S_STEP), ahead))
    A("s_cbranch_scc1 %s" % GO)
    A.label(PL)
    spin_guard(A, abort)
    A("s_sleep 4")
    A("buffer_load_dword v3, v2, %s, %s offen sc1" % (SRD, s(S_MEM)))
    A("s_waitcnt vmcnt(0)")
    A("v_readfirstlane_b32 s22, v3")
    A("s_cmp_eq_u32 s22, -1")
    A("s_cbranch_scc1 %s" % PL)
    A("s_add_u32 %s, %s, %d" % (s(S_MEM), s(S_MEM), MEM_S))
    A.label(GO)
    A("buffer_load_dword v4, v1, %s, %s offen sc1" % (SRD, s(S_X)))
    A("buffer_load_dword v5, v1, %s, %s offen sc1" % (SRD, s(S_P)))
    A("s_add_u32 s22, %s, 8192" % s(S_P))
    A("buffer_load_dword v6, v1, %s, s22 offen sc1" % SRD)
    for i in range(4):
        A("buffer_load_dword v%d, v1, %s, %s offen sc1" % (7 + i, SRD, s(S_Y)))
        A("s_add_u32 %s, %s, 8192" % (s(S_Y), s(S_Y)))
    A("s_add_u32 %s, %s, %d" % (s(S_X), s(S_X), MEM_S))
    A("s_add_u32 %s, %s, 16384" % (s(S_P), s(S_P)))
    A("s_add_u32 %s, %s, 1" % (s(S_STEP), s(S_STEP)))
    A("s_cmp_lt_u32 %s, 63" % s(S_STEP))
    A("s_cbranch_scc1 %s" % LOOP)
    A("s_waitcnt vmcnt(0)")
    A.label(".pf_end")
    A("s_endpgm")
```

```python
import sys
from common import *
from build import kdesc, kstart, HEADER
A = Asm()
A.raw(HEADER.rstrip("\n"))
K = NAME + "_kernel"
A.raw('.amdgcn_target "amdgcn-amd-amdhsa--gfx950"')
A.raw(".text")
kstart(A, K)
A("""
s_load_dwordx2 s[4:5], s[0:1], 96
s_getreg_b32 s10, hwreg(HW_REG_XCC_ID)
s_mov_b32 s6, 0x10000000
s_mov_b32 s7, 0x00020000
s_and_b32 s9, s2, 7
s_cmp_lg_u32 s9, 0
s_cbranch_scc1 .end
s_lshr_b32 s9, s2, 3
s_cmp_gt_u32 s9, 1
s_cbranch_scc1 .end
v_lshlrev_b32 v1, 2, v0
v_lshlrev_b32 v2, 4, v0
v_mov_b32 v3, 0
s_waitcnt lgkmcnt(0)
s_mov_b32 s12, s4
s_mov_b32 s13, s5
s_and_b32 s5, s5, 0xffff
""")
N = 100
V = []
def st(op, addr, fl="", data="v4"):
    return "%s %s, %s, s[4:7], s20 offen %s" % (op, data, addr, fl)
def vl(op, addr, fl, dst="v8"):
    return "%s %s, %s, s[4:7], s21 offen %s" % (op, dst, addr, fl)
D1 = vl("buffer_load_dword", "v1", "sc1")


A("v_and_b32 v16, 15, v0")
A("v_lshlrev_b32 v17, 7, v16")
A("v_lshlrev_b32 v18, 8, v16")
A("v_lshlrev_b32 v16, 2, v16")
A("v_and_b32 v19, 3, v0")
A("v_lshlrev_b32 v19, 2, v19")
V.append(("same line", [st("buffer_store_dword", "v1")], D1, 3, 10, 0, 0))
V.append(("store, 300 cyc nops, polls", [st("buffer_store_dword", "v1")] + ["s_nop 15"] * 4, D1, 3, 10, 0, 0))
def lanes(k, reg):
    o = []
    for i in range(k):
        o += ["s_mov_b64 exec, %d" % (1 << i), st("buffer_store_dword", reg)]
    return o + ["s_mov_b64 exec, -1"]
V.append(("4 stores same line", lanes(4, "v19"), vl("buffer_load_dword", "v19", "sc1"), 3, 10, 0, 0))
V.append(("16 stores same line", lanes(16, "v16"), vl("buffer_load_dword", "v16", "sc1"), 3, 10, 0, 0))
V.append(("16 stores 16 lines(128)", lanes(16, "v17"), vl("buffer_load_dword", "v17", "sc1"), 3, 10, 0, 0))
V.append(("16 stores 16 lines(256)", lanes(16, "v18"), vl("buffer_load_dword", "v18", "sc1"), 3, 10, 0, 0))
V.append(("1 store 16 lanes 16 lines(128)", ["s_mov_b64 exec, 0xffff", st("buffer_store_dword", "v17"), "s_mov_b64 exec, -1"], vl("buffer_load_dword", "v17", "sc1"), 3, 10, 0, 0))
V.append(("1 store 64 lanes 16 lines(128)", [st("buffer_store_dword", "v17")], vl("buffer_load_dword", "v17", "sc1"), 3, 10, 0, 0))
V.append(("1 store 16 lanes same line", ["s_mov_b64 exec, 0xffff", st("buffer_store_dword", "v16"), "s_mov_b64 exec, -1"], vl("buffer_load_dword", "v16", "sc1"), 3, 10, 0, 0))
for i, (nm, sts, ldi, nfl, gap, adv, pre) in enumerate(V):
    A.raw("; VAR %s" % nm)
    base = 0x100000 + i * 0x20000
    A("s_lshl_b32 s22, s9, 16")
    A("s_add_u32 s20, s22, 0x%x" % base)
    A("s_xor_b32 s21, s20, 0x10000")
    if pre:
        A("v_mov_b32 v4, 0\nv_mov_b32 v5, 0\nv_mov_b32 v6, 0\nv_mov_b32 v7, 0")
        A("s_add_u32 s22, s%d, 1024" % (21 if pre == 4 else 20))
        for k in range(40):
            if pre < 3:
                A("buffer_load_dwordx4 v[8:11], v2, s[4:7], s22 offen %s" % ("sc1" if pre == 1 else ""))
            else:
                A("buffer_store_dwordx4 v[4:7], v2, s[4:7], s22 offen")
            A("s_add_u32 s22, s22, 1024")
        A("s_waitcnt vmcnt(0)")
    A("s_add_u32 s14, s12, s21")
    A("s_addc_u32 s15, s13, 0")
    A("s_mov_b32 s23, 0")
    A("s_mov_b32 s24, 200000")
    L, P, E, S0 = ".l%d" % i, ".p%d" % i, ".e%d" % i, ".s%d" % i
    A("s_cmp_eq_u32 s9, 0")
    A("s_cbranch_scc1 %s" % S0)
    A("s_mov_b32 s23, 1")
    A.label(L)
    if ldi == "S":
        A.label(P)
        A("s_load_dword s26, s[14:15], 0 glc")
        A("s_sub_u32 s24, s24, 1")
        A("s_cbranch_scc1 %s" % E)
        A("s_waitcnt lgkmcnt(0)")
        A("s_cmp_lg_u32 s26, s23")
        A("s_cbranch_scc1 %s" % P)
    else:
        for k in range(nfl):
            A(ldi)
            A("s_nop %d" % min(15, gap - 1))
            if gap > 16:
                A("s_nop %d" % (gap - 17))
        A.label(P)
        A(ldi)
        A("s_sub_u32 s24, s24, 1")
        A("s_cbranch_scc1 %s" % E)
        A("s_waitcnt vmcnt(%d)" % nfl)
        A("v_cmp_ne_u32 vcc, s23, v8")
        A("s_cbranch_vccnz %s" % P)
    A("s_add_u32 s21, s21, %d" % adv)
    A.label(S0)
    A("s_add_u32 s23, s23, 1")
    A("v_mov_b32 v4, s23")
    for o in sts:
        A(o)
    A("s_add_u32 s20, s20, %d" % adv)
    A("s_add_u32 s23, s23, 1")
    A("s_cmp_eq_u32 s23, 10")
    A("s_cbranch_scc0 %s_n" % L)
    A("s_memtime s[30:31]")
    A.label(L + "_n")
    A("s_cmp_lt_u32 s23, %d" % (10 + 2 * N))
    A("s_cbranch_scc1 %s" % L)
    A.label(E)
    A("s_memtime s[32:33]")
    A("s_waitcnt vmcnt(0) lgkmcnt(0)")
    A("s_sub_u32 s32, s32, s30")
    A("v_mov_b32 v12, s32")
    A("v_mov_b32 v13, s24")
    A("v_mov_b32 v14, s10")
    A("v_mov_b32 v15, s23")
    A("s_lshl_b32 s22, s9, 12")
    A("s_add_u32 s22, s22, %d" % (i * 16))
    A("buffer_store_dwordx4 v[12:15], v3, s[4:7], s22 offen")
    A("s_waitcnt vmcnt(0)")
A.label(".end")
A("s_endpgm")
A.raw('.section .rodata,"a"')
A.raw(".p2align 6")
kdesc(A, K)
open("mb11.s", "w").write(A.text())
```

```python
from common import *

SRD = "s[4:7]"
S_W, S_ROLE, S_XCC, S_STEP = 8, 9, 10, 11
S_MEM, S_MEM2, S_P, S_X, S_X2, S_Y, S_SLOW, S_SPIN = 12, 13, 14, 15, 16, 17, 18, 19
S_MEMN, S_XL = 20, 21
S_KB = 32
SPIN_MAX = 1 << 20

SMF = "v_smfmac_f32_16x16x64_bf16"
SMF32 = "v_smfmac_f32_16x16x32_bf16"
MF32 = "v_mfma_f32_16x16x32_bf16"
MF16 = "v_mfma_f32_16x16x16_bf16"

PARAM = dict(sc_sleep=8, oc_sleep=8, oc_msleep=1, sc_sets=2, oc_sets=2, spread=1, ymode=0, ahead=0)


def ld(dst, voff, soff, off=0, flags="sc1"):
    o = " offset:%d" % off if off else ""
    return "buffer_load_dwordx4 %s, %s, %s, %s offen%s %s" % (dst, voff, SRD, soff, o, flags)


def chk_ops(chk, regs):
    out = []
    regs = list(regs)
    out.append("v_max3_u32 %s, %s, %s, %s" % (v(chk), v(regs[0]), v(regs[1]), v(regs[2])))
    regs = regs[3:]
    while len(regs) >= 2:
        out.append("v_max3_u32 %s, %s, %s, %s" % (v(chk), v(chk), v(regs[0]), v(regs[1])))
        regs = regs[2:]
    if regs:
        out.append("v_max_u32 %s, %s, %s" % (v(chk), v(chk), v(regs[0])))
    return out


def spin_guard(A, abort):
    A("s_sub_u32 %s, %s, 1" % (s(S_SPIN), s(S_SPIN)))
    A("s_cbranch_scc1 %s" % abort)


class Stamps:
    def __init__(self, lvl):
        self.lvl = lvl

    def st(self, A, i):
        if self.lvl == 4:
            A("s_memrealtime s[%d:%d]" % (60 + 2 * i, 61 + 2 * i))
        elif self.lvl >= 2 or (self.lvl == 1 and i == 0):
            A("s_memtime s[%d:%d]" % (60 + 2 * i, 61 + 2 * i))

    LB = 131072

    def flush(self, A, n, tmp):
        if not self.lvl:
            return
        A("s_lshl_b32 s58, %s, 12" % s(S_W))
        A("s_lshl_b32 s59, %s, 6" % s(S_STEP))
        A("s_add_u32 s58, s58, s59")
        A("s_add_u32 s58, s58, %d" % self.LB)
        A("v_mbcnt_lo_u32_b32 %s, -1, 0" % v(tmp + 1))
        A("v_lshl_add_u32 %s, %s, 2, s58" % (v(tmp + 1), v(tmp + 1)))
        A("s_waitcnt lgkmcnt(0)")
        for i in range(n):
            if self.lvl == 1 and i not in (0, 4):
                continue
            A("v_writelane_b32 %s, s%d, %d" % (v(tmp), 60 + 2 * i, i))
        A("s_mov_b64 exec, 0xffff")
        A("ds_write_b32 %s, %s" % (v(tmp + 1), v(tmp)))
        A("s_mov_b64 exec, -1")

    def dump(self, A):
        if not self.lvl:
            return
        A("s_lshl_b32 s58, %s, 12" % s(S_W))
        A("s_add_u32 s59, s58, %d" % self.LB)
        A("v_mbcnt_lo_u32_b32 v0, -1, 0")
        A("v_mbcnt_hi_u32_b32 v0, -1, v0")
        A("v_lshlrev_b32 v0, 4, v0")
        A("v_add_u32 v1, s59, v0")
        for i in range(4):
            A("ds_read_b128 %s, v1 offset:%d" % (v(4 + 4 * i, 4), i * 1024))
        A("s_lshl_b32 s59, %s, 14" % s(S_ROLE))
        A("s_add_u32 s58, s58, s59")
        A("s_add_u32 s58, s58, 0x%x" % DBG)
        A("s_waitcnt lgkmcnt(0)")
        for i in range(4):
            A("buffer_store_dwordx4 %s, v0, %s, s58 offen offset:%d" % (v(4 + 4 * i, 4), SRD, i * 1024))


class Lg:
    def __init__(self):
        self.n = 0
        self.done = 0
        self.tag = {}

    def issue(self, op, tag):
        self.n += 1
        self.tag[tag] = self.n
        return op

    def wait(self, tag):
        if self.tag[tag] <= self.done:
            return ""
        self.done = self.tag[tag]
        k = self.n - self.tag[tag]
        assert k <= 15
        return "s_waitcnt lgkmcnt(%d)" % k


def wait_chain_mode(A, t0, abort):
    L = A.newlabel("cm")
    A("v_mov_b32 %s, 0" % v(t0))
    A("s_mov_b32 s22, 0x%x" % (CNT + C_CHAIN * 128))
    A.label(L)
    spin_guard(A, abort)
    A("buffer_load_dword %s, %s, %s, s22 offen sc1" % (v(t0 + 1), v(t0), SRD))
    A("s_waitcnt vmcnt(0)")
    A("v_readfirstlane_b32 s23, %s" % v(t0 + 1))
    A("s_and_b32 s24, s23, 0xffff")
    A("s_cmp_lt_u32 s24, 32")
    A("s_cbranch_scc1 %s" % L)
    A("s_lshr_b32 %s, s23, 16" % s(S_SLOW))


def wait_dep(A, kind, sreg, abort):
    pass


def wait_counter(A, t0, slot, target, abort):
    L = A.newlabel("wc")
    A("v_mov_b32 %s, 0" % v(t0))
    A("s_mov_b32 s22, 0x%x" % (CNT + slot * 128))
    A.label(L)
    spin_guard(A, abort)
    A("buffer_load_dword %s, %s, %s, s22 offen sc1" % (v(t0 + 1), v(t0), SRD))
    A("s_waitcnt vmcnt(0)")
    A("v_readfirstlane_b32 s23, %s" % v(t0 + 1))
    A("s_cmp_lt_u32 s23, %d" % target)
    A("s_cbranch_scc1 %s" % L)


def poll(A, loads, regs, CHK, abort, sets=2, sleep=0):
    L = A.newlabel("pm")
    G = A.newlabel("pmg")
    if sets == 2:
        for l in loads:
            A(l)
        A("s_nop 15")
        A("s_nop 7")
    A.label(L)
    for l in loads:
        A(l)
    A("s_waitcnt vmcnt(%d)" % (len(loads) if sets == 2 else 0))
    for i in chk_ops(CHK, regs):
        A(i)
    A("v_cmp_eq_u32 vcc, -1, %s" % v(CHK))
    A("s_cbranch_vccz %s" % G)
    spin_guard(A, abort)
    if sleep:
        A("s_sleep %d" % sleep)
    A("s_branch %s" % L)
    A.label(G)


def slot_consts(A, VLP, A1, memi):
    A("v_lshlrev_b32 v9, 4, v0")
    A("s_lshl_b32 s22, %s, 1" % s(S_W))
    for j in range(7):
        A("s_add_u32 s23, s22, %d" % j)
        A("s_cmp_ge_u32 s23, 7")
        A("s_cselect_b32 s24, 7, 0")
        A("s_sub_u32 s23, s23, s24")
        A("s_lshl_b32 s%d, s23, 11" % (S_KB + j))
    A("s_lshl_b32 s22, %s, 11" % s(S_W))
    A("v_add_u32 %s, s22, v9" % v(VLP))
    for i in range(3):
        A("s_lshr_b32 s23, s%d, 1" % (S_KB + 2 + 2 * i))
        A("s_add_u32 s23, s23, %d" % memi)
        A("v_add_u32 %s, s23, v9" % v(A1 + i))
    A("s_mov_b32 %s, 0x%x" % (s(S_MEM), MEM))
    A("s_lshr_b32 s23, s%d, 1" % (S_KB + 1))
    A("s_sub_u32 s23, s23, s22")
    A("s_add_u32 %s, s23, 0x%x" % (s(S_MEM2), MEM))


def mem_reads(lg, MA, A1):
    out = []
    for j in range(2, 7):
        i = (j - 2) >> 1
        out.append(lg.issue("ds_read_b128 %s, %s offset:%d" % (v(MA + 4 * j, 4), v(A1 + i), (j & 1) * 1024), "m%d" % j))
    return out


SC_MEMI, SC_XL = 8192, 16384
SRS = 56


def idx_const(A, IDX):
    A("""
    v_and_b32 v1, 2, v0
    v_mov_b32 v2, 0x4444
    v_mov_b32 v3, 0xeeee
    v_cmp_eq_u32 vcc, 0, v1
    s_nop 1
    v_cndmask_b32 %s, v3, v2, vcc
    """ % v(IDX))


def pkadd(d, a_, b_):
    return "v_pk_add_f32 %s, %s, %s" % (v(d, 2), v(a_, 2), v(b_, 2))


def cvt(d, a_, b_):
    return "v_cvt_pk_bf16_f32 %s, %s, %s" % (v(d), v(a_), v(b_))


PARAM.update(dict(sc_nd=2, oc_nd=2, sc_gap=24, oc_gap=24, pfa=3, upf=0, mask=0, fillz=1, dsp=5, sync=0, nobar=1, sc_dly=4, sc_f2=2, oc_f=3, nu1=4, oc_sleep=0, usp=4, sc_sleep=4))


PF_FL = ["sc1", "", "nt"]
PARAM.update(dict(upos=31, pffl=0, ufl=0, d0=8, dsp=3, upf=0, pfa=0, flag=1, sc_fpos=2, sc_sleep=0, sc_nfl=3, sc_fgap=10, sc_fd=0,
                  oc_nfl=3, oc_fgap=10, oc_fd=0, oc_mfd=24, nu0=0, u0=0, usp1=2, sc_sets=1, oc_sets=1))
MEM_FL = 12288
P_FL = 10240
S_NOFL = 50


def flag_wait(A, F, VF, sbase, abort, nfl, gap, dly):
    if not PARAM["flag"]:
        return
    L = A.newlabel("fw")
    G = A.newlabel("fwg")
    l = "buffer_load_dword %s, %s, %s, %s offen sc1" % (v(F), v(VF), SRD, sbase)
    A("s_cmp_lg_u32 %s, 0" % s(S_NOFL))
    A("s_cbranch_scc1 %s" % G)
    for k in range(nfl if gap else 0):
        A(l)
        nops(A, gap)
    A.label(L)
    A(l)
    spin_guard(A, abort)
    A("s_waitcnt vmcnt(%d)" % nfl)
    A("v_cmp_eq_u32 vcc, -1, %s" % v(F))
    A("s_cbranch_vccnz %s" % L)
    nops(A, dly)
    A.label(G)


def fadd(d, a_, b_):
    return "v_add_f32 %s, %s, %s" % (v(d), v(a_), v(b_))


def nops(A, n):
    while n > 0:
        k = min(n, 16)
        A("s_nop %d" % (k - 1))
        n -= k


def spec_poll(A, loads, chk, spec, zero, abort, sets, gap, nd):
    L = A.newlabel("sp")
    for k in range(sets - 1):
        for l in loads:
            A(l)
        nops(A, gap)
    A.label(L)
    for l in loads:
        A(l)
    spin_guard(A, abort)
    if PARAM["mask"]:
        A("s_mov_b64 exec, -1")
    for i in range(max(nd, len(zero))):
        A("v_mov_b64 %s, 0" % v(zero[i % len(zero)], 2))
    A("s_waitcnt vmcnt(%d)" % (len(loads) * (sets - 1)))
    for o in chk:
        A(o)
    for o in spec:
        A(o)
    if PARAM["mask"]:
        A("s_mov_b64 exec, vcc")
    A("s_cbranch_vccnz %s" % L)
    if PARAM["mask"]:
        A("s_mov_b64 exec, -1")


def gen_score(A, abort, diag=0, nsteps=63):
    MA, T, MH0, XR, SAB = 0, 28, 56, 64, 96
    BS, BS3, IDX, VLP, VH0, VH1, VP, VLW, VLR, CHK = 108, 110, 112, 113, 114, 115, 116, 117, 118, 119
    MH1 = MA
    SA = [SAB, SAB + 4, SAB + 8]
    S_A1, S_UP, S_UPS, S_PF, S_FB = 40, 43, 44, 46, 47
    st = Stamps(diag)

    def W(tau, j):
        i = (tau * 7 + j) * 8
        return a(i, 8) if i < 256 else v(120 + i - 256, 8)

    def Wh(tau, j, hf):
        i = (tau * 14 + 2 * j + hf) * 4
        return a(i, 4) if i < 256 else v(120 + i - 256, 4)

    slot_consts(A, VLP, 10, SC_MEMI)
    for i in range(3):
        A("s_lshr_b32 s23, s%d, 1" % (S_KB + 2 + 2 * i))
        A("s_add_u32 s23, s23, %d" % SC_MEMI)
        A("s_sub_u32 s%d, s23, s22" % (S_A1 + i))
    A("""
    s_mul_i32 s22, %s, %d
    s_mul_i32 s23, %s, %d
    s_add_u32 s22, s22, s23
    s_add_u32 s22, s22, 0x%x
    """ % (s(S_ROLE), 28 * 14336, s(S_W), 7 * 14336, AW))
    n = 0
    for tau in range(7):
        for j in range(7):
            A("s_add_u32 s23, s22, s%d" % (S_KB + j))
            for hf in range(2):
                A(ld(Wh(tau, j, hf), "v9", "s23", hf * 1024, "nt"))
                n += 1
                if n % 16 == 0 and n >= 48:
                    A("s_waitcnt vmcnt(40)")
        A("s_add_u32 s22, s22, 14336")
    idx_const(A, IDX)
    A("""
    v_bfe_u32 v1, v0, 2, 2
    v_bfe_u32 v2, v0, 4, 2
    v_xor_b32 v1, v1, v2
    v_and_b32 v2, 3, v0
    v_lshl_or_b32 v3, v1, 2, v2
    v_mov_b32 v4, 0x3f80
    v_mov_b32 v5, 0x3f800000
    """)
    for r in range(2):
        A("""
        v_cmp_eq_u32 vcc, %d, v3
        v_cmp_eq_u32 s[22:23], %d, v3
        s_nop 1
        v_cndmask_b32 v6, 0, v4, vcc
        v_cndmask_b32 v7, 0, v5, s[22:23]
        v_or_b32 %s, v6, v7
        """ % (2 * r, 2 * r + 1, v(BS + r)))
    A("""
    s_and_b32 s24, {W}, 1
    s_cmp_eq_u32 s24, 1
    s_cselect_b64 s[22:23], -1, 0
    v_cndmask_b32 {BS3}, {BS0}, {BS1}, s[22:23]
    v_mov_b32 {BS3b}, 0
    s_lshr_b32 s25, {W}, 1
    s_mul_i32 s25, s25, 28
    s_mul_i32 s26, s24, 12
    s_add_u32 s25, s25, s26
    s_lshl_b32 s25, s25, 7
    s_add_u32 s25, s25, {MEMI}
    s_sub_u32 s26, 16, s26
    s_lshl_b32 s26, s26, 7
    """.format(W=s(S_W), MEMI=SC_MEMI, BS3=v(BS3), BS3b=v(BS3 + 1), BS0=v(BS), BS1=v(BS + 1)))
    bits(A, v(VH0), [(5, 1, 256), (1, 2, 64), (4, 1, 32), (0, 1, 16)], "s25")
    A("s_add_u32 s25, s25, 1024")
    bits(A, v(VH1), [(1, 2, 64), (5, 1, 32), (0, 1, 16)], "s25")
    A("v_bfe_u32 v1, v0, 4, 1")
    A("v_mad_u32_u24 %s, v1, s26, %s" % (v(VH1), v(VH1)))
    A("""
    s_lshl_b32 s22, {R}, 9
    s_lshl_b32 s23, {W}, 6
    s_add_u32 s22, s22, s23
    s_lshr_b32 s23, {R}, 2
    s_lshl_b32 s23, s23, 9
    s_lshl_b32 s24, {W}, 5
    s_add_u32 s23, s23, s24
    s_and_b32 s24, {R}, 1
    s_lshl_b32 s24, s24, 4
    s_add_u32 s23, s23, s24
    s_and_b32 s24, {R}, 2
    s_lshl_b32 s24, s24, 1
    s_add_u32 s23, s23, s24
    s_add_u32 s23, s23, 8192
    s_mul_i32 s24, {W}, {RS2}
    s_add_u32 s25, s24, 64
    v_and_b32 v2, 16, v0
    v_cmp_ne_u32 vcc, 0, v2
    """.format(R=s(S_ROLE), W=s(S_W), RS2=2 * SRS * 4))
    bits(A, "v2", [(3, 1, 256), (2, 1, 32), (5, 1, 16), (0, 2, 4)], "s22")
    bits(A, "v3", [(0, 2, 128), (5, 1, 8)], "s23")
    A("v_cndmask_b32 %s, v2, v3, vcc" % v(VP))
    bits(A, "v2", [(5, 1, SRS * 4), (0, 1, 64), (3, 1, 32), (1, 1, 16), (2, 1, 8)], "s25")
    bits(A, "v3", [(5, 1, SRS * 4), (0, 2, 8)], "s24")
    A("v_cndmask_b32 %s, v2, v3, vcc" % v(VLR))
    A("s_mul_i32 s24, %s, %d" % (s(S_W), SRS * 32))
    bits(A, v(VLW), [(4, 2, 2 * SRS * 4), (0, 4, 4)], "s24")
    A("s_mov_b32 %s, 0" % s(S_STEP))
    A("s_mov_b32 %s, 0x%x" % (s(S_P), PM))
    A("s_mul_i32 %s, %s, 6144" % (s(S_X), s(S_W)))
    A("s_add_u32 %s, %s, 0x%x" % (s(S_X), s(S_X), XH))
    A("s_lshl_b32 %s, %s, 11" % (s(S_XL), s(S_W)))
    A("s_add_u32 %s, %s, %d" % (s(S_XL), s(S_XL), SC_XL))
    A("""
    s_lshl_b32 s22, {R}, 15
    s_add_u32 {UP}, s22, 0x{UB:x}
    s_mov_b32 {UPS}, {US}
    s_cmp_ge_u32 {R}, 14
    s_cselect_b32 {UP}, 0x{XH:x}, {UP}
    s_cselect_b32 {UPS}, {XS}, {UPS}
    s_cmp_eq_u32 {R}, 15
    s_cselect_b32 {UP}, 0x{XH2:x}, {UP}
    v_lshlrev_b32 {C}, 2, {VLP}
    s_lshl_b32 s22, {R}, 2
    s_mul_i32 s23, {W}, 65408
    s_add_u32 {PF}, s22, 0x{PMF:x}
    s_sub_u32 {PF}, {PF}, s23
    s_lshl_b32 {FB}, {W}, 6
    s_lshl_b32 s22, {R}, 8
    s_add_u32 {FB}, {FB}, s22
    s_mov_b32 {NOFL}, 1
    """.format(R=s(S_ROLE), W=s(S_W), UP=s(S_UP), UPS=s(S_UPS), UB=UB + 4096, US=U_S, XH=XH + XH_S, XH2=XH + XH_S + 4096, XS=XH_S,
               C=v(CHK), VLP=v(VLP), PF=s(S_PF), PMF=PM + P_FL, FB=s(S_FB), NOFL=s(S_NOFL)))
    for i in range(PARAM["pfa"]):
        A("buffer_load_dword v5, %s, %s, %s offen %s" % (v(CHK), SRD, s(S_UP), PF_FL[PARAM["pffl"]]))
        A("s_add_u32 %s, %s, %s" % (s(S_UP), s(S_UP), s(S_UPS)))

    def xh_dma():
        out = []
        for k in range(4):
            out.append(["s_add_u32 m0, %s, %d" % (s(S_XL), k * 8192),
                        "s_add_u32 s22, %s, %d" % (s(S_X), k * 2048),
                        "buffer_load_dwordx4 %s, %s, s22 offen lds" % (v(VLP), SRD),
                        "buffer_load_dwordx4 %s, %s, s22 offen offset:1024 lds" % (v(VLP), SRD)])
        return out

    for g_ in xh_dma():
        for o in g_:
            A(o)
    wait_chain_mode(A, 1, abort)
    event(A, 1)
    for i in range(28):
        A("v_mov_b32 %s, 0" % v(T + i))
    A("v_mov_b32 v2, -1")
    A("v_mov_b32 v3, -1")
    for k in range(4):
        A("ds_write_b64 %s, v[2:3] offset:%d" % (v(VLR), k * SRS * 32))
    A("s_movk_i32 s45, 2000")

    def M(tau, j):
        return "%s %s, %s, %s, %s" % (SMF, v(T + 4 * tau, 4), v(MA + 4 * j, 4), W(tau, j), v(IDX))

    def TPr(tau):
        return T + 4 if tau == 6 else T + 8 * (tau >> 1) + 2 + (tau & 1)
    D = [T + 4, T + 12, T + 20, T + 24]
    DP = [T, T + 8]

    def c(tau):
        t = T + 4 * tau
        return [fadd(t, t, t + 2), fadd(t + 1, t + 1, t + 3), cvt(TPr(tau), t, t + 1)]

    def d(p):
        dst = DP[p >> 1] + 2 * (p & 1)
        return [cvt(dst, D[p], D[p] + 1), cvt(dst + 1, D[p] + 2, D[p] + 3)]

    def X(p):
        return "%s %s, %s, %s, 0" % (MF16, v(D[p], 4), v(TPr(2 * p), 2), v(BS if p < 3 else BS3, 2))

    def S(b, u):
        bop = v((MH0, MH1)[b], 8) if u == 0 else v(XR + (b * 2 + u - 1) * 8, 8)
        return "%s %s, %s, %s, %s" % (SMF, v(SA[u], 4), v(DP[b], 4), bop, v(IDX))

    LOOP = A.newlabel("sc_loop")
    A.label(LOOP)
    for i in range(12):
        A("v_mov_b32 %s, 0" % v(SAB + i))
    for i in range(3):
        A("v_add_u32 %s, s%d, %s" % (v(MA + 8 + 8 * i), S_A1 + i, v(VLP)))
    A("s_add_u32 %s, %s, %d" % (s(S_X), s(S_X), XH_S))
    A("s_waitcnt vmcnt(0)")
    for i in range(8):
        A("ds_read_b128 %s, %s offset:%d" % (v(XR + 4 * i, 4), v(VLP), SC_XL + (i >> 1) * 8192 + (i & 1) * 1024))
    st.st(A, 0)
    if diag == 5:
        A("s_mov_b32 s86, %s" % s(S_SPIN))
    A("v_bfe_u32 %s, %s, 4, 4" % (v(MH0), v(VLP)))
    A("v_lshl_add_u32 %s, %s, 2, %s" % (v(MH0), v(MH0), s(S_FB)))
    A("s_add_u32 s22, %s, %d" % (s(S_P), (MEM_FL - 16384) & 0xffffffff))
    flag_wait(A, MH0 + 1, MH0, "s22", abort, PARAM["sc_nfl"], PARAM["sc_fgap"], PARAM["sc_fd"])
    if diag == 5:
        A("s_mov_b32 s78, %s" % s(S_SPIN))
        A("s_memtime s[84:85]")
    spec_poll(A, [ld(v(MA, 4), v(VLP), s(S_MEM)), ld(v(MA + 4, 4), v(VLP), s(S_MEM2))],
              ["v_max_u32 %s, %s, %s" % (v(CHK), v(MA), v(MA + 4)), "v_cmp_eq_u32 vcc, -1, %s" % v(CHK)],
              [M(0, 0)], [T, T + 2], abort, PARAM["sc_sets"], PARAM["sc_gap"], PARAM["sc_nd"])
    st.st(A, 1)

    mf = [M(t, 0) for t in range(7)] + [M(t, 1) for t in range(7)]
    for t in range(7):
        for j in range(2, 7):
            mf.append(M(t, j))
        if t in (2, 4):
            mf.append(X((t >> 1) - 1))
    mf += [S(0, 1), X(2), S(0, 0), X(3), S(0, 2)]
    assert len(mf) == 56
    nv = {i: [] for i in range(56)}
    va = {i: [] for i in range(56)}

    def rd(j):
        return "ds_read_b128 %s, %s%s" % (v(MA + 4 * j, 4), v(MA + 8 * (j >> 1)), " offset:1024" if j & 1 else "")
    nv[0] += ["ds_write_b128 %s, %s offset:%d" % (v(VLP), v(MA, 4), SC_MEMI)]
    nv[1] += ["ds_write_b128 %s, %s offset:%d" % (v(VLP), v(MA + 4, 4), SC_MEMI + 1024)]
    nv[5] += ["s_waitcnt lgkmcnt(0)", "s_barrier", rd(3)]
    nv[6] += [rd(2), rd(5), rd(4)]
    nv[7] += [rd(6), "ds_read_b128 %s, %s" % (v(MH0, 4), v(VH0)), "ds_read_b128 %s, %s offset:512" % (v(MH0 + 4, 4), v(VH0))]
    nv[13] += ["s_waitcnt lgkmcnt(0)"]
    if PARAM["upf"]:
        va[4] += ["v_lshlrev_b32 %s, 2, %s" % (v(CHK), v(VLP))]
    dpos = []
    for k, g_ in enumerate(xh_dma()):
        if PARAM.get("nodma"):
            break
        p0 = PARAM["d0"] + 2 * PARAM["dsp"] * k
        nv[p0] += g_[:3]
        nv[p0 + PARAM["dsp"]] += g_[3:]
        dpos += [p0, p0 + PARAM["dsp"]]
    if PARAM["upf"]:
        p0 = PARAM["upos"]
        nv[p0] += ["buffer_load_dword %s, %s, %s, %s offen %s" % (v(CHK), v(CHK), SRD, s(S_UP), PF_FL[PARAM["pffl"]]),
                   "s_add_u32 %s, %s, %s" % (s(S_UP), s(S_UP), s(S_UPS))]
        dpos.append(p0)
    p0 = 19
    assert p0 not in dpos
    nv[p0] += ["s_waitcnt vmcnt(%d)" % len([x for x in dpos if x < p0]),
               "ds_read_b128 %s, %s" % (v(MH1, 4), v(VH1)), "ds_read_b128 %s, %s offset:256" % (v(MH1 + 4, 4), v(VH1))]
    nv[29] += ["s_waitcnt lgkmcnt(0)"]
    if PARAM.get("vw"):
        nv[PARAM["vw"]] += ["s_waitcnt vmcnt(0)"]
    nv[39] += ["s_add_u32 %s, %s, %d" % (s(S_MEM), s(S_MEM), MEM_S),
               "s_add_u32 %s, %s, %d" % (s(S_MEM2), s(S_MEM2), MEM_S)]
    if PARAM["sync"]:
        nv[PARAM["sync"]] += ["s_barrier"]
    for lst, p0 in [(c(0), 20), (c(1), 25), (c(2), 30), (d(0), 33), (["v_mov_b32 %s, 0" % v(T + 5)], 35), (c(3), 36),
                    (c(4), 41), (d(1), 44), (c(5), 47)]:
        for k, o in enumerate(lst):
            va[p0 + k].append(o)
    va[52] += c(6)
    va[54] += d(2)
    va[53] += ["v_lshlrev_b32 v8, 5, %s" % v(VLP)]
    nv[40] += ["s_mov_b32 %s, %s" % (s(S_NOFL), s(S_SLOW))]
    k5 = [0]

    def st5():
        if diag == 5:
            A("s_memtime s[%d:%d]" % (70 + 2 * k5[0], 71 + 2 * k5[0]))
            k5[0] += 1
    for i in range(56):
        if i:
            A(mf[i])
        for o in nv[i]:
            A(o)
        if i in (15, 32, 50):
            st5()
        for o in va[i]:
            A(o)
    def fst(pos):
        if PARAM["flag"] and PARAM["sc_fpos"] == pos:
            A("s_mov_b64 exec, 15")
            A("buffer_store_dword %s, v8, %s, %s offen" % (v(IDX), SRD, s(S_PF)))
            A("s_mov_b64 exec, -1")
            if PARAM.get("fack"):
                A("s_waitcnt vmcnt(0)")
            return True
        return False
    A("s_nop 3")
    for o in d(3):
        A(o)
    A("s_nop 1")
    for u in [1, 0, 2]:
        A(S(1, u))
    fst(0)
    for u in [1, 0, 2]:
        r = SA[u]
        A(fadd(r, r, r + 2))
        A(fadd(r + 1, r + 1, r + 3))
        A("ds_write2_b32 %s, %s, %s offset0:%d offset1:%d" % (v(VLW), v(r), v(r + 1), 16 * u, SRS + 16 * u))
    st.st(A, 2)
    fst(1)
    R = MH0
    zr = list(range(T, T + 28))

    def zero(n=1):
        for i in range(n):
            A("v_mov_b32 %s, 0" % v(zr.pop(0)))
    RT = A.newlabel("sc_rt")
    if PARAM["nobar"]:
        zero(PARAM["sc_dly"])
        A.label(RT)
    else:
        for i in range(3):
            A("s_nop 2")
            zero()
        A("s_waitcnt lgkmcnt(0)")
        A("s_barrier")
    for k in range(4):
        A("ds_read_b64 %s, %s offset:%d" % (v(R + 2 * k, 2), v(VLR), k * SRS * 32))
        zero()
    fst(2)
    for i in range(PARAM["sc_f2"]):
        A("s_nop 1")
        zero()
    A("s_waitcnt lgkmcnt(2)")
    A(pkadd(R, R, R + 2))
    A("s_waitcnt lgkmcnt(0)")
    A(pkadd(R + 4, R + 4, R + 6))
    A(pkadd(R, R, R + 4))
    m, m2 = R + 2, R + 3
    st5()
    A("v_max_f32 %s, %s, %s" % (v(m), v(R), v(R + 1)))
    RF = A.newlabel("sc_rf")
    RB = A.newlabel("sc_rb")
    for ror in [8, 4, 2, 1]:
        if PARAM["nobar"] and ror == 8:
            A("v_cmp_u_f32 vcc, %s, %s" % (v(R), v(R + 1)))
            A("s_cmp_eq_u32 %s, 0" % s(S_SLOW))
        elif PARAM["nobar"] and ror == 2:
            A("s_cbranch_vccnz %s" % RF)
            A.label(RB)
            A("s_nop 0")
        elif ror == 4:
            A("s_cmp_eq_u32 %s, 0" % s(S_SLOW))
            if not fst(3):
                A("s_nop 0")
        else:
            A("s_nop 1")
        A("v_max_f32_dpp %s, %s, %s row_ror:%d row_mask:0xf bank_mask:0xf" % (v(m), v(m), v(m), ror))
    A("v_mov_b32 %s, %s" % (v(m2), v(m)))
    A("s_nop 1")
    A("v_permlane16_swap_b32 %s, %s" % (v(m), v(m2)))
    A("v_max_f32 %s, %s, %s" % (v(m), v(m), v(m2)))
    A("v_sub_f32 %s, %s, %s" % (v(R), v(R), v(m)))
    A("v_sub_f32 %s, %s, %s" % (v(R + 1), v(R + 1), v(m)))
    A("v_exp_f32 %s, %s" % (v(R), v(R)))
    A("v_exp_f32 %s, %s" % (v(R + 1), v(R + 1)))
    if not fst(4):
        A("s_nop 0")
    A("v_add_f32 %s, %s, %s" % (v(m), v(R), v(R + 1)))
    for ror in [8, 4, 2, 1]:
        A("s_nop 1")
        A("v_add_f32_dpp %s, %s, %s row_ror:%d row_mask:0x%x bank_mask:0xf" % (v(m), v(m), v(m), ror, 0x5 if ror >= 4 else 0xf))
    A("v_mov_b32 %s, %s" % (v(m2), v(m)))
    A("s_nop 1")
    A("v_permlane16_swap_b32 %s, %s" % (v(m), v(m2)))
    A("v_add_f32 %s, %s, %s" % (v(m), v(m), v(m2)))
    A("v_rcp_f32 %s, %s" % (v(m), v(m)))
    A("s_nop 0")
    A("v_mul_f32 %s, %s, %s" % (v(R), v(R), v(m)))
    A("v_mul_f32 %s, %s, %s" % (v(R + 1), v(R + 1), v(m)))
    A("v_cvt_pk_bf16_f32 %s, %s, %s" % (v(R), v(R), v(R + 1)))
    A("v_min_u32 %s, -2, %s" % (v(R), v(R)))
    tails = []
    SL = A.newlabel("slowp")
    BK = A.newlabel("backp")
    A("s_cbranch_scc0 %s" % SL)
    A("buffer_store_dword %s, %s, %s, %s offen" % (v(R), v(VP), SRD, s(S_P)))
    A.label(BK)
    if PARAM.get("pack"):
        A("s_waitcnt vmcnt(0)")
    st.st(A, 3)
    if diag == 5:
        A("s_mov_b32 s80, %s" % s(S_SPIN))
    if diag:
        A("s_memrealtime s[68:69]")
    st.flush(A, 14, R + 4)

    def tail_slow():
        A.label(SL)
        A("buffer_store_dword %s, %s, %s, %s offen sc1" % (v(R), v(VP), SRD, s(S_P)))
        A("s_branch %s" % BK)
    tails.append(tail_slow)

    def tail_retry():
        A.label(RF)
        A("s_sub_u32 s45, s45, 1")
        A("s_cbranch_scc0 %s" % RT)
        A("s_cmp_eq_u32 %s, 0" % s(S_SLOW))
        A("s_branch %s" % RB)
    if PARAM["nobar"]:
        tails.append(tail_retry)
        A("v_mov_b32 %s, -1" % v(R + 2))
        A("v_mov_b32 %s, -1" % v(R + 3))
        for k in range(4):
            A("ds_write_b64 %s, %s offset:%d" % (v(VLR), v(R + 2, 2), k * SRS * 32))
        if diag == 5:
            A("s_mov_b32 s82, s45")
        A("s_movk_i32 s45, 2000")
    zero(len(zr))
    A("s_add_u32 %s, %s, 16384" % (s(S_P), s(S_P)))
    A("s_add_u32 %s, %s, 16384" % (s(S_PF), s(S_PF)))
    A("s_add_u32 %s, %s, 1" % (s(S_STEP), s(S_STEP)))
    if PARAM["sc_sleep"]:
        A("s_sleep %d" % PARAM["sc_sleep"])
    A("s_cmp_lt_u32 %s, %d" % (s(S_STEP), nsteps))
    A("s_cbranch_scc1 %s" % LOOP)
    A("s_waitcnt vmcnt(0)")
    st.dump(A)
    event(A, 3)
    A("s_endpgm")
    for t in tails:
        t()


RED2 = 0
OC_MEMI = 4096
OC_WL = 12288


def gen_out(A, abort, diag=0, nsteps=63):
    MA, YA, YP, U, P, D, WS = 0, 28, 60, 76, 108, 120, 128
    IDX, VLP, VPA, VPB, VLW, VLR, VST, CHK, VWL, R, A1 = 160, 161, 162, 163, 164, 165, 166, 167, 168, 169, 172
    Q, Z, VX = 68, 0, 72
    VFM, VFP, VFS = 165, 171, 175
    st = Stamps(diag)

    def W(i, j):
        x = (i * 7 + j) * 8
        return a(x, 8) if x < 256 else v(176 + x - 256, 8)

    def Wh(i, j, hf):
        x = (i * 14 + 2 * j + hf) * 4
        return a(x, 4) if x < 256 else v(176 + x - 256, 4)

    slot_consts(A, VLP, A1, OC_MEMI)
    A("""
    s_sub_u32 s30, %s, 16
    s_mul_i32 s22, %s, %d
    s_mul_i32 s23, s30, %d
    s_add_u32 s22, s22, s23
    s_add_u32 s22, s22, 0x%x
    s_mul_i32 s24, %s, 28672
    s_add_u32 s24, s24, %d
    """ % (s(S_ROLE), s(S_W), 4 * 28 * 14336, 2 * 14336, VW, s(S_W), OC_WL))
    n = 0
    for hh in range(4):
        for ct in range(2):
            A("s_add_u32 s25, s22, %d" % (hh * 28 * 14336 + ct * 14336))
            for j in range(7):
                if hh == 3:
                    A("s_add_u32 m0, s24, %d" % (ct * 14336 + j * 2048))
                A("s_add_u32 s23, s25, s%d" % (S_KB + j))
                for hf in range(2):
                    if hh < 3:
                        A(ld(Wh(2 * hh + ct, j, hf), "v9", "s23", hf * 1024, "nt"))
                    else:
                        o = " offset:1024" if hf else ""
                        A("buffer_load_dwordx4 v9, %s, s23 offen%s nt lds" % (SRD, o))
                    n += 1
                    if n % 16 == 0 and n >= 48:
                        A("s_waitcnt vmcnt(40)")
    idx_const(A, IDX)
    A("""
    s_lshl_b32 s24, {W}, 9
    s_add_u32 s24, s24, 8192
    v_lshl_add_u32 {VPB}, v0, 3, s24
    s_lshl_b32 s24, {W}, 10
    s_add_u32 s24, s24, {RED2}
    v_add_u32 {VLW}, s24, v9
    s_mul_i32 s24, {W}, 28672
    s_add_u32 s24, s24, {OC_WL}
    v_add_u32 {VWL}, s24, v9
    s_lshr_b32 s25, s30, 1
    s_lshl_b32 s25, s25, 10
    s_and_b32 s26, s30, 1
    s_lshl_b32 s26, s26, 5
    s_add_u32 s25, s25, s26
    """.format(W=s(S_W), VPB=v(VPB), VLW=v(VLW), VWL=v(VWL), RED2=RED2, OC_WL=OC_WL))
    for k in range(3):
        A("v_xor_b32 %s, %d, %s" % (v(VX + k), 1024 * (k + 1), v(VLW)))
    bits(A, v(VST), [(2, 2, 256), (4, 2, 64), (0, 2, 4)], "s25")
    A("""
    s_lshl_b32 s24, {W}, 4
    s_lshl_b32 s25, s30, 7
    s_add_u32 s24, s24, s25
    s_add_u32 s24, s24, {PF}
    v_and_b32 v1, 3, v0
    v_lshl_add_u32 {VFP}, v1, 2, s24
    s_lshl_b32 s24, s30, 4
    s_lshl_b32 s25, {W}, 2
    s_add_u32 s24, s24, s25
    s_add_u32 s24, s24, {MF}
    s_cmp_lt_u32 s30, 2
    s_cselect_b32 s48, -1, 0xffff
    s_mov_b32 s49, 0
    v_and_b32 v1, 15, v0
    v_lshl_add_u32 {VFS}, v1, 8, s24
    v_bfe_u32 v1, v0, 4, 1
    v_mul_u32_u24 v1, 224, v1
    v_add_u32 {VFS}, {VFS}, v1
    """.format(W=s(S_W), MF=MEM_FL, PF=P_FL, VFM=v(VFM), VFP=v(VFP), VFS=v(VFS)))
    A("s_mov_b32 %s, 0" % s(S_STEP))
    A("s_mov_b32 %s, 0x%x" % (s(S_P), PM))
    A("s_mul_i32 %s, %s, 6144" % (s(S_X), s(S_W)))
    A("s_lshl_b32 s24, s30, 15")
    A("s_add_u32 %s, %s, s24" % (s(S_X), s(S_X)))
    A("s_add_u32 %s, %s, 0x%x" % (s(S_X), s(S_X), UB))
    A("s_add_u32 %s, %s, 4096" % (s(S_X2), s(S_X)))
    A("""
    s_lshr_b32 s24, s30, 1
    s_lshl_b32 s24, s24, 2
    s_add_u32 s24, s24, {W}
    s_lshl_b32 s24, s24, 7
    s_and_b32 s25, s30, 1
    s_lshl_b32 s25, s25, 3
    s_add_u32 s24, s24, s25
    s_add_u32 {Y}, s24, 0x{UF:x}
    """.format(W=s(S_W), Y=s(S_Y), UF=CNT + C_UF * 128))
    UFR, S_UPG = P + 10, 51
    ufl = "buffer_load_dwordx2 %s, off, %s, %s sc1" % (v(UFR, 2), SRD, s(S_Y))
    ufc = ["v_min_u32 %s, %s, %s" % (v(UFR), v(UFR), v(UFR + 1)), "s_nop 0", "v_readfirstlane_b32 %s, %s" % (s(S_UPG), v(UFR))]
    wait_chain_mode(A, 1, abort)
    event(A, 1)
    A("s_mov_b32 %s, %s" % (s(S_NOFL), s(S_SLOW)))
    A("s_mov_b32 %s, 0x%x" % (s(S_MEMN), MEM + MEM_S))
    for i in range(4):
        A("v_mov_b32 %s, -1" % v(Z + 4 + i))
    A("ds_write_b128 %s, %s" % (v(VLW), v(Z + 4, 4)))
    if diag:
        A("s_mov_b32 s68, 0")
    for i in range(32):
        A("v_mov_b32 %s, 0" % v(YA + i))

    lg = Lg()
    frs = [(6, 0), (7, 0), (6, 1), (7, 1)] + [(6, j) for j in range(2, 7)] + [(7, j) for j in range(2, 7)]

    def stage(f):
        i, j = frs[f]
        return [lg.issue("ds_read_b128 %s, %s offset:%d" % (v(WS + 8 * (f & 3) + 4 * hf, 4), v(VWL), (i - 6) * 14336 + (2 * j + hf) * 1024),
                         "w%d" % f) for hf in range(2)]

    tails = []
    uloads = []
    for i in range(8):
        hh, ct = i >> 1, i & 1
        uloads.append(ld(v(U + ((hh >> 1) * 2 + ct) * 8 + (hh & 1) * 4, 4), v(VLP), s(S_X) if i < 4 else s(S_X2),
                         (i & 3) * 1024, PF_FL[PARAM["ufl"]]))
    nu0 = PARAM["nu0"]
    for f in range(4):
        for o in stage(f):
            A(o)
    A("s_waitcnt lgkmcnt(0)")
    lg.done = lg.n
    LOOP = A.newlabel("oc_loop")
    UW = A.newlabel("oc_uw")
    A.label(UW)
    A(ufl)
    spin_guard(A, abort)
    A("s_waitcnt vmcnt(0)")
    for o in ufc:
        A(o)
    A("s_cmp_gt_u32 %s, %s" % (s(S_UPG), s(S_STEP)))
    A("s_cbranch_scc0 %s" % UW)
    if EV["on"]:
        A("s_cmp_lg_u32 %s, 0" % s(S_STEP))
        A("s_cbranch_scc1 %s" % LOOP)
        event(A, 2)
    A.label(LOOP)
    if diag:
        st.flush(A, 10, P)
        A("s_mov_b32 s68, 0")
    for i in range(0, 8, 2):
        A("v_mov_b64 %s, 0" % v(D + i, 2))
    nops(A, PARAM["oc_mfd"])
    st.st(A, 0)
    ml = [ld(v(MA, 4), v(VLP), s(S_MEM)), ld(v(MA + 4, 4), v(VLP), s(S_MEM2))]
    for o in ml:
        A(o)
    for i in range(0, 32, 2):
        A("v_mov_b64 %s, 0" % v(YA + i, 2))
        if (i >> 1) % 4 == 3 and (i >> 3) < nu0:
            A(uloads[i >> 3])
    A("s_waitcnt vmcnt(%d)" % nu0)
    MF_ = A.newlabel("oc_mfail")
    MB_ = A.newlabel("oc_mback")
    A("v_max_u32 %s, %s, %s" % (v(CHK), v(MA), v(MA + 4)))
    A("v_cmp_eq_u32 vcc, -1, %s" % v(CHK))
    A("s_cbranch_vccnz %s" % MF_)
    A.label(MB_)

    def tail_mfail():
        A.label(MF_)
        spin_guard(A, abort)
        poll(A, ml, [MA, MA + 4, MA + 4], CHK, abort, 1, PARAM["oc_msleep"])
        A("s_branch %s" % MB_)
    tails.append(tail_mfail)
    st.st(A, 1)

    def yp(i):
        hh, ct = i >> 1, i & 1
        y = YA + 4 * i
        return [fadd(y, y, y + 2), fadd(y + 1, y + 1, y + 3), cvt(YP + 4 * ct + hh, y, y + 1)]

    order = [(i, j) for j in range(2) for i in [6, 7, 0, 1, 2, 3, 4, 5]]
    for L_, a0 in [(6, 0), (7, 3)]:
        reg = [(a0 + t, j) for t in range(3) for j in range(2, 7)]
        for k in range(20):
            if k % 3 == 0 and k < 15:
                order.append((L_, 2 + k // 3))
            else:
                order.append(reg.pop(0))
    vq = []
    nextf = 4
    upos = [-1] * nu0 + [PARAM["u0"] + PARAM["usp1"] * k for k in range(4 - nu0)]
    upos += [max(upos[-1], PARAM["u0"] - PARAM["usp"]) + PARAM["usp"] * (k + 1) for k in range(4)]
    fl = "buffer_load_dword %s, %s, %s, %s offen sc1" % (v(CHK), v(VFP), SRD, s(S_P))
    fpos = [55 - 3 * k for k in range(PARAM["oc_nfl"])] if PARAM["flag"] else []
    nxt = [2, 3, 0, 1]
    for n, (i, j) in enumerate(order):
        if i >= 6:
            f = frs.index((i, j))
            A(lg.wait("w%d" % f))
            bop = v(WS + 8 * (f & 3), 8)
        else:
            bop = W(i, j)
        if n == 16:
            A(lg.wait("m6"))
        A("%s %s, %s, %s, %s" % (SMF, v(YA + 4 * i, 4), v(MA + 4 * j, 4), bop, v(IDX)))
        if n < 2:
            A("ds_write_b128 %s, %s offset:%d" % (v(VLP), v(MA + 4 * n, 4), OC_MEMI + 1024 * n))
        elif n == 5:
            A("s_waitcnt lgkmcnt(0)")
            A("s_barrier")
            mr = mem_reads(lg, MA, A1)
            A(mr[0])
        elif n == 6:
            A(mr[1]); A(mr[2])
        elif n == 7:
            A(mr[3]); A(mr[4])
        elif n >= 8 and nextf < 14 and order.index(frs[nextf - 4]) < n:
            for o in stage(nextf):
                A(o)
            nextf += 1
        elif nextf >= 14 and nextf < 18 and order.index(frs[nextf - 4]) < n:
            for o in stage(nxt[nextf - 14]):
                A(o)
            nextf += 1
        if n in upos and not PARAM.get("nou"):
            A(uloads[upos.index(n)])
            if n == upos[-1]:
                A(ufl)
        if n in fpos:
            A(fl)
        if vq and vq[0][0] <= n:
            A(vq.pop(0)[1])
        if j == 6:
            vq += [(n + 2, o) for o in yp(i)]
    A("s_nop 4")
    for _, o in vq:
        A(o)
    assert nextf == 18
    st.st(A, 2)
    for r_, inc in [(S_MEM, MEM_S), (S_MEM2, MEM_S), (S_X, U_S), (S_X2, U_S)]:
        A("s_add_u32 %s, %s, %d" % (s(r_), s(r_), inc))
    A("s_waitcnt vmcnt(%d) lgkmcnt(0)" % len(fpos))
    for o in ufc:
        A(o)
    st.st(A, 5)
    if diag == 5:
        A("s_mov_b32 s78, %s" % s(S_SPIN))
    flag_wait(A, CHK, VFP, s(S_P), abort, PARAM["oc_nfl"], 0, PARAM["oc_fd"])
    if diag == 5:
        A("s_mov_b32 s72, %s" % s(S_SPIN))
        A("s_memtime s[76:77]")
    pl = [ld(v(P, 4), v(VLP), s(S_P), 0), ld(v(P + 4, 4), v(VLP), s(S_P), 1024),
          "buffer_load_dwordx2 %s, %s, %s, %s offen sc1" % (v(P + 8, 2), v(VPB), SRD, s(S_P))]

    def O(b, ct):
        if b < 2:
            return "%s %s, %s, %s, %s" % (SMF, v(D + 4 * ct, 4), v(P + 4 * b, 4), v(U + (b * 2 + ct) * 8, 8), v(IDX))
        return "%s %s, %s, %s, %s" % (SMF32, v(D + 4 * ct, 4), v(P + 8, 2), v(YP + 4 * ct, 4), v(IDX))
    spec_poll(A, pl,
              ["v_max3_u32 %s, %s, %s, %s" % (v(CHK), v(P), v(P + 4), v(P + 8)),
               "v_max_u32 %s, %s, %s" % (v(CHK), v(CHK), v(P + 9)), "v_cmp_eq_u32 vcc, -1, %s" % v(CHK)],
              [O(2, 0)], [D, D + 2], abort, PARAM["oc_sets"], PARAM["oc_gap"], PARAM["oc_nd"])
    st.st(A, 3)
    if PARAM["flag"]:
        A("s_mov_b64 exec, s[48:49]")
        A("buffer_store_dword %s, %s, %s, %s offen" % (v(IDX), v(VFS), SRD, s(S_P)))
        A("s_mov_b64 exec, -1")
    A(O(2, 1))
    A(O(0, 0))
    A(O(1, 0))
    A(O(0, 1))
    A(O(1, 1))
    A("s_cmp_eq_u32 %s, 0" % s(S_SLOW))
    A(fadd(Q, D, D + 2))
    A(fadd(Q + 2, D + 1, D + 3))
    A("s_nop 3")
    A(fadd(Q + 1, D + 4, D + 6))
    A(fadd(Q + 3, D + 5, D + 7))
    A("ds_write_b128 %s, %s" % (v(VLW), v(Q, 4)))
    for k in range(3):
        A("ds_read_b128 %s, %s" % (v(Z + 4 * k, 4), v(VX + k)))
    zr = list(range(YA, YA + 32))

    def zero(n=1):
        for i in range(n):
            A("v_mov_b32 %s, 0" % v(zr.pop(0)))
    for i in range(PARAM["oc_f"]):
        A("s_nop 1")
        zero()
    A("s_waitcnt lgkmcnt(2)")
    A(pkadd(Q, Q, Z))
    A(pkadd(Q + 2, Q + 2, Z + 2))
    A("s_waitcnt lgkmcnt(0)")
    A("v_max3_u32 %s, %s, %s, %s" % (v(CHK), v(Z), v(Z + 4), v(Z + 8)))
    A("v_cmp_eq_u32 vcc, -1, %s" % v(CHK))
    A(pkadd(Z + 4, Z + 4, Z + 8))
    A(pkadd(Z + 6, Z + 6, Z + 10))
    A(pkadd(Q, Q, Z + 4))
    A(pkadd(Q + 2, Q + 2, Z + 6))
    A(cvt(R, Q, Q + 1))
    A(cvt(R + 1, Q + 2, Q + 3))
    A("v_min_u32 %s, -2, %s" % (v(R), v(R)))
    A("v_min_u32 %s, -2, %s" % (v(R + 1), v(R + 1)))
    SL = A.newlabel("slowm")
    BK = A.newlabel("backm")
    RS = A.newlabel("resetm")
    A("s_cbranch_vccnz %s" % BK)
    A("s_cbranch_scc0 %s" % SL)
    A("buffer_store_dword %s, %s, %s, %s offen" % (v(R), v(VST), SRD, s(S_MEMN)))
    A("buffer_store_dword %s, %s, %s, %s offen offset:16" % (v(R + 1), v(VST), SRD, s(S_MEMN)))
    A.label(RS)
    if PARAM.get("mack"):
        A("s_waitcnt vmcnt(0)")
    st.st(A, 4)
    for i in range(4):
        A("v_mov_b32 %s, -1" % v(Z + i))
    A("ds_write_b128 %s, %s" % (v(VLW), v(Z, 4)))
    for k in range(3):
        A("ds_write_b128 %s, %s" % (v(VX + k), v(Z, 4)))
    A.label(BK)
    if diag == 5:
        A("s_mov_b32 s74, %s" % s(S_SPIN))

    def tail_slow():
        A.label(SL)
        A("buffer_store_dword %s, %s, %s, %s offen sc1" % (v(R), v(VST), SRD, s(S_MEMN)))
        A("buffer_store_dword %s, %s, %s, %s offen offset:16 sc1" % (v(R + 1), v(VST), SRD, s(S_MEMN)))
        A("s_branch %s" % RS)
    tails.append(tail_slow)
    for r_, inc in [(S_MEMN, MEM_S), (S_P, 16384), (S_STEP, 1)]:
        A("s_add_u32 %s, %s, %d" % (s(r_), s(r_), inc))
    A("s_barrier")
    A("s_min_u32 %s, %s, %d" % (s(S_UPG), s(S_UPG), nsteps))
    A("s_cmp_gt_u32 %s, %s" % (s(S_UPG), s(S_STEP)))
    A("s_cbranch_scc1 %s" % LOOP)
    A("s_cmp_lt_u32 %s, %d" % (s(S_STEP), nsteps))
    A("s_cbranch_scc1 %s" % UW)
    A("s_waitcnt vmcnt(0)")
    st.dump(A)
    event(A, 3)
    A("s_endpgm")
    for t in tails:
        t()


def gen_pf(A, abort):
    A("""
    s_mov_b32 {STEP}, 1
    v_lshlrev_b32 v1, 4, v0
    s_lshl_b32 s22, {W}, 11
    s_min_u32 s22, s22, 5120
    v_add_u32 v1, s22, v1
    s_mov_b32 {MEM}, 0x{M1:x}
    s_mov_b32 {X}, 0x{W1:x}
    """.format(W=s(S_W), STEP=s(S_STEP), X=s(S_X), MEM=s(S_MEM), M1=MEM + MEM_S, W1=MEMW + MEM_S))
    LOOP = A.newlabel("pf_loop")
    A.label(LOOP)
    poll(A, [ld(v(4, 4), "v1", s(S_MEM)), ld(v(8, 4), "v1", s(S_MEM), 1024)], [4, 8, 8], 2, abort, 1, 3)
    A("buffer_store_dwordx4 v[4:7], v1, %s, %s offen sc1" % (SRD, s(S_X)))
    A("buffer_store_dwordx4 v[8:11], v1, %s, %s offen offset:1024 sc1" % (SRD, s(S_X)))
    A("s_add_u32 %s, %s, %d" % (s(S_X), s(S_X), MEM_S))
    A("s_add_u32 %s, %s, %d" % (s(S_MEM), s(S_MEM), MEM_S))
    A("s_add_u32 %s, %s, 1" % (s(S_STEP), s(S_STEP)))
    A("s_waitcnt vmcnt(0)")
    A("s_sleep 16")
    A("s_cmp_lt_u32 %s, 64" % s(S_STEP))
    A("s_cbranch_scc1 %s" % LOOP)
    A("s_endpgm")


def gen_pf2(A, abort, ahead=3):
    A("""
    s_cmp_lg_u32 {W}, 0
    s_cbranch_scc1 .pf_end
    s_mov_b32 {STEP}, 0
    v_lshlrev_b32 v1, 7, v0
    v_mov_b32 v2, 0
    s_mov_b32 {Y}, 0x{XH:x}
    s_mov_b32 {MEM}, 0x{M0:x}
    s_mov_b32 {X}, 0x{M1:x}
    s_mov_b32 {P}, 0x{PM:x}
    """.format(W=s(S_W), STEP=s(S_STEP), X=s(S_X), Y=s(S_Y), XH=XH, MEM=s(S_MEM), M0=MEM, M1=MEM + MEM_S, PM=PM, P=s(S_P)))
    LOOP = A.newlabel("pf_loop")
    PL = A.newlabel("pf_poll")
    GO = A.newlabel("pf_go")
    A.label(LOOP)
    A("s_cmp_lt_u32 %s, %d" % (s(S_STEP), ahead))
    A("s_cbranch_scc1 %s" % GO)
    A.label(PL)
    spin_guard(A, abort)
    A("s_sleep 4")
    A("buffer_load_dword v3, v2, %s, %s offen sc1" % (SRD, s(S_MEM)))
    A("s_waitcnt vmcnt(0)")
    A("v_readfirstlane_b32 s22, v3")
    A("s_cmp_eq_u32 s22, -1")
    A("s_cbranch_scc1 %s" % PL)
    A("s_add_u32 %s, %s, %d" % (s(S_MEM), s(S_MEM), MEM_S))
    A.label(GO)
    A("buffer_load_dword v4, v1, %s, %s offen sc1" % (SRD, s(S_X)))
    A("buffer_load_dword v5, v1, %s, %s offen sc1" % (SRD, s(S_P)))
    A("s_add_u32 s22, %s, 8192" % s(S_P))
    A("buffer_load_dword v6, v1, %s, s22 offen sc1" % SRD)
    for i in range(4):
        A("buffer_load_dword v%d, v1, %s, %s offen sc1" % (7 + i, SRD, s(S_Y)))
        A("s_add_u32 %s, %s, 8192" % (s(S_Y), s(S_Y)))
    A("s_add_u32 %s, %s, %d" % (s(S_X), s(S_X), MEM_S))
    A("s_add_u32 %s, %s, 16384" % (s(S_P), s(S_P)))
    A("s_add_u32 %s, %s, 1" % (s(S_STEP), s(S_STEP)))
    A("s_cmp_lt_u32 %s, 63" % s(S_STEP))
    A("s_cbranch_scc1 %s" % LOOP)
    A("s_waitcnt vmcnt(0)")
    A.label(".pf_end")
    A("s_endpgm")
```

```python
NAME = "concat_heads__memory_aug_recurrent_mem_tr__linear_attn_block__prompt"

WS_BYTES = 0x10000000
AW = 0x0000000
VW = 0x0700000
UB = 0x1000000
U_S = 14 * 16 * 2 * 1024
XH = 0x2C00000
XH_S = 32768
SENT0 = 0x4000000
MEM_S = 16384
MEM = SENT0 - MEM_S
MEMW = MEM + 8192
PM = SENT0 + 0x100000
PX = SENT0 + 0x200000
PX_S = 40960
SENT1 = SENT0 + 0x500000
ZERO0 = 0x4800000
CNT = 0x4800000
KV = 0x4810000
ZERO1 = 0x4820000
DBG = 0x5000000
TXB = 0x6000000

C_XCD = 0
C_CHAIN = 8
C_KV = 11
C_UF = 32

R_U, R_SH, R_T, R_B1, R_B2 = 32, 64, 128, 192, 224


def row_i(m, hb):
    return 4 * (m >> 1) + 2 * hb + (m & 1)


def mem_off(q, m):
    return (q >> 1) * 256 + row_i(m, q & 1) * 16


def chunk_q(w, b, sig):
    v = w >> 1
    odd = w & 1
    if b == 0:
        return 28 * v + 12 * odd + sig
    if sig & 1:
        return 28 * v + 24 + (sig >> 1)
    return 28 * v + 12 * odd + 8 + (sig >> 1)


def chunk_col(q, e):
    kb, ga, hb = q >> 3, (q >> 1) & 3, q & 1
    return 64 * kb + 16 * ga + 4 * (e >> 1) + 2 * hb + (e & 1)


def tile_pos(w, tau):
    if tau < 4:
        return 0, tau
    if tau < 6:
        return 1, tau - 4
    return 1, 2 + (w & 1)


def aw_col(t, n):
    w, tau = divmod(t, 7)
    b, tp = tile_pos(w, tau)
    sig = 2 * (n >> 2) + (tp >> 1)
    e = 4 * ((n >> 1) & 1) + 2 * (tp & 1) + (n & 1)
    return chunk_col(chunk_q(w, b, sig), e)


def vw_col(t, n):
    return 64 * (t >> 2) + 4 * n + (t & 3)


class Asm:
    def __init__(self):
        self.lines = []
        self.uid = 0

    def __call__(self, s):
        for l in s.strip("\n").split("\n"):
            l = l.strip()
            if l:
                self.lines.append("    " + l)

    def label(self, l):
        self.lines.append(l + ":")

    def raw(self, s):
        self.lines.append(s)

    def newlabel(self, p="L"):
        self.uid += 1
        return ".%s_%d" % (p, self.uid)

    def text(self):
        return "\n".join(self.lines) + "\n"


def v(i, n=1):
    return "v%d" % i if n == 1 else "v[%d:%d]" % (i, i + n - 1)


def a(i, n=1):
    return "a%d" % i if n == 1 else "a[%d:%d]" % (i, i + n - 1)


def s(i, n=1):
    return "s%d" % i if n == 1 else "s[%d:%d]" % (i, i + n - 1)


def bits(A, dst, terms, add=None, tmp="v1", stmp="s28", src="v0"):
    first = True
    if add is not None:
        A("v_mov_b32 %s, %s" % (dst, add))
        first = False
    for lo, w, mul in terms:
        A("v_bfe_u32 %s, %s, %d, %d" % (tmp, src, lo, w))
        p2 = mul & (mul - 1) == 0
        sh = mul.bit_length() - 1
        if first:
            if p2:
                A("v_lshlrev_b32 %s, %d, %s" % (dst, sh, tmp))
            else:
                A("v_mul_u32_u24 %s, %d, %s" % (dst, mul, tmp))
            first = False
        elif p2:
            A("v_lshl_add_u32 %s, %s, %d, %s" % (dst, tmp, sh, dst))
        else:
            A("s_mov_b32 %s, %d" % (stmp, mul))
            A("v_mad_u32_u24 %s, %s, %s, %s" % (dst, tmp, stmp, dst))


EV = {"on": 0}


def event(A, idx, slot="s9", base=0):
    if not EV["on"]:
        return
    A("s_memrealtime s[96:97]")
    A("s_lshl_b32 s98, %s, 8" % slot)
    A("s_lshl_b32 s99, s8, 6")
    A("s_add_u32 s98, s98, s99")
    A("s_add_u32 s98, s98, 0x%x" % (DBG + 0x100000 + base + idx * 4))
    A("s_waitcnt lgkmcnt(0)")
    A("v_mov_b32 v1, s96")
    A("buffer_store_dword v1, off, s[4:7], s98")


if __name__ == "__main__":
    cols = sorted(aw_col(t, n) for t in range(28) for n in range(16))
    assert cols == list(range(448))
    cols = sorted(vw_col(t, n) for t in range(28) for n in range(16))
    assert cols == list(range(448))
    print("ok")
```

```python
from common import *
from chain import *
from k1 import srd

NEG = "0xf149f2ca"


def off(o):
    return " offset:%d" % o if o else ""


def signal(A, slot_expr_sgpr):
    L = A.newlabel("sig")
    A("s_waitcnt vmcnt(0)")
    A("s_barrier")
    A("s_cmp_lg_u32 %s, 0" % s(S_W))
    A("s_cbranch_scc1 %s" % L)
    A("s_mov_b64 exec, 1")
    A("v_mov_b32 v1, 0")
    A("v_mov_b32 v2, 1")
    A("buffer_atomic_add v2, v1, %s, %s offen" % (SRD, slot_expr_sgpr))
    A("s_mov_b64 exec, -1")
    A.label(L)


def wait_counter2(A, slot, target, abort, sleep=4):
    L = A.newlabel("wc")
    G = A.newlabel("wcg")
    A("v_mov_b32 v1, 0")
    A("s_mov_b32 s22, 0x%x" % (CNT + slot * 128))
    A.label(L)
    A("buffer_load_dword v2, v1, %s, s22 offen sc1" % SRD)
    A("s_waitcnt vmcnt(0)")
    A("v_readfirstlane_b32 s23, v2")
    A("s_cmp_ge_u32 s23, %d" % target)
    A("s_cbranch_scc1 %s" % G)
    spin_guard(A, abort)
    A("s_sleep %d" % sleep)
    A("s_branch %s" % L)
    A.label(G)


def poll_light(A, sreg, abort, sleep):
    L = A.newlabel("pl")
    G = A.newlabel("plg")
    A("v_mov_b32 v1, 0")
    A.label(L)
    A("buffer_load_dword v2, v1, %s, %s offen sc1" % (SRD, sreg))
    A("s_waitcnt vmcnt(0)")
    A("v_readfirstlane_b32 s23, v2")
    A("s_cmp_lg_u32 s23, -1")
    A("s_cbranch_scc1 %s" % G)
    spin_guard(A, abort)
    A("s_sleep %d" % sleep)
    A("s_branch %s" % L)
    A.label(G)


def xred(A, op, m, m2):
    for sw in ["v_permlane16_swap_b32", "v_permlane32_swap_b32"]:
        A("v_mov_b32 %s, %s" % (v(m2), v(m)))
        A("s_nop 1")
        A("%s %s, %s" % (sw, v(m), v(m2)))
        A("s_nop 0")
        A("%s %s, %s, %s" % (op, v(m), v(m), v(m2)))


def gen_uworker(A, abort):
    XB, ACC, TMP = 16, 48, 80
    NB = 3
    A("""
    s_load_dwordx2 s[40:41], s[0:1], 0
    s_sub_u32 s30, {R}, {R0}
    v_lshlrev_b32 v9, 4, v0
    s_mul_i32 s22, {W}, {C1}
    s_mul_i32 s23, s30, 14336
    s_add_u32 s22, s22, s23
    s_add_u32 s22, s22, 0x{VW:x}
    s_waitcnt lgkmcnt(0)
    """.format(R=s(S_ROLE), R0=R_U, W=s(S_W), C1=4 * 28 * 14336, VW=VW))
    srd(A, 12, 40, 2048 * 896)
    bits(A, "v13", [(0, 4, 896), (4, 2, 16)])
    for q in range(4):
        A("s_add_u32 s23, %s, %d" % (s(S_W), 4 * q))
        A("s_min_u32 s23, s23, 13")
        A("s_lshl_b32 s%d, s23, 6" % (44 + q))
        A("s_lshl_b32 s%d, s23, 11" % (48 + q))
    A("s_mov_b32 s52, 0")
    A("s_mov_b32 s53, 0")
    A("s_mov_b32 s54, 0")

    def dma():
        out = []
        for q in range(4):
            for m in range(2):
                out.append(["s_add_u32 s24, s53, s%d" % (48 + q),
                            "s_add_u32 m0, s24, %d" % (m * 1024),
                            "s_add_u32 s25, s52, s%d" % (44 + q),
                            "buffer_load_dwordx4 %s, s[12:15], s25 offen lds" % ("v14" if m else "v13")])
        out.append(["s_add_u32 s52, s52, %d" % (32 * 896),
                    "s_min_u32 s52, s52, %d" % (63 * 32 * 896),
                    "s_add_u32 s53, s53, 28672",
                    "s_cmp_ge_u32 s53, %d" % (NB * 28672),
                    "s_cselect_b32 s53, 0, s53"])
        return out
    A("v_add_u32 v14, %d, v13" % (16 * 896))
    for k in range(2):
        for g_ in dma():
            for o in g_:
                A(o)
    wait_dep(A, "V", "s30", abort)
    for hh in range(4):
        for ks in range(14):
            if ks & 3 == 0:
                A("s_add_u32 s23, s22, %d" % (hh * 28 * 14336 + ks * 1024))
            A("buffer_load_dwordx4 %s, v9, %s, s23 offen%s" % (a((hh * 14 + ks) * 4, 4), SRD, off((ks & 3) * 1024)))
        if hh == 2:
            A("s_waitcnt vmcnt(30)")
    A("""
    s_lshr_b32 s22, s30, 1
    s_lshl_b32 s22, s22, 15
    s_and_b32 s23, s30, 1
    s_lshl_b32 s23, s23, 10
    s_add_u32 s22, s22, s23
    s_lshl_b32 s23, {W}, 13
    s_add_u32 s22, s22, s23
    s_add_u32 s55, s22, 0x{UB:x}
    s_add_u32 s56, s55, 4096
    s_lshr_b32 s22, s30, 2
    s_lshl_b32 s22, s22, 2
    s_add_u32 s22, s22, {W}
    s_lshl_b32 s22, s22, 7
    s_and_b32 s23, s30, 3
    s_lshl_b32 s23, s23, 2
    s_add_u32 s22, s22, s23
    s_add_u32 s57, s22, 0x{UF:x}
    s_mov_b32 {STEP}, 0
    v_mov_b32 v10, 0
    s_waitcnt vmcnt(0)
    """.format(W=s(S_W), UB=UB, UF=CNT + C_UF * 128, STEP=s(S_STEP)))
    event(A, 1)
    LOOP = A.newlabel("uw_loop")
    A.label(LOOP)
    A("v_add_u32 v11, s54, v9")
    A("s_waitcnt vmcnt(%d)" % 17)
    A("s_barrier")

    def xr(ks):
        return ["ds_read_b128 %s, v11%s" % (v(XB + ((ks & 3) * 2 + m) * 4, 4), off(ks * 2048 + m * 1024)) for m in range(2)]
    for ks in range(3):
        for o in xr(ks):
            A(o)
    A("s_sub_u32 s22, %s, 2" % s(S_STEP))
    A("s_max_i32 s22, s22, 0")
    A("v_mov_b32 v12, s22")
    A("s_mov_b64 exec, 1")
    A("buffer_store_dword v12, v10, %s, s57 offen sc1" % SRD)
    A("s_mov_b64 exec, -1")
    d_ = dma()
    for ks in range(14):
        A("s_waitcnt lgkmcnt(%d)" % (2 * min(2, 13 - ks)))
        n = 0
        for hh in range(4):
            for m in range(2):
                d = v(ACC + (hh * 2 + m) * 4, 4)
                A("%s %s, %s, %s, %s" % (MF32, d, v(XB + ((ks & 3) * 2 + m) * 4, 4), a((hh * 14 + ks) * 4, 4), d if ks else "0"))
                if n < 2 and ks + 3 < 14:
                    A(xr(ks + 3)[n])
                if n == 3 and d_:
                    for o in d_.pop(0):
                        A(o)
                n += 1
    A("s_add_u32 s54, s54, 28672")
    A("s_cmp_ge_u32 s54, %d" % (NB * 28672))
    A("s_cselect_b32 s54, 0, s54")
    for hh in range(4):
        t = TMP + 4 * hh
        if hh == 3:
            A("s_nop 3")
        for m in range(2):
            r = ACC + (hh * 2 + m) * 4
            A(cvt(t + 2 * m, r, r + 1))
            A(cvt(t + 2 * m + 1, r + 2, r + 3))
        A("buffer_store_dwordx4 %s, v9, %s, s%d offen%s sc1" % (v(t, 4), SRD, 55 + (hh >> 1), off((hh & 1) * 2048)))
    A("s_add_u32 s55, s55, %d" % U_S)
    A("s_add_u32 s56, s56, %d" % U_S)
    A("s_add_u32 %s, %s, 1" % (s(S_STEP), s(S_STEP)))
    A("s_cmp_lt_u32 %s, 64" % s(S_STEP))
    A("s_cbranch_scc1 %s" % LOOP)
    A("s_waitcnt vmcnt(0)")
    A("v_mov_b32 v12, 64")
    A("s_mov_b64 exec, 1")
    A("buffer_store_dword v12, v10, %s, s57 offen sc1" % SRD)
    A("s_mov_b64 exec, -1")
    event(A, 3)
    A("s_endpgm")


def gen_tworker(A, abort):
    NT = 4
    XB, ACC = 16, 48
    TX, XF, SX, SM, MFR = 16, 48, 80, 96, 48
    VA, VB, VX, VXW, VXR, VMW, VMR, CHK = 104, 105, 106, 107, 108, 109, 110, 111
    m, m2, PO = 112, 113, 114
    RX, RM = 57344, 57344 + 16384
    S_SEG = S_STEP

    def W(tau, ks):
        i = (tau * 14 + ks) * 4
        return a(i, 4) if i < 256 else v(120 + i - 256, 4)
    A("""
    s_load_dwordx2 s[40:41], s[0:1], 0
    s_sub_u32 s22, {R}, {R0}
    s_lshr_b32 s30, s22, 2
    s_and_b32 {SEG}, s22, 3
    v_lshlrev_b32 v9, 4, v0
    s_waitcnt lgkmcnt(0)
    """.format(R=s(S_ROLE), R0=R_T, SEG=s(S_SEG)))
    srd(A, 12, 40, 2048 * 896)
    bits(A, "v13", [(0, 4, 896), (4, 2, 16)])
    A("v_add_u32 v14, %d, v13" % (16 * 896))
    for q in range(4):
        A("s_add_u32 s23, %s, %d" % (s(S_W), 4 * q))
        A("s_min_u32 s23, s23, 13")
        A("s_lshl_b32 s%d, s23, 6" % (44 + q))
        A("s_lshl_b32 s%d, s23, 11" % (48 + q))
    A("s_mul_i32 s52, %s, %d" % (s(S_SEG), 32 * 896))
    A("s_mov_b32 s53, 0")

    def dma():
        out = []
        for q in range(4):
            for mm in range(2):
                out.append(["s_add_u32 s24, s53, s%d" % (48 + q),
                            "s_add_u32 m0, s24, %d" % (mm * 1024),
                            "s_add_u32 s25, s52, s%d" % (44 + q),
                            "buffer_load_dwordx4 %s, s[12:15], s25 offen lds" % ("v14" if mm else "v13")])
        out.append(["s_add_u32 s52, s52, %d" % (NT * 32 * 896),
                    "s_min_u32 s52, s52, %d" % (63 * 32 * 896),
                    "s_xor_b32 s53, s53, 28672"])
        return out
    for g_ in dma():
        for o in g_:
            A(o)
    wait_dep(A, "A", "s30", abort)
    A("""
    s_mul_i32 s22, s30, %d
    s_mul_i32 s23, %s, %d
    s_add_u32 s22, s22, s23
    s_add_u32 s22, s22, 0x%x
    """ % (28 * 14336, s(S_W), 7 * 14336, AW))
    for n in range(98):
        if n & 3 == 0:
            A("s_add_u32 s23, s22, %d" % (n * 1024))
        A("buffer_load_dwordx4 %s, v9, %s, s23 offen%s" % (W(n // 14, n % 14), SRD, off((n & 3) * 1024)))
        if n % 16 == 15 and n >= 47:
            A("s_waitcnt vmcnt(40)")
    bits(A, v(VA), [(4, 2, 256), (2, 2, 64), (0, 1, 16)])
    bits(A, v(VB), [(5, 1, 256), (4, 1, 32), (2, 2, 64), (0, 1, 16)])
    bits(A, v(VX), [(5, 1, 1024), (4, 1, 512), (0, 4, 16)])
    A("""
    s_and_b32 s29, {W}, 1
    s_lshl_b32 s22, s29, 4
    v_and_b32 v1, 15, v0
    v_add_u32 v1, s22, v1
    v_lshrrev_b32 v2, 4, v0
    v_lshlrev_b32 v2, 2, v2
    v_sub_u32 v3, v1, v2
    s_sub_u32 s54, s29, 1
    s_not_b32 s55, s54
    s_lshl_b32 s22, {W}, 12
    s_add_u32 s22, s22, {RX}
    v_add_u32 {VXW}, s22, v9
    s_lshl_b32 s22, s29, 11
    s_add_u32 s22, s22, {RX}
    v_add_u32 {VXR}, s22, v9
    s_lshl_b32 s22, {W}, 10
    s_add_u32 s22, s22, {RM}
    v_lshl_add_u32 {VMW}, v0, 3, s22
    s_lshl_b32 s22, s29, 9
    s_add_u32 s22, s22, {RM}
    v_lshl_add_u32 {VMR}, v0, 3, s22
    s_lshr_b32 s22, {W}, 1
    s_mul_i32 s22, s22, {C28}
    s_mul_i32 s23, s29, {C12}
    s_add_u32 s56, s22, s23
    s_add_u32 s56, s56, 0x{MEMW:x}
    s_add_u32 s57, s22, 0x{MEMW2:x}
    s_lshl_b32 s58, {W}, 13
    s_add_u32 s58, s58, 0x{XH:x}
    s_mul_i32 s22, s29, 20480
    s_add_u32 s22, s22, 0x{PX:x}
    s_lshr_b32 s23, s30, 2
    s_lshl_b32 s23, s23, 10
    s_and_b32 s24, s30, 3
    s_lshl_b32 s24, s24, 2
    s_add_u32 s23, s23, s24
    s_add_u32 s23, s23, s22
    s_add_u32 s43, s23, 16384
    s_lshl_b32 s24, s30, 10
    s_add_u32 s42, s22, s24
    """.format(W=s(S_W), RX=RX, RM=RM, VXW=v(VXW), VXR=v(VXR), VMW=v(VMW), VMR=v(VMR), C28=28 * 128, C12=12 * 128,
               MEMW=MEMW, MEMW2=MEMW + 24 * 128, XH=XH, PX=PX))
    for kt in range(2):
        for r in range(4):
            A("v_cmp_le_i32 %s, %d, v3" % (s(60 + 2 * (kt * 4 + r), 2), 16 * kt + r))
    wait_dep(A, "F", None, abort)
    if EV["on"]:
        A("s_waitcnt vmcnt(0)")
        event(A, 1)
    LOOP = A.newlabel("tw_loop")
    A.label(LOOP)
    A("s_xor_b32 s22, s53, 28672")
    A("v_add_u32 v11, s22, v9")
    A("s_waitcnt vmcnt(0)")
    A("s_barrier")

    def xr(ks):
        return ["ds_read_b128 %s, v11%s" % (v(XB + ((ks & 3) * 2 + mm) * 4, 4), off(ks * 2048 + mm * 1024)) for mm in range(2)]
    for ks in range(2):
        for o in xr(ks):
            A(o)
    d_ = dma()
    for ks in range(14):
        A("s_waitcnt lgkmcnt(%d)" % (2 * min(1, 13 - ks)))
        n = 0
        for rt in range(2):
            for tau in range(7):
                d = v(ACC + (rt * 7 + tau) * 4, 4)
                A("%s %s, %s, %s, %s" % (MF32, d, W(tau, ks), v(XB + ((ks & 3) * 2 + rt) * 4, 4), d if ks else "0"))
                if n < 2 and ks + 2 < 14:
                    A(xr(ks + 2)[n])
                if n == 3 and d_:
                    for o in d_.pop(0):
                        A(o)
                n += 1
    A("""
    s_lshl_b32 s22, {SEG}, 15
    s_add_u32 s24, s22, s58
    s_add_u32 s25, s24, 4096
    s_lshl_b32 s22, {SEG}, 14
    s_add_u32 s26, s22, s56
    s_add_u32 s27, s22, s57
    """.format(SEG=s(S_SEG)))
    for rt in range(2):
        for pp in range(3):
            t = TX + (rt * 4 + pp) * 4
            r0 = ACC + (rt * 7 + 2 * pp) * 4
            r1 = r0 + 4
            A(cvt(t, r0, r0 + 1))
            A(cvt(t + 1, r1, r1 + 1))
            A(cvt(t + 2, r0 + 2, r0 + 3))
            A(cvt(t + 3, r1 + 2, r1 + 3))
        t = TX + (rt * 4 + 3) * 4
        r0 = ACC + (rt * 7 + 6) * 4
        A(cvt(t, r0, r0 + 1))
        A(cvt(t + 2, r0 + 2, r0 + 3))
        A("v_and_b32 %s, s55, %s" % (v(t + 1), v(t)))
        A("v_and_b32 %s, s55, %s" % (v(t + 3), v(t + 2)))
        A("v_and_b32 %s, s54, %s" % (v(t), v(t)))
        A("v_and_b32 %s, s54, %s" % (v(t + 2), v(t + 2)))
    for p in range(4):
        for kt in range(2):
            A("buffer_load_dwordx4 %s, %s, %s, s%d offen%s" % (v(XF + (p * 2 + kt) * 4, 4), v(VX), SRD, 24 + (p >> 1), off((p & 1) * 256 + kt * 2048)))
    for p in range(4):
        A("s_waitcnt vmcnt(%d)" % (6 - 2 * p))
        for rt in range(2):
            for kt in range(2):
                d = v(SX + (rt * 2 + kt) * 4, 4)
                A("%s %s, %s, %s, %s" % (MF32, d, v(XF + (p * 2 + kt) * 4, 4), v(TX + (rt * 4 + p) * 4, 4), d if p else "0"))
    A("s_nop 7")
    for i in range(4):
        A("ds_write_b128 %s, %s%s" % (v(VXW), v(SX + 4 * i, 4), off(i * 1024)))
    A("s_waitcnt lgkmcnt(0)")
    A("s_barrier")
    for w in range(4):
        for kt in range(2):
            A("ds_read_b128 %s, %s%s" % (v(XF + (w * 2 + kt) * 4, 4), v(VXR), off(w * 4096 + kt * 1024)))
    A("v_mov_b32 %s, %s" % (v(m2), NEG))
    A("s_waitcnt lgkmcnt(0)")
    for i in range(0, 8, 2):
        A(pkadd(XF + i, XF + i, XF + 8 + i))
        A(pkadd(XF + 16 + i, XF + 16 + i, XF + 24 + i))
        A(pkadd(SX + i, XF + i, XF + 16 + i))
    for i in range(8):
        A("v_cndmask_b32 %s, %s, %s, %s" % (v(SX + i), v(m2), v(SX + i), s(60 + 2 * i, 2)))
    A("v_max3_f32 %s, %s, %s, %s" % (v(m), v(SX), v(SX + 1), v(SX + 2)))
    A("v_max3_f32 %s, %s, %s, %s" % (v(m), v(m), v(SX + 3), v(SX + 4)))
    A("v_max3_f32 %s, %s, %s, %s" % (v(m), v(m), v(SX + 5), v(SX + 6)))
    A("v_max_f32 %s, %s, %s" % (v(m), v(m), v(SX + 7)))
    A("s_mul_i32 s22, %s, %d" % (s(S_SEG), PX_S))
    A("s_add_u32 s24, s22, s42")
    A("s_add_u32 s25, s22, s43")
    ml = [ld(v(MFR, 4), v(VA), "s26"), ld(v(MFR + 4, 4), v(VA), "s26", 32), ld(v(MFR + 8, 4), v(VB), "s26", 1024), ld(v(MFR + 12, 4), v(VB), "s27")]
    poll(A, ml, range(MFR, MFR + 16), CHK, abort, 1, PARAM.get("tw_sleep", 4))
    for p in range(4):
        for rt in range(2):
            d = v(SM + 4 * rt, 4)
            A("%s %s, %s, %s, %s" % (MF32, d, v(MFR + 4 * p, 4), v(TX + (rt * 4 + p) * 4, 4), d if p else "0"))
    A("s_nop 6")
    A("ds_write_b64 %s, %s" % (v(VMW), v(SM, 2)))
    A("s_nop 3")
    A("ds_write_b64 %s, %s offset:512" % (v(VMW), v(SM + 4, 2)))
    A("s_waitcnt lgkmcnt(0)")
    A("s_barrier")
    NEXT = A.newlabel("tw_next")
    A("s_cmp_ge_u32 %s, 2" % s(S_W))
    A("s_cbranch_scc1 %s" % NEXT)
    for w in range(4):
        A("ds_read_b64 %s, %s%s" % (v(SM + 2 * w, 2), v(VMR), off(w * 1024)))
    A("s_waitcnt lgkmcnt(0)")
    A(pkadd(SM, SM, SM + 2))
    A(pkadd(SM + 4, SM + 4, SM + 6))
    A(pkadd(SX + 8, SM, SM + 4))
    A("v_max3_f32 %s, %s, %s, %s" % (v(m), v(m), v(SX + 8), v(SX + 9)))
    xred(A, "v_max_f32", m, m2)
    for i in range(10):
        A("v_sub_f32 %s, %s, %s" % (v(SX + i), v(SX + i), v(m)))
    for i in range(10):
        A("v_exp_f32 %s, %s" % (v(SX + i), v(SX + i)))
    A("s_nop 0")
    A("v_add_f32 %s, %s, %s" % (v(m), v(SX), v(SX + 1)))
    for i in range(2, 10):
        A("v_add_f32 %s, %s, %s" % (v(m), v(m), v(SX + i)))
    xred(A, "v_add_f32", m, m2)
    A("v_rcp_f32 %s, %s" % (v(m), v(m)))
    A("s_nop 0")
    for i in range(10):
        A("v_mul_f32 %s, %s, %s" % (v(SX + i), v(SX + i), v(m)))
    for i in range(5):
        A(cvt(PO + i, SX + 2 * i, SX + 2 * i + 1))
        A("v_min_u32 %s, -2, %s" % (v(PO + i), v(PO + i)))
    A("buffer_store_dwordx4 %s, v9, %s, s24 offen sc1" % (v(PO, 4), SRD))
    A("buffer_store_dword %s, v9, %s, s25 offen sc1" % (v(PO + 4), SRD))
    A.label(NEXT)
    A("s_add_u32 %s, %s, %d" % (s(S_SEG), s(S_SEG), NT))
    A("s_cmp_lt_u32 %s, 64" % s(S_SEG))
    A("s_cbranch_scc1 %s" % LOOP)
    A("s_waitcnt vmcnt(0)")
    event(A, 3)
    A("s_endpgm")


def gen_shadow(A, abort):
    SETS = [16, 100]
    YA, YP, D, RT, CHK, IDX = 184, 200, 204, 212, 228, 229
    VG, VU, VU2, VL4, VLW, VO = 10, 11, 12, 13, 14, 15
    A("""
    s_load_dwordx2 s[40:41], s[0:1], 80
    s_sub_u32 s30, {R}, {R0}
    s_lshr_b32 s56, s30, 5
    s_and_b32 s30, s30, 31
    s_lshr_b32 s31, s30, 2
    s_and_b32 s29, s30, 3
    s_lshl_b32 s29, s29, 6
    v_lshlrev_b32 v9, 4, v0
    v_add_u32 {VL4}, 4096, v9
    s_mul_i32 s22, {W}, {C1}
    s_mul_i32 s23, s31, {C2}
    s_add_u32 s22, s22, s23
    s_add_u32 s22, s22, s29
    s_add_u32 s22, s22, 0x{VW:x}
    """.format(R=s(S_ROLE), R0=R_SH, VL4=v(VL4), W=s(S_W), C1=4 * 28 * 14336, C2=4 * 14336, VW=VW))
    bits(A, v(VG), [(0, 2, 14336), (4, 2, 256), (2, 2, 16)])
    wait_dep(A, "V", "s30", abort)
    for hh in range(4):
        for ks in range(14):
            if ks & 3 == 0:
                A("s_add_u32 s23, s22, %d" % (hh * 28 * 14336 + ks * 1024))
            A("buffer_load_dwordx4 %s, %s, %s, s23 offen%s" % (a((hh * 14 + ks) * 4, 4), v(VG), SRD, off((ks & 3) * 1024)))
    bits(A, v(VU), [(1, 1, 32768), (0, 1, 1024), (4, 2, 256), (2, 2, 16)])
    A("v_add_u32 %s, 4096, %s" % (v(VU2), v(VU)))
    idx_const(A, IDX)
    A("s_waitcnt lgkmcnt(0)")
    srd(A, 12, 40, 2048 * 1792)
    A("""
    s_lshl_b32 s44, s31, 16
    s_lshl_b32 s23, {W}, 13
    s_add_u32 s44, s44, s23
    s_add_u32 s44, s44, s29
    s_add_u32 s44, s44, 0x{UB:x}
    s_mov_b32 s45, 0x{MEMW:x}
    s_lshl_b32 s46, {W}, 12
    s_add_u32 s46, s46, 0x{PX:x}
    s_add_u32 s47, s46, 20480
    s_lshl_b32 s48, {W}, 10
    s_add_u32 s48, s48, 0x{PXM:x}
    s_add_u32 s49, s48, 20480
    s_mul_i32 s50, {W}, {RT}
    s_lshl_b32 s23, s30, 5
    s_add_u32 s50, s50, s23
    s_lshl_b32 s23, {W}, 11
    v_add_u32 {VLW}, s23, v9
    s_lshl_b32 s23, {W}, 10
    v_add_u32 v8, s23, v9
    s_mov_b32 {STEP}, s56
    s_lshl_b32 s57, s31, 2
    s_add_u32 s57, s57, {W}
    s_lshl_b32 s57, s57, 7
    s_add_u32 s57, s57, 0x{UF:x}
    s_mov_b32 s58, 0
    """.format(W=s(S_W), UB=UB, MEMW=MEMW, PX=PX, PXM=PX + 16384, RT=16 * 1792, VLW=v(VLW), STEP=s(S_STEP), UF=CNT + C_UF * 128))
    for r_, inc in [(44, U_S), (45, MEM_S), (46, PX_S), (47, PX_S), (48, PX_S), (49, PX_S), (50, 32 * 1792)]:
        A("s_mul_i32 s23, s56, %d" % inc)
        A("s_add_u32 s%d, s%d, s23" % (r_, r_))
    bits(A, v(VO), [(0, 4, 1792), (4, 2, 8)])

    def wait_u(ahead):
        L = A.newlabel("shu")
        G = A.newlabel("shug")
        A("s_add_u32 s59, %s, %d" % (s(S_STEP), ahead))
        A("s_min_u32 s59, s59, 63")
        A("s_cmp_gt_u32 s58, s59")
        A("s_cbranch_scc1 %s" % G)
        A("v_mov_b32 v1, 0")
        A.label(L)
        A("buffer_load_dwordx4 v[4:7], v1, %s, s57 offen sc1" % SRD)
        spin_guard(A, abort)
        A("s_waitcnt vmcnt(0)")
        A("v_min_u32 v4, v4, v5")
        A("v_min3_u32 v4, v4, v6, v7")
        A("s_nop 0")
        A("v_readfirstlane_b32 s58, v4")
        A("s_cmp_gt_u32 s58, s59")
        A("s_cbranch_scc1 %s" % G)
        A("s_sleep 8")
        A("s_branch %s" % L)
        A.label(G)
    wait_dep(A, "F", None, abort)
    wait_u(0)
    event(A, 1)

    def mloads(X, sreg):
        return [ld(v(X + 4 * j, 4), "v9" if j < 4 else v(VL4), sreg, (j & 3) * 1024) for j in range(7)]

    def ploads(X, b):
        out = []
        for rt in range(2):
            for hh in range(4):
                out.append(ld(v(X + 28 + (rt * 5 + hh) * 4, 4), "v9", "s%d" % (b + rt), hh * 1024))
            out.append(ld(v(X + 28 + (rt * 5 + 4) * 4, 4), "v9", "s%d" % (b + 2 + rt)))
        return out

    def uloads(X):
        return [ld(v(X + 68 + 4 * hh, 4), v(VU) if hh < 2 else v(VU2), "s44", (hh & 1) * 2048) for hh in range(4)]

    for o in uloads(SETS[0]) + mloads(SETS[0], "s45") + ploads(SETS[0], 46):
        A(o)
    LOOP = A.newlabel("sh_loop")
    A.label(LOOP)
    for par in range(2):
        X, XN = SETS[par], SETS[1 - par]
        for i in range(16):
            A("v_mov_b32 %s, 0" % v(YA + i))
        OK = A.newlabel("sh_mok")
        A("s_waitcnt vmcnt(10)")
        for i in chk_ops(CHK, range(X, X + 28)):
            A(i)
        A("v_cmp_eq_u32 vcc, -1, %s" % v(CHK))
        A("s_cbranch_vccz %s" % OK)
        poll_light(A, "s45", abort, 2)
        poll(A, mloads(X, "s45"), range(X, X + 28), CHK, abort, 1, 1)
        A.label(OK)
        for j in range(7):
            for hh in range(4):
                A("%s %s, %s, %s, %s" % (SMF, v(YA + 4 * hh, 4), v(X + 4 * j, 4), a((hh * 7 + j) * 8, 8), v(IDX)))
        for i in range(4):
            A("s_mov_b32 s%d, s%d" % (52 + i, 46 + i))
            A("s_add_u32 s%d, s%d, %d" % (46 + i, 46 + i, 2 * PX_S))
        A("s_add_u32 s44, s44, %d" % (2 * U_S))
        A("s_add_u32 s45, s45, %d" % (2 * MEM_S))
        wait_u(2)
        for o in uloads(XN) + mloads(XN, "s45") + ploads(XN, 46):
            A(o)
        for hh in range(4):
            y = YA + 4 * hh
            A("v_add_f32 %s, %s, %s" % (v(y), v(y), v(y + 2)))
            A("v_add_f32 %s, %s, %s" % (v(y + 1), v(y + 1), v(y + 3)))
            A(cvt(YP + hh, y, y + 1))
        OK = A.newlabel("sh_pok")
        A("s_waitcnt vmcnt(21)")
        for i in chk_ops(CHK, range(X + 28, X + 68)):
            A(i)
        A("v_cmp_eq_u32 vcc, -1, %s" % v(CHK))
        A("s_cbranch_vccz %s" % OK)
        poll(A, ploads(X, 52), range(X + 28, X + 68), CHK, abort, 1, 4)
        A.label(OK)
        for hh in range(5):
            for rt in range(2):
                d = v(D + 4 * rt, 4)
                aop = v(X + 68 + 4 * hh, 4) if hh < 4 else v(YP, 4)
                A("%s %s, %s, %s, %s" % (MF32, d, aop, v(X + 28 + (rt * 5 + hh) * 4, 4), d if hh else "0"))
        A("s_nop 7")
        for rt in range(2):
            A("ds_write_b128 %s, %s%s" % (v(VLW), v(D + 4 * rt, 4), off(par * 8192 + rt * 1024)))
        A("s_waitcnt lgkmcnt(0)")
        A("s_barrier")
        SK = A.newlabel("sh_skip")
        A("s_cmp_ge_u32 %s, 2" % s(S_W))
        A("s_cbranch_scc1 %s" % SK)
        for k in range(4):
            A("ds_read_b128 %s, v8%s" % (v(RT + 4 * k, 4), off(par * 8192 + k * 2048)))
        A("s_waitcnt lgkmcnt(0)")
        A(pkadd(RT, RT, RT + 4))
        A(pkadd(RT + 2, RT + 2, RT + 6))
        A(pkadd(RT + 8, RT + 8, RT + 12))
        A(pkadd(RT + 10, RT + 10, RT + 14))
        A(pkadd(RT, RT, RT + 8))
        A(pkadd(RT + 2, RT + 2, RT + 10))
        A(cvt(RT, RT, RT + 1))
        A(cvt(RT + 1, RT + 2, RT + 3))
        A("buffer_store_dwordx2 %s, %s, s[12:15], s50 offen" % (v(RT, 2), v(VO)))
        A.label(SK)
        A("s_add_u32 s50, s50, %d" % (64 * 1792))
        A("s_add_u32 %s, %s, 2" % (s(S_STEP), s(S_STEP)))
    A("s_cmp_lt_u32 %s, 64" % s(S_STEP))
    A("s_cbranch_scc1 %s" % LOOP)
    A("s_waitcnt vmcnt(0)")
    event(A, 3)
    A("s_endpgm")


def gen_bworker(A, abort):
    XB, RAW, WP, ACC = 16, 80, 112, 128
    VXR, VKM, VKE, VONE = 14, 15, 3, 4
    LOG2E = "0x3fb8aa3b"
    EPS = "0x358637bd"
    A("""
    s_load_dwordx8 s[48:55], s[0:1], 56
    s_sub_u32 s30, {R}, {R0}
    s_lshr_b32 s22, s30, 1
    s_sub_u32 s23, s30, 32
    s_cmp_lt_u32 s30, 32
    s_cselect_b32 s30, s22, s23
    v_lshlrev_b32 v9, 4, v0
    s_mov_b32 s60, 0x05040100
    s_mov_b32 s61, 0x07060302
    s_mov_b32 s62, {L}
    s_mov_b32 s63, {E}
    s_waitcnt lgkmcnt(0)
    """.format(R=s(S_ROLE), R0=R_B1, L=LOG2E, E=EPS))
    srd(A, 12, 48, 2048 * 896)
    srd(A, 32, 50, 448 * 2688)
    srd(A, 36, 52, 448 * 896)
    srd(A, 40, 54, 2048 * 1792)
    bits(A, "v13", [(0, 4, 896), (4, 2, 16)])
    A("""
    s_mul_i32 s24, s30, %d
    s_mul_i32 s25, %s, %d
    s_add_u32 s24, s24, s25
    s_add_u32 s25, s24, %d
    s_lshl_b32 s23, %s, 11
    """ % (128 * 896, s(S_W), 32 * 896, 16 * 896, s(S_W)))
    for ks in range(14):
        for m in range(2):
            A("s_add_u32 m0, s23, %d" % (ks * 8192 + m * 1024 - ks * 64))
            A("s_nop 0")
            A("buffer_load_dwordx4 v13, s[12:15], s%d offen%s lds" % (24 + m, off(ks * 64)))

    def offs12():
        bits(A, "v10", [(4, 2, 8 * 2688), (0, 4, 4)])
        A("""
        v_and_b32 v1, 15, v0
        v_cmp_le_u32 vcc, 14, v1
        v_mov_b32 v2, 0x10000000
        s_nop 0
        v_cndmask_b32 v2, 0, v2, vcc
        v_add_u32 v10, v10, v2
        v_add_u32 v11, %d, v10
        v_add_u32 v12, %d, v10
        v_add_u32 v13, %d, v10
        """ % (2 * 2688, 4 * 2688, 6 * 2688))
    A("s_waitcnt vmcnt(0)")
    offs12()
    A("""
    v_cndmask_b32 {VKM}, 1.0, 0, vcc
    v_mul_f32 {VKE}, s63, {VKM}
    v_cmp_eq_u32 vcc, 14, v1
    v_mov_b32 v2, 0x3f803f80
    s_nop 0
    v_cndmask_b32 {VONE}, 0, v2, vcc
    v_lshlrev_b32 v8, 2, v0
    s_barrier
    """.format(VKM=v(VKM), VKE=v(VKE), VONE=v(VONE)))

    def acc(pr, u, mt):
        return ACC + ((pr * 2 + u) * 8 + mt) * 4

    def gemm(nks, sr, addr, step, rows, swapped):
        def raw(st):
            for pr in range(2):
                for j in range(8):
                    vr, o = addr(pr, j)
                    A("buffer_load_dword %s, %s, %s, s44 offen%s" % (v(RAW + st * 16 + pr * 8 + j), vr, sr, off(o)))
            A("s_add_u32 s44, s44, %d" % step)

        def xr(st):
            for mt in range(8):
                A("ds_read_b128 %s, %s%s" % (v(XB + st * 32 + mt * 4, 4), v(VXR), off(mt * 1024)))
            A("v_add_u32 %s, 0x2000, %s" % (v(VXR), v(VXR)))
        raw(0)
        A("v_mov_b32 %s, v9" % v(VXR))
        xr(0)
        for i in range(128):
            A("v_mov_b32 %s, 0" % v(ACC + i))
        A("s_mov_b32 s45, %d" % (nks // 2))
        L = A.newlabel("bg")
        A.label(L)
        for par in range(2):
            raw(1 - par)
            A("s_waitcnt vmcnt(16)")
            for pr in range(2):
                for u in range(2):
                    for p in range(4):
                        r0, r1 = rows[p]
                        b = RAW + par * 16 + pr * 8
                        A("v_perm_b32 %s, %s, %s, s%d" % (v(WP + (pr * 2 + u) * 4 + p), v(b + r1), v(b + r0), 60 + u))
            A("s_waitcnt lgkmcnt(0)")
            xr(1 - par)
            for mt in range(8):
                for pr in range(2):
                    for u in range(2):
                        d = v(acc(pr, u, mt), 4)
                        x = v(XB + par * 32 + mt * 4, 4)
                        w = v(WP + (pr * 2 + u) * 4, 4)
                        p_, q_ = (w, x) if swapped else (x, w)
                        A("%s %s, %s, %s, %s" % (MF32, d, p_, q_, d))
        A("s_sub_u32 s45, s45, 1")
        A("s_cmp_lg_u32 s45, 0")
        A("s_cbranch_scc1 %s" % L)
        A("s_waitcnt vmcnt(0) lgkmcnt(0)")
        A("s_nop 7")

    def phi(r, n, masked):
        t = XB
        for i in range(n):
            A("v_mul_f32 %s, s62, %s" % (v(t + i), v(r + i)))
        for i in range(n):
            A("v_min_f32 %s, 0, %s" % (v(t + i), v(t + i)))
        for i in range(n):
            A("v_exp_f32 %s, %s" % (v(t + i), v(t + i)))
        for i in range(n):
            A("v_max_f32 %s, 0, %s" % (v(r + i), v(r + i)))
        for i in range(n):
            A("v_add_f32 %s, %s, %s" % (v(r + i), v(r + i), v(t + i)))
        for i in range(n):
            if masked:
                A("v_fma_f32 %s, %s, %s, %s" % (v(r + i), v(r + i), v(VKM), v(VKE)))
            else:
                A("v_add_f32 %s, s63, %s" % (v(r + i), v(r + i)))

    rows12 = [(0, 1), (2, 3), (4, 5), (6, 7)]
    A("s_cmp_ge_u32 %s, %d" % (s(S_ROLE), R_B2))
    A("s_cbranch_scc1 .b_p2")
    A("s_and_b32 s31, %s, 1" % s(S_ROLE))
    A("s_lshl_b32 s31, s31, 2")
    A("s_add_u32 s31, s31, %s" % s(S_W))
    A("s_lshl_b32 s31, s31, 1")
    A("s_mov_b32 s29, 0")
    P1 = A.newlabel("b_p1")
    A.label(P1)
    A("s_mul_i32 s44, s31, 56")
    A("s_add_u32 s44, s44, 896")
    gemm(14, "s[32:35]", lambda pr, j: ("v%d" % (10 + (j >> 1)), (j & 1) * 2688 + pr * 896), 32 * 2688, rows12, False)
    phi(ACC, 64, True)
    for pr in range(2):
        for u in range(2):
            for q in range(4):
                r = acc(pr, u, 2 * q)
                for i in range(4):
                    A(cvt(r + i, r + 2 * i, r + 2 * i + 1))
                    if pr == 1 and u == 0:
                        A("v_or_b32 %s, %s, %s" % (v(r + i), v(r + i), v(VONE)))
    A("s_nop 1")
    for q in range(4):
        for dt in range(2):
            for et in range(2):
                d = v(XB + (dt * 2 + et) * 4, 4)
                A("%s %s, %s, %s, %s" % (MF32, d, v(acc(0, dt, 2 * q), 4), v(acc(1, et, 2 * q), 4), d if q else "0"))
    A("s_lshl_b32 s22, s31, 12")
    A("s_add_u32 s22, s22, 0x%x" % KV)
    wait_dep(A, "F", None, abort)
    A("s_nop 7")
    for i in range(16):
        A("buffer_atomic_add_f32 %s, v8, %s, s22 offen%s" % (v(XB + i), SRD, off(i * 256)))
    A("s_add_u32 s31, s31, 1")
    A("s_add_u32 s29, s29, 1")
    A("s_cmp_lt_u32 s29, 2")
    A("s_waitcnt vmcnt(0)")
    A("s_cbranch_scc1 %s" % P1)
    A("s_mov_b32 s26, 0x%x" % (CNT + C_KV * 128))
    signal(A, "s26")
    event(A, 1)
    A("s_endpgm")
    A.label(".b_p2")
    for it in range(2):
        A("s_mul_i32 s44, %s, 224" % s(S_W))
        A("s_add_u32 s44, s44, %d" % (it * 112))
        gemm(14, "s[32:35]", lambda pr, j: ("v%d" % (10 + (j >> 1)), (j & 1) * 2688 + pr * 56), 32 * 2688, rows12, True)
        phi(ACC, 64, False)
        phi(ACC + 64, 64, False)
        for pr in range(2):
            for mt in range(8):
                for u in range(2):
                    r = acc(pr, u, mt)
                    A(cvt(r, r, r + 1))
                    A(cvt(r + 1, r + 2, r + 3))
                    for i in range(2):
                        A("v_accvgpr_write_b32 %s, %s" % (a(((2 * it + pr) * 8 + mt) * 4 + 2 * u + i), v(r + i)))
    event(A, 1)
    wait_counter2(A, C_KV, 32, abort)
    A("s_barrier")
    bits(A, "v10", [(4, 2, 64)], 56)
    A("""
    v_cmp_gt_u32 vcc, 48, v0
    s_lshl_b32 s22, {W}, 15
    v_add_u32 v12, s22, v9
    v_cndmask_b32 v11, 0, -1, vcc
    s_lshl_b32 s22, {W}, 14
    s_add_u32 s22, s22, 0x{KV:x}
    """.format(W=s(S_W), KV=KV))
    for hh in range(4):
        b = ACC + hh * 24
        for i in range(16):
            A("buffer_load_dword %s, v8, %s, s22 offen%s sc1" % (v(b + i), SRD, off(i * 256)))
        for dt in range(2):
            for r in range(4):
                A("buffer_load_dword %s, v10, %s, s22 offen%s sc1" % (v(b + 16 + dt * 4 + r), SRD, off((dt * 8 + r) * 256)))
        A("s_add_u32 s22, s22, 4096")
        if hh == 1:
            A("s_waitcnt vmcnt(0)")
    A("s_waitcnt vmcnt(0)")
    F = RAW
    for hh in range(4):
        b = ACC + hh * 24
        for et in range(2):
            for dt in range(2):
                r = b + (dt * 2 + et) * 4
                A(cvt(F + hh * 12 + et * 4 + 2 * dt, r, r + 1))
                A(cvt(F + hh * 12 + et * 4 + 2 * dt + 1, r + 2, r + 3))
        for i in range(4):
            A(cvt(F + hh * 12 + 8 + i, b + 16 + 2 * i, b + 16 + 2 * i + 1))
    A("s_nop 1")
    for hh in range(4):
        for mt in range(8):
            for k in range(3):
                A("%s %s, %s, %s, 0" % (MF32, v(ACC + (mt * 3 + k) * 4, 4), v(F + hh * 12 + 4 * k, 4), a((hh * 8 + mt) * 4, 4)))
        A("s_nop 7")
        for mt in range(8):
            d = ACC + mt * 12
            A("v_add_f32 %s, s63, %s" % (v(d + 8), v(d + 8)))
            A("v_rcp_f32 %s, %s" % (v(d + 8), v(d + 8)))
            A("s_nop 0")
            for i in range(8):
                A("v_mul_f32 %s, %s, %s" % (v(d + i), v(d + i), v(d + 8)))
            for i in range(4):
                A(cvt(d + i, d + 2 * i, d + 2 * i + 1))
            A("v_and_b32 %s, %s, v11" % (v(d + 1), v(d + 1)))
            A("v_and_b32 %s, %s, v11" % (v(d + 3), v(d + 3)))
            A("ds_write_b128 v12, %s%s" % (v(d, 4), off((hh * 8 + mt) * 1024)))
        A("s_waitcnt lgkmcnt(0)")
    A("s_barrier")
    event(A, 2)
    bits(A, "v10", [(4, 2, 8 * 896), (0, 4, 4)])
    A("v_add_u32 v11, %d, v10" % (4 * 896))
    bits(A, "v12", [(0, 4, 1792), (4, 2, 16)])
    A("s_mov_b32 s31, %s" % s(S_W))
    P3 = A.newlabel("b_p3")
    A.label(P3)
    A("s_lshl_b32 s44, s31, 7")
    gemm(16, "s[36:39]", lambda pr, j: ("v%d" % (10 + (j >> 2)), (j & 3) * 896 + pr * 64), 28 * 896,
         [(0, 2), (4, 6), (1, 3), (5, 7)], True)
    A("""
    s_mul_i32 s22, s30, %d
    s_lshl_b32 s23, s31, 7
    s_add_u32 s22, s22, s23
    s_add_u32 s22, s22, 896
    """ % (128 * 1792))
    for mt in range(8):
        for pr in range(2):
            t = XB + (mt * 2 + pr) * 4
            for r in range(4):
                A(cvt(t + r, acc(pr, 0, mt) + r, acc(pr, 1, mt) + r))
            A("buffer_store_dwordx4 %s, v12, s[40:43], s22 offen%s" % (v(t, 4), off(pr * 64)))
        A("s_add_u32 s22, s22, %d" % (16 * 1792))
    A("s_add_u32 s31, s31, 4")
    A("s_cmp_lt_u32 s31, 7")
    A("s_waitcnt vmcnt(0)")
    A("s_cbranch_scc1 %s" % P3)
    event(A, 3)
    A("s_endpgm")
```

```python
import sys
from common import *
from chain import *
from k1 import gen_k1
from workers import *

HEADER = open("cdna_kernels/%s.s.ref" % NAME).read().split("; Override launch")[0]


def kdesc(A, name, nvgpr=512, acc=256, nsgpr=102):
    A.raw(".amdhsa_kernel %s" % name)
    A.raw("  .amdhsa_next_free_vgpr %d" % nvgpr)
    A.raw("  .amdhsa_next_free_sgpr %d" % nsgpr)
    A.raw("  .amdhsa_accum_offset %d" % acc)
    A.raw("  .amdhsa_group_segment_fixed_size 0")
    A.raw("  .amdhsa_kernarg_size 104")
    A.raw("  .amdhsa_user_sgpr_count 2")
    A.raw("  .amdhsa_user_sgpr_kernarg_segment_ptr 1")
    A.raw("  .amdhsa_system_sgpr_workgroup_id_x 1")
    A.raw(".end_amdhsa_kernel")


def kstart(A, name):
    A.raw(".globl %s" % name)
    A.raw(".p2align 8")
    A.raw(".type %s,@function" % name)
    A.label(name)


def gen_k2_entry(A):
    A("""
    s_load_dwordx2 s[4:5], s[0:1], 96
    v_lshrrev_b32 v1, 6, v0
    s_getreg_b32 s10, hwreg(HW_REG_XCC_ID)
    s_mov_b32 s6, 0x%x
    s_mov_b32 s7, 0x00020000
    v_readfirstlane_b32 s8, v1
    v_and_b32 v0, 63, v0
    s_and_b32 s10, s10, 7
    s_mov_b32 s19, 0x%x
    s_waitcnt lgkmcnt(0)
    s_and_b32 s5, s5, 0xffff
    s_cmp_lg_u32 s8, 0
    s_cbranch_scc1 .k2_wait_role
    s_mov_b32 s22, s10
    s_mov_b32 s23, 0
    v_mov_b32 v1, 0
    s_mov_b64 exec, 1
    """ % (WS_BYTES, SPIN_MAX))
    A.label(".k2_claim")
    A("""
    s_lshl_b32 s24, s22, 7
    s_add_u32 s24, s24, 0x%x
    v_mov_b32 v2, 1
    buffer_atomic_add v2, v1, s[4:7], s24 offen sc0
    s_waitcnt vmcnt(0)
    v_readfirstlane_b32 s25, v2
    s_cmp_lt_u32 s25, 32
    s_cbranch_scc1 .k2_got
    s_add_u32 s22, s22, 1
    s_and_b32 s22, s22, 7
    s_add_u32 s23, s23, 1
    s_cmp_lt_u32 s23, 8
    s_cbranch_scc1 .k2_claim
    s_mov_b32 s9, 256
    s_branch .k2_pub
    """ % (CNT + C_XCD * 128))
    A.label(".k2_got")
    A("""
    s_lshl_b32 s9, s22, 5
    s_add_u32 s9, s9, s25
    s_cmp_lg_u32 s22, 0
    s_cbranch_scc1 .k2_pub
    s_cmp_lg_u32 s10, 0
    s_cselect_b32 s25, 0x10001, 1
    v_mov_b32 v2, s25
    s_mov_b32 s24, 0x%x
    buffer_atomic_add v2, v1, s[4:7], s24 offen
    """ % (CNT + C_CHAIN * 128))
    A.label(".k2_pub")
    A("""
    v_mov_b32 v2, s9
    ds_write_b32 v1, v2
    s_mov_b64 exec, -1
    s_waitcnt lgkmcnt(0)
    """)
    A.label(".k2_wait_role")
    A("""
    s_barrier
    v_mov_b32 v1, 0
    ds_read_b32 v2, v1
    s_waitcnt lgkmcnt(0)
    v_readfirstlane_b32 s9, v2
    s_barrier
    """)


def build_full(diag=0):
    A = Asm()
    A.raw(HEADER.rstrip("\n"))
    K1 = "fold_kernel"
    K = NAME + "_kernel"
    A.raw("; @launch kernel=%s grid=(256,1,1) block=(256,1,1) lds=32768" % K1)
    A.raw("; @launch kernel=%s grid=(256,1,1) block=(256,1,1) lds=160000" % K)
    A.raw('.amdgcn_target "amdgcn-amd-amdhsa--gfx950"')
    A.raw(".text")
    A.raw("; diag%d" % diag)
    kstart(A, K1)
    gen_k1(A, " sc1" if PARAM.get("k1sc1") else "")
    kstart(A, K)
    gen_k2_entry(A)
    event(A, 0)
    A("""
    s_cmp_lt_u32 s9, 16
    s_cbranch_scc1 .role_score
    s_cmp_lt_u32 s9, 30
    s_cbranch_scc1 .role_out
    s_cmp_eq_u32 s9, 30
    s_cbranch_scc1 .role_pf
    s_cmp_eq_u32 s9, 31
    s_cbranch_scc1 .role_pf2
    s_cmp_ge_u32 s9, %d
    s_cbranch_scc1 .role_none
    s_cmp_ge_u32 s9, %d
    s_cbranch_scc1 .role_bw
    s_cmp_ge_u32 s9, %d
    s_cbranch_scc1 .role_tw
    s_and_b32 s22, s9, 31
    s_cmp_ge_u32 s22, 28
    s_cbranch_scc1 .role_none
    s_cmp_ge_u32 s9, %d
    s_cbranch_scc1 .role_sh
    s_branch .role_uw
    """ % (R_B2 + 16, R_B1, R_T, R_SH))
    A.label(".role_none")
    A("s_endpgm")
    A.label(".abort")
    A("""
    s_load_dwordx2 s[4:5], s[0:1], 88
    s_mov_b32 s6, 256
    s_mov_b32 s7, 0x00020000
    s_mov_b64 exec, -1
    v_mov_b32 v1, 0
    v_mov_b32 v2, s9
    v_or_b32 v2, 0xdead0000, v2
    s_waitcnt lgkmcnt(0)
    s_and_b32 s5, s5, 0xffff
    buffer_store_dword v2, v1, s[4:7], 0 offen
    s_endpgm
    """)
    A.label(".role_pf")
    gen_pf(A, ".abort")
    A.label(".role_pf2")
    gen_pf2(A, ".abort")
    A.label(".role_score")
    gen_score(A, ".abort", diag)
    A.label(".role_out")
    gen_out(A, ".abort", diag)
    A.label(".role_sh")
    gen_shadow(A, ".abort")
    A.label(".role_uw")
    gen_uworker(A, ".abort")
    A.label(".role_tw")
    gen_tworker(A, ".abort")
    A.label(".role_bw")
    gen_bworker(A, ".abort")
    A.raw('.section .rodata,"a"')
    A.raw(".p2align 6")
    kdesc(A, K1)
    A.raw(".p2align 6")
    kdesc(A, K)
    return A.text()


if __name__ == "__main__":
    diag = 0
    for x in sys.argv[2:]:
        k, val = x.split("=")
        if k == "diag":
            diag = int(val)
        elif k == "ev":
            EV["on"] = int(val)
        else:
            PARAM[k] = int(val)
    out = sys.argv[1]
    open(out, "w").write(build_full(diag))
```

```python
from common import *

SRD = "s[4:7]"
S_W, S_ROLE, S_XCC, S_STEP = 8, 9, 10, 11
S_MEM, S_MEM2, S_P, S_X, S_X2, S_Y, S_SLOW, S_SPIN = 12, 13, 14, 15, 16, 17, 18, 19
S_MEMN, S_XL = 20, 21
S_KB = 32
SPIN_MAX = 1 << 20

SMF = "v_smfmac_f32_16x16x64_bf16"
SMF32 = "v_smfmac_f32_16x16x32_bf16"
MF32 = "v_mfma_f32_16x16x32_bf16"
MF16 = "v_mfma_f32_16x16x16_bf16"

PARAM = dict(sc_sleep=8, oc_sleep=8, oc_msleep=1, sc_sets=2, oc_sets=2, spread=1, ymode=0, ahead=0)


def ld(dst, voff, soff, off=0, flags="sc1"):
    o = " offset:%d" % off if off else ""
    return "buffer_load_dwordx4 %s, %s, %s, %s offen%s %s" % (dst, voff, SRD, soff, o, flags)


def chk_ops(chk, regs):
    out = []
    regs = list(regs)
    out.append("v_max3_u32 %s, %s, %s, %s" % (v(chk), v(regs[0]), v(regs[1]), v(regs[2])))
    regs = regs[3:]
    while len(regs) >= 2:
        out.append("v_max3_u32 %s, %s, %s, %s" % (v(chk), v(chk), v(regs[0]), v(regs[1])))
        regs = regs[2:]
    if regs:
        out.append("v_max_u32 %s, %s, %s" % (v(chk), v(chk), v(regs[0])))
    return out


def spin_guard(A, abort):
    A("s_sub_u32 %s, %s, 1" % (s(S_SPIN), s(S_SPIN)))
    A("s_cbranch_scc1 %s" % abort)


class Stamps:
    def __init__(self, lvl):
        self.lvl = lvl

    def st(self, A, i):
        if self.lvl == 4:
            A("s_memrealtime s[%d:%d]" % (60 + 2 * i, 61 + 2 * i))
        elif self.lvl >= 2 or (self.lvl == 1 and i == 0):
            A("s_memtime s[%d:%d]" % (60 + 2 * i, 61 + 2 * i))

    LB = 131072

    def flush(self, A, n, tmp):
        if not self.lvl:
            return
        A("s_lshl_b32 s58, %s, 12" % s(S_W))
        A("s_lshl_b32 s59, %s, 6" % s(S_STEP))
        A("s_add_u32 s58, s58, s59")
        A("s_add_u32 s58, s58, %d" % self.LB)
        A("v_mbcnt_lo_u32_b32 %s, -1, 0" % v(tmp + 1))
        A("v_lshl_add_u32 %s, %s, 2, s58" % (v(tmp + 1), v(tmp + 1)))
        A("s_waitcnt lgkmcnt(0)")
        for i in range(n):
            if self.lvl == 1 and i not in (0, 4):
                continue
            A("v_writelane_b32 %s, s%d, %d" % (v(tmp), 60 + 2 * i, i))
        A("s_mov_b64 exec, 0xffff")
        A("ds_write_b32 %s, %s" % (v(tmp + 1), v(tmp)))
        A("s_mov_b64 exec, -1")

    def dump(self, A):
        if not self.lvl:
            return
        A("s_lshl_b32 s58, %s, 12" % s(S_W))
        A("s_add_u32 s59, s58, %d" % self.LB)
        A("v_mbcnt_lo_u32_b32 v0, -1, 0")
        A("v_mbcnt_hi_u32_b32 v0, -1, v0")
        A("v_lshlrev_b32 v0, 4, v0")
        A("v_add_u32 v1, s59, v0")
        for i in range(4):
            A("ds_read_b128 %s, v1 offset:%d" % (v(4 + 4 * i, 4), i * 1024))
        A("s_lshl_b32 s59, %s, 14" % s(S_ROLE))
        A("s_add_u32 s58, s58, s59")
        A("s_add_u32 s58, s58, 0x%x" % DBG)
        A("s_waitcnt lgkmcnt(0)")
        for i in range(4):
            A("buffer_store_dwordx4 %s, v0, %s, s58 offen offset:%d" % (v(4 + 4 * i, 4), SRD, i * 1024))


class Lg:
    def __init__(self):
        self.n = 0
        self.done = 0
        self.tag = {}

    def issue(self, op, tag):
        self.n += 1
        self.tag[tag] = self.n
        return op

    def wait(self, tag):
        if self.tag[tag] <= self.done:
            return ""
        self.done = self.tag[tag]
        k = self.n - self.tag[tag]
        assert k <= 15
        return "s_waitcnt lgkmcnt(%d)" % k


DSRD = "s[92:95]"


def wait_dep(A, kind, sreg, abort, sleep=2):
    L = A.newlabel("wd")
    G = A.newlabel("wdg")
    msk = None
    if kind == "V":
        A("s_and_b32 s100, %s, 28" % sreg)
        A("s_add_u32 s100, s100, %s" % s(S_W))
        A("s_lshl_b32 s100, s100, 7")
        A("s_add_u32 s100, s100, 0x%x" % (CNT + C_V * 128))
        l, tgt = "buffer_load_dword v1, off, %s, s100 sc1" % SRD, 8
    elif kind == "A":
        A("s_lshl_b32 s100, %s, 7" % sreg)
        A("s_add_u32 s100, s100, 0x%x" % (CNT + C_A * 128))
        l, tgt = "buffer_load_dword v1, off, %s, s100 sc1" % SRD, 14
    else:
        l = "buffer_load_dword v1, off, %s, 0 offset:%d sc1" % (DSRD, D_MISC)
        tgt = msk = {"C": 0x2020, "M": 0x20, "F": 0x10000020}[kind]
    A.label(L)
    A(l)
    spin_guard(A, abort)
    A("s_waitcnt vmcnt(0)")
    A("v_readfirstlane_b32 s101, v1")
    if msk:
        A("s_and_b32 s100, s101, 0x%x" % msk)
        A("s_cmp_eq_u32 s100, 0x%x" % tgt)
    else:
        A("s_cmp_ge_u32 s101, %d" % tgt)
    A("s_cbranch_scc1 %s" % G)
    A("s_sleep %d" % sleep)
    A("s_branch %s" % L)
    A.label(G)
    if kind == "C":
        A("s_bfe_u32 %s, s101, 0x80010" % s(S_SLOW))


def wait_counter(A, t0, slot, target, abort):
    L = A.newlabel("wc")
    A("v_mov_b32 %s, 0" % v(t0))
    A("s_mov_b32 s22, 0x%x" % (CNT + slot * 128))
    A.label(L)
    spin_guard(A, abort)
    A("buffer_load_dword %s, %s, %s, s22 offen sc1" % (v(t0 + 1), v(t0), SRD))
    A("s_waitcnt vmcnt(0)")
    A("v_readfirstlane_b32 s23, %s" % v(t0 + 1))
    A("s_cmp_lt_u32 s23, %d" % target)
    A("s_cbranch_scc1 %s" % L)


def poll(A, loads, regs, CHK, abort, sets=2, sleep=0):
    L = A.newlabel("pm")
    G = A.newlabel("pmg")
    if sets == 2:
        for l in loads:
            A(l)
        A("s_nop 15")
        A("s_nop 7")
    A.label(L)
    for l in loads:
        A(l)
    A("s_waitcnt vmcnt(%d)" % (len(loads) if sets == 2 else 0))
    for i in chk_ops(CHK, regs):
        A(i)
    A("v_cmp_eq_u32 vcc, -1, %s" % v(CHK))
    A("s_cbranch_vccz %s" % G)
    spin_guard(A, abort)
    if sleep:
        A("s_sleep %d" % sleep)
    A("s_branch %s" % L)
    A.label(G)


def slot_consts(A, VLP, A1, memi):
    A("v_lshlrev_b32 v9, 4, v0")
    A("s_lshl_b32 s22, %s, 1" % s(S_W))
    for j in range(7):
        A("s_add_u32 s23, s22, %d" % j)
        A("s_cmp_ge_u32 s23, 7")
        A("s_cselect_b32 s24, 7, 0")
        A("s_sub_u32 s23, s23, s24")
        A("s_lshl_b32 s%d, s23, 11" % (S_KB + j))
    A("s_lshl_b32 s22, %s, 11" % s(S_W))
    A("v_add_u32 %s, s22, v9" % v(VLP))
    for i in range(3):
        A("s_lshr_b32 s23, s%d, 1" % (S_KB + 2 + 2 * i))
        A("s_add_u32 s23, s23, %d" % memi)
        A("v_add_u32 %s, s23, v9" % v(A1 + i))
    A("s_mov_b32 %s, 0x%x" % (s(S_MEM), MEM))
    A("s_lshr_b32 s23, s%d, 1" % (S_KB + 1))
    A("s_sub_u32 s23, s23, s22")
    A("s_add_u32 %s, s23, 0x%x" % (s(S_MEM2), MEM))


def mem_reads(lg, MA, A1):
    out = []
    for j in range(2, 7):
        i = (j - 2) >> 1
        out.append(lg.issue("ds_read_b128 %s, %s offset:%d" % (v(MA + 4 * j, 4), v(A1 + i), (j & 1) * 1024), "m%d" % j))
    return out


SC_MEMI, SC_XL = 8192, 16384
SRS = 56


def idx_const(A, IDX):
    A("""
    v_and_b32 v1, 2, v0
    v_mov_b32 v2, 0x4444
    v_mov_b32 v3, 0xeeee
    v_cmp_eq_u32 vcc, 0, v1
    s_nop 1
    v_cndmask_b32 %s, v3, v2, vcc
    """ % v(IDX))


def pkadd(d, a_, b_):
    return "v_pk_add_f32 %s, %s, %s" % (v(d, 2), v(a_, 2), v(b_, 2))


def cvt(d, a_, b_):
    return "v_cvt_pk_bf16_f32 %s, %s, %s" % (v(d), v(a_), v(b_))


PARAM.update(dict(sc_nd=2, oc_nd=2, sc_gap=24, oc_gap=24, pfa=3, upf=0, mask=0, fillz=1, dsp=5, sync=0, nobar=1, sc_dly=4, sc_f2=2, oc_f=3, nu1=4, oc_sleep=0, usp=4, sc_sleep=4))


PF_FL = ["sc1", "", "nt"]
PARAM.update(dict(upos=31, pffl=0, ufl=0, d0=8, dsp=3, upf=0, pfa=0, flag=1, sc_fpos=2, sc_sleep=0, sc_nfl=3, sc_fgap=10, sc_fd=0,
                  oc_nfl=3, oc_fgap=10, oc_fd=0, oc_mfd=24, nu0=0, u0=0, usp1=2, sc_sets=1, oc_sets=1))
MEM_FL = 12288
P_FL = 10240
S_NOFL = 50


def flag_wait(A, F, VF, sbase, abort, nfl, gap, dly):
    if not PARAM["flag"]:
        return
    L = A.newlabel("fw")
    G = A.newlabel("fwg")
    l = "buffer_load_dword %s, %s, %s, %s offen sc1" % (v(F), v(VF), SRD, sbase)
    A("s_cmp_lg_u32 %s, 0" % s(S_NOFL))
    A("s_cbranch_scc1 %s" % G)
    for k in range(nfl if gap else 0):
        A(l)
        nops(A, gap)
    A.label(L)
    A(l)
    spin_guard(A, abort)
    A("s_waitcnt vmcnt(%d)" % nfl)
    A("v_cmp_eq_u32 vcc, -1, %s" % v(F))
    A("s_cbranch_vccnz %s" % L)
    nops(A, dly)
    A.label(G)


def fadd(d, a_, b_):
    return "v_add_f32 %s, %s, %s" % (v(d), v(a_), v(b_))


def nops(A, n):
    while n > 0:
        k = min(n, 16)
        A("s_nop %d" % (k - 1))
        n -= k


def spec_poll(A, loads, chk, spec, zero, abort, sets, gap, nd):
    L = A.newlabel("sp")
    for k in range(sets - 1):
        for l in loads:
            A(l)
        nops(A, gap)
    A.label(L)
    for l in loads:
        A(l)
    spin_guard(A, abort)
    if PARAM["mask"]:
        A("s_mov_b64 exec, -1")
    for i in range(max(nd, len(zero))):
        A("v_mov_b64 %s, 0" % v(zero[i % len(zero)], 2))
    A("s_waitcnt vmcnt(%d)" % (len(loads) * (sets - 1)))
    for o in chk:
        A(o)
    for o in spec:
        A(o)
    if PARAM["mask"]:
        A("s_mov_b64 exec, vcc")
    A("s_cbranch_vccnz %s" % L)
    if PARAM["mask"]:
        A("s_mov_b64 exec, -1")


def gen_score(A, abort, diag=0, nsteps=63):
    MA, T, MH0, XR, SAB = 0, 28, 56, 64, 96
    BS, BS3, IDX, VLP, VH0, VH1, VP, VLW, VLR, CHK = 108, 110, 112, 113, 114, 115, 116, 117, 118, 119
    MH1 = MA
    SA = [SAB, SAB + 4, SAB + 8]
    S_A1, S_UP, S_UPS, S_PF, S_FB = 40, 43, 44, 46, 47
    st = Stamps(diag)

    def W(tau, j):
        i = (tau * 7 + j) * 8
        return a(i, 8) if i < 256 else v(120 + i - 256, 8)

    def Wh(tau, j, hf):
        i = (tau * 14 + 2 * j + hf) * 4
        return a(i, 4) if i < 256 else v(120 + i - 256, 4)

    slot_consts(A, VLP, 10, SC_MEMI)
    for i in range(3):
        A("s_lshr_b32 s23, s%d, 1" % (S_KB + 2 + 2 * i))
        A("s_add_u32 s23, s23, %d" % SC_MEMI)
        A("s_sub_u32 s%d, s23, s22" % (S_A1 + i))
    A("""
    s_mul_i32 s22, %s, %d
    s_mul_i32 s23, %s, %d
    s_add_u32 s22, s22, s23
    s_add_u32 s22, s22, 0x%x
    """ % (s(S_ROLE), 28 * 14336, s(S_W), 7 * 14336, AW))
    wait_dep(A, "C", None, abort)
    wait_dep(A, "A", s(S_ROLE), abort)
    event(A, 2)
    n = 0
    for tau in range(7):
        for j in range(7):
            A("s_add_u32 s23, s22, s%d" % (S_KB + j))
            for hf in range(2):
                A(ld(Wh(tau, j, hf), "v9", "s23", hf * 1024, "nt"))
                n += 1
                if n % 16 == 0 and n >= 48:
                    A("s_waitcnt vmcnt(40)")
        A("s_add_u32 s22, s22, 14336")
    idx_const(A, IDX)
    A("""
    v_bfe_u32 v1, v0, 2, 2
    v_bfe_u32 v2, v0, 4, 2
    v_xor_b32 v1, v1, v2
    v_and_b32 v2, 3, v0
    v_lshl_or_b32 v3, v1, 2, v2
    v_mov_b32 v4, 0x3f80
    v_mov_b32 v5, 0x3f800000
    """)
    for r in range(2):
        A("""
        v_cmp_eq_u32 vcc, %d, v3
        v_cmp_eq_u32 s[22:23], %d, v3
        s_nop 1
        v_cndmask_b32 v6, 0, v4, vcc
        v_cndmask_b32 v7, 0, v5, s[22:23]
        v_or_b32 %s, v6, v7
        """ % (2 * r, 2 * r + 1, v(BS + r)))
    A("""
    s_and_b32 s24, {W}, 1
    s_cmp_eq_u32 s24, 1
    s_cselect_b64 s[22:23], -1, 0
    v_cndmask_b32 {BS3}, {BS0}, {BS1}, s[22:23]
    v_mov_b32 {BS3b}, 0
    s_lshr_b32 s25, {W}, 1
    s_mul_i32 s25, s25, 28
    s_mul_i32 s26, s24, 12
    s_add_u32 s25, s25, s26
    s_lshl_b32 s25, s25, 7
    s_add_u32 s25, s25, {MEMI}
    s_sub_u32 s26, 16, s26
    s_lshl_b32 s26, s26, 7
    """.format(W=s(S_W), MEMI=SC_MEMI, BS3=v(BS3), BS3b=v(BS3 + 1), BS0=v(BS), BS1=v(BS + 1)))
    bits(A, v(VH0), [(5, 1, 256), (1, 2, 64), (4, 1, 32), (0, 1, 16)], "s25")
    A("s_add_u32 s25, s25, 1024")
    bits(A, v(VH1), [(1, 2, 64), (5, 1, 32), (0, 1, 16)], "s25")
    A("v_bfe_u32 v1, v0, 4, 1")
    A("v_mad_u32_u24 %s, v1, s26, %s" % (v(VH1), v(VH1)))
    A("""
    s_lshl_b32 s22, {R}, 9
    s_lshl_b32 s23, {W}, 6
    s_add_u32 s22, s22, s23
    s_lshr_b32 s23, {R}, 2
    s_lshl_b32 s23, s23, 9
    s_lshl_b32 s24, {W}, 5
    s_add_u32 s23, s23, s24
    s_and_b32 s24, {R}, 1
    s_lshl_b32 s24, s24, 4
    s_add_u32 s23, s23, s24
    s_and_b32 s24, {R}, 2
    s_lshl_b32 s24, s24, 1
    s_add_u32 s23, s23, s24
    s_add_u32 s23, s23, 8192
    s_mul_i32 s24, {W}, {RS2}
    s_add_u32 s25, s24, 64
    v_and_b32 v2, 16, v0
    v_cmp_ne_u32 vcc, 0, v2
    """.format(R=s(S_ROLE), W=s(S_W), RS2=2 * SRS * 4))
    bits(A, "v2", [(3, 1, 256), (2, 1, 32), (5, 1, 16), (0, 2, 4)], "s22")
    bits(A, "v3", [(0, 2, 128), (5, 1, 8)], "s23")
    A("v_cndmask_b32 %s, v2, v3, vcc" % v(VP))
    bits(A, "v2", [(5, 1, SRS * 4), (0, 1, 64), (3, 1, 32), (1, 1, 16), (2, 1, 8)], "s25")
    bits(A, "v3", [(5, 1, SRS * 4), (0, 2, 8)], "s24")
    A("v_cndmask_b32 %s, v2, v3, vcc" % v(VLR))
    A("s_mul_i32 s24, %s, %d" % (s(S_W), SRS * 32))
    bits(A, v(VLW), [(4, 2, 2 * SRS * 4), (0, 4, 4)], "s24")
    A("s_mov_b32 %s, 0" % s(S_STEP))
    A("s_mov_b32 %s, 0x%x" % (s(S_P), PM))
    A("s_mul_i32 %s, %s, 6144" % (s(S_X), s(S_W)))
    A("s_add_u32 %s, %s, 0x%x" % (s(S_X), s(S_X), XH))
    A("s_lshl_b32 %s, %s, 11" % (s(S_XL), s(S_W)))
    A("s_add_u32 %s, %s, %d" % (s(S_XL), s(S_XL), SC_XL))
    A("""
    s_lshl_b32 s22, {R}, 15
    s_add_u32 {UP}, s22, 0x{UB:x}
    s_mov_b32 {UPS}, {US}
    s_cmp_ge_u32 {R}, 14
    s_cselect_b32 {UP}, 0x{XH:x}, {UP}
    s_cselect_b32 {UPS}, {XS}, {UPS}
    s_cmp_eq_u32 {R}, 15
    s_cselect_b32 {UP}, 0x{XH2:x}, {UP}
    v_lshlrev_b32 {C}, 2, {VLP}
    s_lshl_b32 s22, {R}, 2
    s_mul_i32 s23, {W}, 65408
    s_add_u32 {PF}, s22, 0x{PMF:x}
    s_sub_u32 {PF}, {PF}, s23
    s_lshl_b32 {FB}, {W}, 6
    s_lshl_b32 s22, {R}, 8
    s_add_u32 {FB}, {FB}, s22
    s_mov_b32 {NOFL}, 1
    """.format(R=s(S_ROLE), W=s(S_W), UP=s(S_UP), UPS=s(S_UPS), UB=UB + 4096, US=U_S, XH=XH + XH_S, XH2=XH + XH_S + 4096, XS=XH_S,
               C=v(CHK), VLP=v(VLP), PF=s(S_PF), PMF=PM + P_FL, FB=s(S_FB), NOFL=s(S_NOFL)))
    for i in range(PARAM["pfa"]):
        A("buffer_load_dword v5, %s, %s, %s offen %s" % (v(CHK), SRD, s(S_UP), PF_FL[PARAM["pffl"]]))
        A("s_add_u32 %s, %s, %s" % (s(S_UP), s(S_UP), s(S_UPS)))

    def xh_dma():
        out = []
        for k in range(4):
            out.append(["s_add_u32 m0, %s, %d" % (s(S_XL), k * 8192),
                        "s_add_u32 s22, %s, %d" % (s(S_X), k * 2048),
                        "buffer_load_dwordx4 %s, %s, s22 offen lds" % (v(VLP), SRD),
                        "buffer_load_dwordx4 %s, %s, s22 offen offset:1024 lds" % (v(VLP), SRD)])
        return out

    for g_ in xh_dma():
        for o in g_:
            A(o)
    if EV["on"]:
        A("s_waitcnt vmcnt(0)")
    event(A, 1)
    for i in range(28):
        A("v_mov_b32 %s, 0" % v(T + i))
    A("v_mov_b32 v2, -1")
    A("v_mov_b32 v3, -1")
    for k in range(4):
        A("ds_write_b64 %s, v[2:3] offset:%d" % (v(VLR), k * SRS * 32))
    A("s_movk_i32 s45, 2000")

    def M(tau, j):
        return "%s %s, %s, %s, %s" % (SMF, v(T + 4 * tau, 4), v(MA + 4 * j, 4), W(tau, j), v(IDX))

    def TPr(tau):
        return T + 4 if tau == 6 else T + 8 * (tau >> 1) + 2 + (tau & 1)
    D = [T + 4, T + 12, T + 20, T + 24]
    DP = [T, T + 8]

    def c(tau):
        t = T + 4 * tau
        return [fadd(t, t, t + 2), fadd(t + 1, t + 1, t + 3), cvt(TPr(tau), t, t + 1)]

    def d(p):
        dst = DP[p >> 1] + 2 * (p & 1)
        return [cvt(dst, D[p], D[p] + 1), cvt(dst + 1, D[p] + 2, D[p] + 3)]

    def X(p):
        return "%s %s, %s, %s, 0" % (MF16, v(D[p], 4), v(TPr(2 * p), 2), v(BS if p < 3 else BS3, 2))

    def S(b, u):
        bop = v((MH0, MH1)[b], 8) if u == 0 else v(XR + (b * 2 + u - 1) * 8, 8)
        return "%s %s, %s, %s, %s" % (SMF, v(SA[u], 4), v(DP[b], 4), bop, v(IDX))

    LOOP = A.newlabel("sc_loop")
    A.label(LOOP)
    for i in range(12):
        A("v_mov_b32 %s, 0" % v(SAB + i))
    for i in range(3):
        A("v_add_u32 %s, s%d, %s" % (v(MA + 8 + 8 * i), S_A1 + i, v(VLP)))
    A("s_add_u32 %s, %s, %d" % (s(S_X), s(S_X), XH_S))
    A("s_waitcnt vmcnt(0)")
    for i in range(8):
        A("ds_read_b128 %s, %s offset:%d" % (v(XR + 4 * i, 4), v(VLP), SC_XL + (i >> 1) * 8192 + (i & 1) * 1024))
    st.st(A, 0)
    if diag == 5:
        A("s_mov_b32 s86, %s" % s(S_SPIN))
    A("v_bfe_u32 %s, %s, 4, 4" % (v(MH0), v(VLP)))
    A("v_lshl_add_u32 %s, %s, 2, %s" % (v(MH0), v(MH0), s(S_FB)))
    A("s_add_u32 s22, %s, %d" % (s(S_P), (MEM_FL - 16384) & 0xffffffff))
    flag_wait(A, MH0 + 1, MH0, "s22", abort, PARAM["sc_nfl"], PARAM["sc_fgap"], PARAM["sc_fd"])
    if diag == 5:
        A("s_mov_b32 s78, %s" % s(S_SPIN))
        A("s_memtime s[84:85]")
    spec_poll(A, [ld(v(MA, 4), v(VLP), s(S_MEM)), ld(v(MA + 4, 4), v(VLP), s(S_MEM2))],
              ["v_max_u32 %s, %s, %s" % (v(CHK), v(MA), v(MA + 4)), "v_cmp_eq_u32 vcc, -1, %s" % v(CHK)],
              [M(0, 0)], [T, T + 2], abort, PARAM["sc_sets"], PARAM["sc_gap"], PARAM["sc_nd"])
    st.st(A, 1)

    mf = [M(t, 0) for t in range(7)] + [M(t, 1) for t in range(7)]
    for t in range(7):
        for j in range(2, 7):
            mf.append(M(t, j))
        if t in (2, 4):
            mf.append(X((t >> 1) - 1))
    mf += [S(0, 1), X(2), S(0, 0), X(3), S(0, 2)]
    assert len(mf) == 56
    nv = {i: [] for i in range(56)}
    va = {i: [] for i in range(56)}

    def rd(j):
        return "ds_read_b128 %s, %s%s" % (v(MA + 4 * j, 4), v(MA + 8 * (j >> 1)), " offset:1024" if j & 1 else "")
    nv[0] += ["ds_write_b128 %s, %s offset:%d" % (v(VLP), v(MA, 4), SC_MEMI)]
    nv[1] += ["ds_write_b128 %s, %s offset:%d" % (v(VLP), v(MA + 4, 4), SC_MEMI + 1024)]
    nv[5] += ["s_waitcnt lgkmcnt(0)", "s_barrier", rd(3)]
    nv[6] += [rd(2), rd(5), rd(4)]
    nv[7] += [rd(6), "ds_read_b128 %s, %s" % (v(MH0, 4), v(VH0)), "ds_read_b128 %s, %s offset:512" % (v(MH0 + 4, 4), v(VH0))]
    nv[13] += ["s_waitcnt lgkmcnt(0)"]
    if PARAM["upf"]:
        va[4] += ["v_lshlrev_b32 %s, 2, %s" % (v(CHK), v(VLP))]
    dpos = []
    for k, g_ in enumerate(xh_dma()):
        if PARAM.get("nodma"):
            break
        p0 = PARAM["d0"] + 2 * PARAM["dsp"] * k
        nv[p0] += g_[:3]
        nv[p0 + PARAM["dsp"]] += g_[3:]
        dpos += [p0, p0 + PARAM["dsp"]]
    if PARAM["upf"]:
        p0 = PARAM["upos"]
        nv[p0] += ["buffer_load_dword %s, %s, %s, %s offen %s" % (v(CHK), v(CHK), SRD, s(S_UP), PF_FL[PARAM["pffl"]]),
                   "s_add_u32 %s, %s, %s" % (s(S_UP), s(S_UP), s(S_UPS))]
        dpos.append(p0)
    p0 = 19
    assert p0 not in dpos
    nv[p0] += ["s_waitcnt vmcnt(%d)" % len([x for x in dpos if x < p0]),
               "ds_read_b128 %s, %s" % (v(MH1, 4), v(VH1)), "ds_read_b128 %s, %s offset:256" % (v(MH1 + 4, 4), v(VH1))]
    nv[29] += ["s_waitcnt lgkmcnt(0)"]
    if PARAM.get("vw"):
        nv[PARAM["vw"]] += ["s_waitcnt vmcnt(0)"]
    nv[39] += ["s_add_u32 %s, %s, %d" % (s(S_MEM), s(S_MEM), MEM_S),
               "s_add_u32 %s, %s, %d" % (s(S_MEM2), s(S_MEM2), MEM_S)]
    if PARAM["sync"]:
        nv[PARAM["sync"]] += ["s_barrier"]
    for lst, p0 in [(c(0), 20), (c(1), 25), (c(2), 30), (d(0), 33), (["v_mov_b32 %s, 0" % v(T + 5)], 35), (c(3), 36),
                    (c(4), 41), (d(1), 44), (c(5), 47)]:
        for k, o in enumerate(lst):
            va[p0 + k].append(o)
    va[52] += c(6)
    va[54] += d(2)
    va[53] += ["v_lshlrev_b32 v8, 5, %s" % v(VLP)]
    nv[40] += ["s_mov_b32 %s, %s" % (s(S_NOFL), s(S_SLOW))]
    k5 = [0]

    def st5():
        if diag == 5:
            A("s_memtime s[%d:%d]" % (70 + 2 * k5[0], 71 + 2 * k5[0]))
            k5[0] += 1
    for i in range(56):
        if i:
            A(mf[i])
        for o in nv[i]:
            A(o)
        if i in (15, 32, 50):
            st5()
        for o in va[i]:
            A(o)
    def fst(pos):
        if PARAM["flag"] and PARAM["sc_fpos"] == pos:
            A("s_mov_b64 exec, 15")
            A("buffer_store_dword %s, v8, %s, %s offen" % (v(IDX), SRD, s(S_PF)))
            A("s_mov_b64 exec, -1")
            if PARAM.get("fack"):
                A("s_waitcnt vmcnt(0)")
            return True
        return False
    A("s_nop 3")
    for o in d(3):
        A(o)
    A("s_nop 1")
    for u in [1, 0, 2]:
        A(S(1, u))
    fst(0)
    for u in [1, 0, 2]:
        r = SA[u]
        A(fadd(r, r, r + 2))
        A(fadd(r + 1, r + 1, r + 3))
        A("ds_write2_b32 %s, %s, %s offset0:%d offset1:%d" % (v(VLW), v(r), v(r + 1), 16 * u, SRS + 16 * u))
    st.st(A, 2)
    fst(1)
    R = MH0
    zr = list(range(T, T + 28))

    def zero(n=1):
        for i in range(n):
            A("v_mov_b32 %s, 0" % v(zr.pop(0)))
    RT = A.newlabel("sc_rt")
    if PARAM["nobar"]:
        zero(PARAM["sc_dly"])
        A.label(RT)
    else:
        for i in range(3):
            A("s_nop 2")
            zero()
        A("s_waitcnt lgkmcnt(0)")
        A("s_barrier")
    for k in range(4):
        A("ds_read_b64 %s, %s offset:%d" % (v(R + 2 * k, 2), v(VLR), k * SRS * 32))
        zero()
    fst(2)
    for i in range(PARAM["sc_f2"]):
        A("s_nop 1")
        zero()
    A("s_waitcnt lgkmcnt(2)")
    A(pkadd(R, R, R + 2))
    A("s_waitcnt lgkmcnt(0)")
    A(pkadd(R + 4, R + 4, R + 6))
    A(pkadd(R, R, R + 4))
    m, m2 = R + 2, R + 3
    st5()
    A("v_max_f32 %s, %s, %s" % (v(m), v(R), v(R + 1)))
    RF = A.newlabel("sc_rf")
    RB = A.newlabel("sc_rb")
    for ror in [8, 4, 2, 1]:
        if PARAM["nobar"] and ror == 8:
            A("v_cmp_u_f32 vcc, %s, %s" % (v(R), v(R + 1)))
            A("s_cmp_eq_u32 %s, 0" % s(S_SLOW))
        elif PARAM["nobar"] and ror == 2:
            A("s_cbranch_vccnz %s" % RF)
            A.label(RB)
            A("s_nop 0")
        elif ror == 4:
            A("s_cmp_eq_u32 %s, 0" % s(S_SLOW))
            if not fst(3):
                A("s_nop 0")
        else:
            A("s_nop 1")
        A("v_max_f32_dpp %s, %s, %s row_ror:%d row_mask:0xf bank_mask:0xf" % (v(m), v(m), v(m), ror))
    A("v_mov_b32 %s, %s" % (v(m2), v(m)))
    A("s_nop 1")
    A("v_permlane16_swap_b32 %s, %s" % (v(m), v(m2)))
    A("v_max_f32 %s, %s, %s" % (v(m), v(m), v(m2)))
    A("v_sub_f32 %s, %s, %s" % (v(R), v(R), v(m)))
    A("v_sub_f32 %s, %s, %s" % (v(R + 1), v(R + 1), v(m)))
    A("v_exp_f32 %s, %s" % (v(R), v(R)))
    A("v_exp_f32 %s, %s" % (v(R + 1), v(R + 1)))
    if not fst(4):
        A("s_nop 0")
    A("v_add_f32 %s, %s, %s" % (v(m), v(R), v(R + 1)))
    for ror in [8, 4, 2, 1]:
        A("s_nop 1")
        A("v_add_f32_dpp %s, %s, %s row_ror:%d row_mask:0x%x bank_mask:0xf" % (v(m), v(m), v(m), ror, 0x5 if ror >= 4 else 0xf))
    A("v_mov_b32 %s, %s" % (v(m2), v(m)))
    A("s_nop 1")
    A("v_permlane16_swap_b32 %s, %s" % (v(m), v(m2)))
    A("v_add_f32 %s, %s, %s" % (v(m), v(m), v(m2)))
    A("v_rcp_f32 %s, %s" % (v(m), v(m)))
    A("s_nop 0")
    A("v_mul_f32 %s, %s, %s" % (v(R), v(R), v(m)))
    A("v_mul_f32 %s, %s, %s" % (v(R + 1), v(R + 1), v(m)))
    A("v_cvt_pk_bf16_f32 %s, %s, %s" % (v(R), v(R), v(R + 1)))
    A("v_min_u32 %s, -2, %s" % (v(R), v(R)))
    tails = []
    SL = A.newlabel("slowp")
    BK = A.newlabel("backp")
    A("s_cbranch_scc0 %s" % SL)
    A("buffer_store_dword %s, %s, %s, %s offen" % (v(R), v(VP), SRD, s(S_P)))
    A.label(BK)
    if PARAM.get("pack"):
        A("s_waitcnt vmcnt(0)")
    st.st(A, 3)
    if diag == 5:
        A("s_mov_b32 s80, %s" % s(S_SPIN))
    if diag:
        A("s_memrealtime s[68:69]")
    st.flush(A, 14, R + 4)

    def tail_slow():
        A.label(SL)
        A("buffer_store_dword %s, %s, %s, %s offen sc1" % (v(R), v(VP), SRD, s(S_P)))
        A("s_branch %s" % BK)
    tails.append(tail_slow)

    def tail_retry():
        A.label(RF)
        A("s_sub_u32 s45, s45, 1")
        A("s_cbranch_scc0 %s" % RT)
        A("s_cmp_eq_u32 %s, 0" % s(S_SLOW))
        A("s_branch %s" % RB)
    if PARAM["nobar"]:
        tails.append(tail_retry)
        A("v_mov_b32 %s, -1" % v(R + 2))
        A("v_mov_b32 %s, -1" % v(R + 3))
        for k in range(4):
            A("ds_write_b64 %s, %s offset:%d" % (v(VLR), v(R + 2, 2), k * SRS * 32))
        if diag == 5:
            A("s_mov_b32 s82, s45")
        A("s_movk_i32 s45, 2000")
    zero(len(zr))
    A("s_add_u32 %s, %s, 16384" % (s(S_P), s(S_P)))
    A("s_add_u32 %s, %s, 16384" % (s(S_PF), s(S_PF)))
    A("s_add_u32 %s, %s, 1" % (s(S_STEP), s(S_STEP)))
    if PARAM["sc_sleep"]:
        A("s_sleep %d" % PARAM["sc_sleep"])
    A("s_cmp_lt_u32 %s, %d" % (s(S_STEP), nsteps))
    A("s_cbranch_scc1 %s" % LOOP)
    A("s_waitcnt vmcnt(0)")
    st.dump(A)
    event(A, 3)
    A("s_endpgm")
    for t in tails:
        t()


RED2 = 0
OC_MEMI = 4096
OC_WL = 12288


def gen_out(A, abort, diag=0, nsteps=63):
    MA, YA, YP, U, P, D, WS = 0, 28, 60, 76, 108, 120, 128
    IDX, VLP, VPA, VPB, VLW, VLR, VST, CHK, VWL, R, A1 = 160, 161, 162, 163, 164, 165, 166, 167, 168, 169, 172
    Q, Z, VX = 68, 0, 72
    VFM, VFP, VFS = 165, 171, 175
    st = Stamps(diag)

    def W(i, j):
        x = (i * 7 + j) * 8
        return a(x, 8) if x < 256 else v(176 + x - 256, 8)

    def Wh(i, j, hf):
        x = (i * 14 + 2 * j + hf) * 4
        return a(x, 4) if x < 256 else v(176 + x - 256, 4)

    slot_consts(A, VLP, A1, OC_MEMI)
    A("""
    s_sub_u32 s30, %s, 16
    s_mul_i32 s22, %s, %d
    s_mul_i32 s23, s30, %d
    s_add_u32 s22, s22, s23
    s_add_u32 s22, s22, 0x%x
    s_mul_i32 s24, %s, 28672
    s_add_u32 s24, s24, %d
    """ % (s(S_ROLE), s(S_W), 4 * 28 * 14336, 2 * 14336, VW, s(S_W), OC_WL))
    wait_dep(A, "C", None, abort)
    A("s_lshl_b32 s25, s30, 1")
    wait_dep(A, "V", "s25", abort)
    event(A, 4)
    n = 0
    for hh in range(4):
        for ct in range(2):
            A("s_add_u32 s25, s22, %d" % (hh * 28 * 14336 + ct * 14336))
            for j in range(7):
                if hh == 3:
                    A("s_add_u32 m0, s24, %d" % (ct * 14336 + j * 2048))
                A("s_add_u32 s23, s25, s%d" % (S_KB + j))
                for hf in range(2):
                    if hh < 3:
                        A(ld(Wh(2 * hh + ct, j, hf), "v9", "s23", hf * 1024, "nt"))
                    else:
                        o = " offset:1024" if hf else ""
                        A("buffer_load_dwordx4 v9, %s, s23 offen%s nt lds" % (SRD, o))
                    n += 1
                    if n % 16 == 0 and n >= 48:
                        A("s_waitcnt vmcnt(40)")
    idx_const(A, IDX)
    A("""
    s_lshl_b32 s24, {W}, 9
    s_add_u32 s24, s24, 8192
    v_lshl_add_u32 {VPB}, v0, 3, s24
    s_lshl_b32 s24, {W}, 10
    s_add_u32 s24, s24, {RED2}
    v_add_u32 {VLW}, s24, v9
    s_mul_i32 s24, {W}, 28672
    s_add_u32 s24, s24, {OC_WL}
    v_add_u32 {VWL}, s24, v9
    s_lshr_b32 s25, s30, 1
    s_lshl_b32 s25, s25, 10
    s_and_b32 s26, s30, 1
    s_lshl_b32 s26, s26, 5
    s_add_u32 s25, s25, s26
    """.format(W=s(S_W), VPB=v(VPB), VLW=v(VLW), VWL=v(VWL), RED2=RED2, OC_WL=OC_WL))
    for k in range(3):
        A("v_xor_b32 %s, %d, %s" % (v(VX + k), 1024 * (k + 1), v(VLW)))
    bits(A, v(VST), [(2, 2, 256), (4, 2, 64), (0, 2, 4)], "s25")
    A("""
    s_lshl_b32 s24, {W}, 4
    s_lshl_b32 s25, s30, 7
    s_add_u32 s24, s24, s25
    s_add_u32 s24, s24, {PF}
    v_and_b32 v1, 3, v0
    v_lshl_add_u32 {VFP}, v1, 2, s24
    s_lshl_b32 s24, s30, 4
    s_lshl_b32 s25, {W}, 2
    s_add_u32 s24, s24, s25
    s_add_u32 s24, s24, {MF}
    s_cmp_lt_u32 s30, 2
    s_cselect_b32 s48, -1, 0xffff
    s_mov_b32 s49, 0
    v_and_b32 v1, 15, v0
    v_lshl_add_u32 {VFS}, v1, 8, s24
    v_bfe_u32 v1, v0, 4, 1
    v_mul_u32_u24 v1, 224, v1
    v_add_u32 {VFS}, {VFS}, v1
    """.format(W=s(S_W), MF=MEM_FL, PF=P_FL, VFM=v(VFM), VFP=v(VFP), VFS=v(VFS)))
    A("s_mov_b32 %s, 0" % s(S_STEP))
    A("s_mov_b32 %s, 0x%x" % (s(S_P), PM))
    A("s_mul_i32 %s, %s, 6144" % (s(S_X), s(S_W)))
    A("s_lshl_b32 s24, s30, 15")
    A("s_add_u32 %s, %s, s24" % (s(S_X), s(S_X)))
    A("s_add_u32 %s, %s, 0x%x" % (s(S_X), s(S_X), UB))
    A("s_add_u32 %s, %s, 4096" % (s(S_X2), s(S_X)))
    A("""
    s_lshr_b32 s24, s30, 1
    s_lshl_b32 s24, s24, 2
    s_add_u32 s24, s24, {W}
    s_lshl_b32 s24, s24, 7
    s_and_b32 s25, s30, 1
    s_lshl_b32 s25, s25, 3
    s_add_u32 s24, s24, s25
    s_add_u32 {Y}, s24, 0x{UF:x}
    """.format(W=s(S_W), Y=s(S_Y), UF=CNT + C_UF * 128))
    UFR, S_UPG = P + 10, 51
    ufl = "buffer_load_dwordx2 %s, off, %s, %s sc1" % (v(UFR, 2), SRD, s(S_Y))
    ufc = ["v_min_u32 %s, %s, %s" % (v(UFR), v(UFR), v(UFR + 1)), "s_nop 0", "v_readfirstlane_b32 %s, %s" % (s(S_UPG), v(UFR))]
    A("s_waitcnt vmcnt(0)")
    event(A, 1)
    A("s_mov_b32 %s, %s" % (s(S_NOFL), s(S_SLOW)))
    A("s_mov_b32 %s, 0x%x" % (s(S_MEMN), MEM + MEM_S))
    for i in range(4):
        A("v_mov_b32 %s, -1" % v(Z + 4 + i))
    A("ds_write_b128 %s, %s" % (v(VLW), v(Z + 4, 4)))
    if diag:
        A("s_mov_b32 s68, 0")
    for i in range(32):
        A("v_mov_b32 %s, 0" % v(YA + i))

    lg = Lg()
    frs = [(6, 0), (7, 0), (6, 1), (7, 1)] + [(6, j) for j in range(2, 7)] + [(7, j) for j in range(2, 7)]

    def stage(f):
        i, j = frs[f]
        return [lg.issue("ds_read_b128 %s, %s offset:%d" % (v(WS + 8 * (f & 3) + 4 * hf, 4), v(VWL), (i - 6) * 14336 + (2 * j + hf) * 1024),
                         "w%d" % f) for hf in range(2)]

    tails = []
    uloads = []
    for i in range(8):
        hh, ct = i >> 1, i & 1
        uloads.append(ld(v(U + ((hh >> 1) * 2 + ct) * 8 + (hh & 1) * 4, 4), v(VLP), s(S_X) if i < 4 else s(S_X2),
                         (i & 3) * 1024, PF_FL[PARAM["ufl"]]))
    nu0 = PARAM["nu0"]
    for f in range(4):
        for o in stage(f):
            A(o)
    A("s_waitcnt lgkmcnt(0)")
    lg.done = lg.n
    LOOP = A.newlabel("oc_loop")
    UW = A.newlabel("oc_uw")
    A.label(UW)
    A(ufl)
    spin_guard(A, abort)
    A("s_waitcnt vmcnt(0)")
    for o in ufc:
        A(o)
    A("s_cmp_gt_u32 %s, %s" % (s(S_UPG), s(S_STEP)))
    A("s_cbranch_scc0 %s" % UW)
    if EV["on"]:
        A("s_cmp_lg_u32 %s, 0" % s(S_STEP))
        A("s_cbranch_scc1 %s" % LOOP)
        event(A, 2)
    A.label(LOOP)
    if diag:
        st.flush(A, 10, P)
        A("s_mov_b32 s68, 0")
    for i in range(0, 8, 2):
        A("v_mov_b64 %s, 0" % v(D + i, 2))
    nops(A, PARAM["oc_mfd"])
    st.st(A, 0)
    ml = [ld(v(MA, 4), v(VLP), s(S_MEM)), ld(v(MA + 4, 4), v(VLP), s(S_MEM2))]
    for o in ml:
        A(o)
    for i in range(0, 32, 2):
        A("v_mov_b64 %s, 0" % v(YA + i, 2))
        if (i >> 1) % 4 == 3 and (i >> 3) < nu0:
            A(uloads[i >> 3])
    A("s_waitcnt vmcnt(%d)" % nu0)
    MF_ = A.newlabel("oc_mfail")
    MB_ = A.newlabel("oc_mback")
    A("v_max_u32 %s, %s, %s" % (v(CHK), v(MA), v(MA + 4)))
    A("v_cmp_eq_u32 vcc, -1, %s" % v(CHK))
    A("s_cbranch_vccnz %s" % MF_)
    A.label(MB_)

    def tail_mfail():
        A.label(MF_)
        spin_guard(A, abort)
        poll(A, ml, [MA, MA + 4, MA + 4], CHK, abort, 1, PARAM["oc_msleep"])
        A("s_branch %s" % MB_)
    tails.append(tail_mfail)
    st.st(A, 1)

    def yp(i):
        hh, ct = i >> 1, i & 1
        y = YA + 4 * i
        return [fadd(y, y, y + 2), fadd(y + 1, y + 1, y + 3), cvt(YP + 4 * ct + hh, y, y + 1)]

    order = [(i, j) for j in range(2) for i in [6, 7, 0, 1, 2, 3, 4, 5]]
    for L_, a0 in [(6, 0), (7, 3)]:
        reg = [(a0 + t, j) for t in range(3) for j in range(2, 7)]
        for k in range(20):
            if k % 3 == 0 and k < 15:
                order.append((L_, 2 + k // 3))
            else:
                order.append(reg.pop(0))
    vq = []
    nextf = 4
    upos = [-1] * nu0 + [PARAM["u0"] + PARAM["usp1"] * k for k in range(4 - nu0)]
    upos += [max(upos[-1], PARAM["u0"] - PARAM["usp"]) + PARAM["usp"] * (k + 1) for k in range(4)]
    fl = "buffer_load_dword %s, %s, %s, %s offen sc1" % (v(CHK), v(VFP), SRD, s(S_P))
    fpos = [55 - 3 * k for k in range(PARAM["oc_nfl"])] if PARAM["flag"] else []
    nxt = [2, 3, 0, 1]
    for n, (i, j) in enumerate(order):
        if i >= 6:
            f = frs.index((i, j))
            A(lg.wait("w%d" % f))
            bop = v(WS + 8 * (f & 3), 8)
        else:
            bop = W(i, j)
        if n == 16:
            A(lg.wait("m6"))
        A("%s %s, %s, %s, %s" % (SMF, v(YA + 4 * i, 4), v(MA + 4 * j, 4), bop, v(IDX)))
        if n < 2:
            A("ds_write_b128 %s, %s offset:%d" % (v(VLP), v(MA + 4 * n, 4), OC_MEMI + 1024 * n))
        elif n == 5:
            A("s_waitcnt lgkmcnt(0)")
            A("s_barrier")
            mr = mem_reads(lg, MA, A1)
            A(mr[0])
        elif n == 6:
            A(mr[1]); A(mr[2])
        elif n == 7:
            A(mr[3]); A(mr[4])
        elif n >= 8 and nextf < 14 and order.index(frs[nextf - 4]) < n:
            for o in stage(nextf):
                A(o)
            nextf += 1
        elif nextf >= 14 and nextf < 18 and order.index(frs[nextf - 4]) < n:
            for o in stage(nxt[nextf - 14]):
                A(o)
            nextf += 1
        if n in upos and not PARAM.get("nou"):
            A(uloads[upos.index(n)])
            if n == upos[-1]:
                A(ufl)
        if n in fpos:
            A(fl)
        if vq and vq[0][0] <= n:
            A(vq.pop(0)[1])
        if j == 6:
            vq += [(n + 2, o) for o in yp(i)]
    A("s_nop 4")
    for _, o in vq:
        A(o)
    assert nextf == 18
    st.st(A, 2)
    for r_, inc in [(S_MEM, MEM_S), (S_MEM2, MEM_S), (S_X, U_S), (S_X2, U_S)]:
        A("s_add_u32 %s, %s, %d" % (s(r_), s(r_), inc))
    A("s_waitcnt vmcnt(%d) lgkmcnt(0)" % len(fpos))
    for o in ufc:
        A(o)
    st.st(A, 5)
    if diag == 5:
        A("s_mov_b32 s78, %s" % s(S_SPIN))
    flag_wait(A, CHK, VFP, s(S_P), abort, PARAM["oc_nfl"], 0, PARAM["oc_fd"])
    if diag == 5:
        A("s_mov_b32 s72, %s" % s(S_SPIN))
        A("s_memtime s[76:77]")
    pl = [ld(v(P, 4), v(VLP), s(S_P), 0), ld(v(P + 4, 4), v(VLP), s(S_P), 1024),
          "buffer_load_dwordx2 %s, %s, %s, %s offen sc1" % (v(P + 8, 2), v(VPB), SRD, s(S_P))]

    def O(b, ct):
        if b < 2:
            return "%s %s, %s, %s, %s" % (SMF, v(D + 4 * ct, 4), v(P + 4 * b, 4), v(U + (b * 2 + ct) * 8, 8), v(IDX))
        return "%s %s, %s, %s, %s" % (SMF32, v(D + 4 * ct, 4), v(P + 8, 2), v(YP + 4 * ct, 4), v(IDX))
    spec_poll(A, pl,
              ["v_max3_u32 %s, %s, %s, %s" % (v(CHK), v(P), v(P + 4), v(P + 8)),
               "v_max_u32 %s, %s, %s" % (v(CHK), v(CHK), v(P + 9)), "v_cmp_eq_u32 vcc, -1, %s" % v(CHK)],
              [O(2, 0)], [D, D + 2], abort, PARAM["oc_sets"], PARAM["oc_gap"], PARAM["oc_nd"])
    st.st(A, 3)
    if PARAM["flag"]:
        A("s_mov_b64 exec, s[48:49]")
        A("buffer_store_dword %s, %s, %s, %s offen" % (v(IDX), v(VFS), SRD, s(S_P)))
        A("s_mov_b64 exec, -1")
    A(O(2, 1))
    A(O(0, 0))
    A(O(1, 0))
    A(O(0, 1))
    A(O(1, 1))
    A("s_cmp_eq_u32 %s, 0" % s(S_SLOW))
    A(fadd(Q, D, D + 2))
    A(fadd(Q + 2, D + 1, D + 3))
    A("s_nop 3")
    A(fadd(Q + 1, D + 4, D + 6))
    A(fadd(Q + 3, D + 5, D + 7))
    A("ds_write_b128 %s, %s" % (v(VLW), v(Q, 4)))
    for k in range(3):
        A("ds_read_b128 %s, %s" % (v(Z + 4 * k, 4), v(VX + k)))
    zr = list(range(YA, YA + 32))

    def zero(n=1):
        for i in range(n):
            A("v_mov_b32 %s, 0" % v(zr.pop(0)))
    for i in range(PARAM["oc_f"]):
        A("s_nop 1")
        zero()
    A("s_waitcnt lgkmcnt(2)")
    A(pkadd(Q, Q, Z))
    A(pkadd(Q + 2, Q + 2, Z + 2))
    A("s_waitcnt lgkmcnt(0)")
    A("v_max3_u32 %s, %s, %s, %s" % (v(CHK), v(Z), v(Z + 4), v(Z + 8)))
    A("v_cmp_eq_u32 vcc, -1, %s" % v(CHK))
    A(pkadd(Z + 4, Z + 4, Z + 8))
    A(pkadd(Z + 6, Z + 6, Z + 10))
    A(pkadd(Q, Q, Z + 4))
    A(pkadd(Q + 2, Q + 2, Z + 6))
    A(cvt(R, Q, Q + 1))
    A(cvt(R + 1, Q + 2, Q + 3))
    A("v_min_u32 %s, -2, %s" % (v(R), v(R)))
    A("v_min_u32 %s, -2, %s" % (v(R + 1), v(R + 1)))
    SL = A.newlabel("slowm")
    BK = A.newlabel("backm")
    RS = A.newlabel("resetm")
    A("s_cbranch_vccnz %s" % BK)
    A("s_cbranch_scc0 %s" % SL)
    A("buffer_store_dword %s, %s, %s, %s offen" % (v(R), v(VST), SRD, s(S_MEMN)))
    A("buffer_store_dword %s, %s, %s, %s offen offset:16" % (v(R + 1), v(VST), SRD, s(S_MEMN)))
    A.label(RS)
    if PARAM.get("mack"):
        A("s_waitcnt vmcnt(0)")
    st.st(A, 4)
    for i in range(4):
        A("v_mov_b32 %s, -1" % v(Z + i))
    A("ds_write_b128 %s, %s" % (v(VLW), v(Z, 4)))
    for k in range(3):
        A("ds_write_b128 %s, %s" % (v(VX + k), v(Z, 4)))
    A.label(BK)
    if diag == 5:
        A("s_mov_b32 s74, %s" % s(S_SPIN))

    def tail_slow():
        A.label(SL)
        A("buffer_store_dword %s, %s, %s, %s offen sc1" % (v(R), v(VST), SRD, s(S_MEMN)))
        A("buffer_store_dword %s, %s, %s, %s offen offset:16 sc1" % (v(R + 1), v(VST), SRD, s(S_MEMN)))
        A("s_branch %s" % RS)
    tails.append(tail_slow)
    for r_, inc in [(S_MEMN, MEM_S), (S_P, 16384), (S_STEP, 1)]:
        A("s_add_u32 %s, %s, %d" % (s(r_), s(r_), inc))
    A("s_barrier")
    A("s_min_u32 %s, %s, %d" % (s(S_UPG), s(S_UPG), nsteps))
    A("s_cmp_gt_u32 %s, %s" % (s(S_UPG), s(S_STEP)))
    A("s_cbranch_scc1 %s" % LOOP)
    A("s_cmp_lt_u32 %s, %d" % (s(S_STEP), nsteps))
    A("s_cbranch_scc1 %s" % UW)
    A("s_waitcnt vmcnt(0)")
    st.dump(A)
    event(A, 3)
    A("s_endpgm")
    for t in tails:
        t()


def gen_pf(A, abort):
    wait_dep(A, "F", None, abort)
    A("""
    s_mov_b32 {STEP}, 1
    v_lshlrev_b32 v1, 4, v0
    s_lshl_b32 s22, {W}, 11
    s_min_u32 s22, s22, 5120
    v_add_u32 v1, s22, v1
    s_mov_b32 {MEM}, 0x{M1:x}
    s_mov_b32 {X}, 0x{W1:x}
    """.format(W=s(S_W), STEP=s(S_STEP), X=s(S_X), MEM=s(S_MEM), M1=MEM + MEM_S, W1=MEMW + MEM_S))
    LOOP = A.newlabel("pf_loop")
    A.label(LOOP)
    poll(A, [ld(v(4, 4), "v1", s(S_MEM)), ld(v(8, 4), "v1", s(S_MEM), 1024)], [4, 8, 8], 2, abort, 1, 3)
    A("buffer_store_dwordx4 v[4:7], v1, %s, %s offen sc1" % (SRD, s(S_X)))
    A("buffer_store_dwordx4 v[8:11], v1, %s, %s offen offset:1024 sc1" % (SRD, s(S_X)))
    A("s_add_u32 %s, %s, %d" % (s(S_X), s(S_X), MEM_S))
    A("s_add_u32 %s, %s, %d" % (s(S_MEM), s(S_MEM), MEM_S))
    A("s_add_u32 %s, %s, 1" % (s(S_STEP), s(S_STEP)))
    A("s_waitcnt vmcnt(0)")
    A("s_sleep 16")
    A("s_cmp_lt_u32 %s, 64" % s(S_STEP))
    A("s_cbranch_scc1 %s" % LOOP)
    A("s_endpgm")


def gen_pf2(A, abort, ahead=3):
    A("""
    s_cmp_lg_u32 {W}, 0
    s_cbranch_scc1 .pf_end
    """.format(W=s(S_W)))
    wait_dep(A, "M", None, abort)
    A("""
    s_mov_b32 {STEP}, 0
    v_lshlrev_b32 v1, 7, v0
    v_mov_b32 v2, 0
    s_mov_b32 {Y}, 0x{XH:x}
    s_mov_b32 {MEM}, 0x{M0:x}
    s_mov_b32 {X}, 0x{M1:x}
    s_mov_b32 {P}, 0x{PM:x}
    """.format(W=s(S_W), STEP=s(S_STEP), X=s(S_X), Y=s(S_Y), XH=XH, MEM=s(S_MEM), M0=MEM, M1=MEM + MEM_S, PM=PM, P=s(S_P)))
    LOOP = A.newlabel("pf_loop")
    PL = A.newlabel("pf_poll")
    GO = A.newlabel("pf_go")
    A.label(LOOP)
    A("s_cmp_lt_u32 %s, %d" % (s(S_STEP), ahead))
    A("s_cbranch_scc1 %s" % GO)
    A.label(PL)
    spin_guard(A, abort)
    A("s_sleep 4")
    A("buffer_load_dword v3, v2, %s, %s offen sc1" % (SRD, s(S_MEM)))
    A("s_waitcnt vmcnt(0)")
    A("v_readfirstlane_b32 s22, v3")
    A("s_cmp_eq_u32 s22, -1")
    A("s_cbranch_scc1 %s" % PL)
    A("s_add_u32 %s, %s, %d" % (s(S_MEM), s(S_MEM), MEM_S))
    A.label(GO)
    A("buffer_load_dword v4, v1, %s, %s offen sc1" % (SRD, s(S_X)))
    A("buffer_load_dword v5, v1, %s, %s offen sc1" % (SRD, s(S_P)))
    A("s_add_u32 s22, %s, 8192" % s(S_P))
    A("buffer_load_dword v6, v1, %s, s22 offen sc1" % SRD)
    for i in range(4):
        A("buffer_load_dword v%d, v1, %s, %s offen sc1" % (7 + i, SRD, s(S_Y)))
        A("s_add_u32 %s, %s, 8192" % (s(S_Y), s(S_Y)))
    A("s_add_u32 %s, %s, %d" % (s(S_X), s(S_X), MEM_S))
    A("s_add_u32 %s, %s, 16384" % (s(S_P), s(S_P)))
    A("s_add_u32 %s, %s, 1" % (s(S_STEP), s(S_STEP)))
    A("s_cmp_lt_u32 %s, 63" % s(S_STEP))
    A("s_cbranch_scc1 %s" % LOOP)
    A("s_waitcnt vmcnt(0)")
    A.label(".pf_end")
    A("s_endpgm")
```

```python
NAME = "concat_heads__memory_aug_recurrent_mem_tr__linear_attn_block__prompt"

WS_BYTES = 0x10000000
AW = 0x0000000
VW = 0x0700000
UB = 0x1000000
U_S = 14 * 16 * 2 * 1024
XH = 0x2C00000
XH_S = 32768
SENT0 = 0x4000000
MEM_S = 16384
MEM = SENT0 - MEM_S
MEMW = MEM + 8192
PM = SENT0 + 0x100000
PX = SENT0 + 0x200000
PX_S = 40960
SENT1 = SENT0 + 0x500000
ZERO0 = 0x4800000
CNT = 0x4800000
KV = 0x4810000
ZERO1 = 0x4820000
DBG = 0x5000000
TXB = 0x6000000

C_KV = 11
C_A = 16
C_V = 64
D_ABORT, D_MISC = 8, 132
C_UF = 32

R_U, R_SH, R_T, R_B1, R_B2, R_F = 32, 64, 128, 192, 224, 240


def row_i(m, hb):
    return 4 * (m >> 1) + 2 * hb + (m & 1)


def mem_off(q, m):
    return (q >> 1) * 256 + row_i(m, q & 1) * 16


def chunk_q(w, b, sig):
    v = w >> 1
    odd = w & 1
    if b == 0:
        return 28 * v + 12 * odd + sig
    if sig & 1:
        return 28 * v + 24 + (sig >> 1)
    return 28 * v + 12 * odd + 8 + (sig >> 1)


def chunk_col(q, e):
    kb, ga, hb = q >> 3, (q >> 1) & 3, q & 1
    return 64 * kb + 16 * ga + 4 * (e >> 1) + 2 * hb + (e & 1)


def tile_pos(w, tau):
    if tau < 4:
        return 0, tau
    if tau < 6:
        return 1, tau - 4
    return 1, 2 + (w & 1)


def aw_col(t, n):
    w, tau = divmod(t, 7)
    b, tp = tile_pos(w, tau)
    sig = 2 * (n >> 2) + (tp >> 1)
    e = 4 * ((n >> 1) & 1) + 2 * (tp & 1) + (n & 1)
    return chunk_col(chunk_q(w, b, sig), e)


def vw_col(t, n):
    return 64 * (t >> 2) + 4 * n + (t & 3)


class Asm:
    def __init__(self):
        self.lines = []
        self.uid = 0

    def __call__(self, s):
        for l in s.strip("\n").split("\n"):
            l = l.strip()
            if l:
                self.lines.append("    " + l)

    def label(self, l):
        self.lines.append(l + ":")

    def raw(self, s):
        self.lines.append(s)

    def newlabel(self, p="L"):
        self.uid += 1
        return ".%s_%d" % (p, self.uid)

    def text(self):
        return "\n".join(self.lines) + "\n"


def v(i, n=1):
    return "v%d" % i if n == 1 else "v[%d:%d]" % (i, i + n - 1)


def a(i, n=1):
    return "a%d" % i if n == 1 else "a[%d:%d]" % (i, i + n - 1)


def s(i, n=1):
    return "s%d" % i if n == 1 else "s[%d:%d]" % (i, i + n - 1)


def bits(A, dst, terms, add=None, tmp="v1", stmp="s28", src="v0"):
    first = True
    if add is not None:
        A("v_mov_b32 %s, %s" % (dst, add))
        first = False
    for lo, w, mul in terms:
        A("v_bfe_u32 %s, %s, %d, %d" % (tmp, src, lo, w))
        p2 = mul & (mul - 1) == 0
        sh = mul.bit_length() - 1
        if first:
            if p2:
                A("v_lshlrev_b32 %s, %d, %s" % (dst, sh, tmp))
            else:
                A("v_mul_u32_u24 %s, %d, %s" % (dst, mul, tmp))
            first = False
        elif p2:
            A("v_lshl_add_u32 %s, %s, %d, %s" % (dst, tmp, sh, dst))
        else:
            A("s_mov_b32 %s, %d" % (stmp, mul))
            A("v_mad_u32_u24 %s, %s, %s, %s" % (dst, tmp, stmp, dst))


EV = {"on": 0}


def event(A, idx, slot="s9", base=0):
    if not EV["on"]:
        return
    A("s_memrealtime s[96:97]")
    A("s_lshl_b32 s98, %s, 8" % slot)
    A("s_lshl_b32 s99, s8, 6")
    A("s_add_u32 s98, s98, s99")
    A("s_add_u32 s98, s98, 0x%x" % (DBG + 0x100000 + base + idx * 4))
    A("s_waitcnt lgkmcnt(0)")
    A("v_mov_b32 v1, s96")
    A("buffer_store_dword v1, off, s[4:7], s98")


if __name__ == "__main__":
    cols = sorted(aw_col(t, n) for t in range(28) for n in range(16))
    assert cols == list(range(448))
    cols = sorted(vw_col(t, n) for t in range(28) for n in range(16))
    assert cols == list(range(448))
    print("ok")
```

```python
import struct
from common import *

MF32 = "v_mfma_f32_16x16x32_bf16"
CSC = struct.unpack("<I", struct.pack("<f", (1 / 16) * 1.4426950408889634))[0]
WBYTES = 448 * 8192
SPIN_MAX = 1 << 20
DSRD = "s[92:95]"
L_ROLE = 152064


def srd(A, dst, lo, nbytes):
    A("s_mov_b32 s%d, s%d" % (dst, lo))
    A("s_and_b32 s%d, s%d, 0xffff" % (dst + 1, lo + 1))
    A("s_mov_b32 s%d, 0x%x" % (dst + 2, nbytes))
    A("s_mov_b32 s%d, 0x00020000" % (dst + 3))


def cvt(d, a_, b_):
    return "v_cvt_pk_bf16_f32 %s, %s, %s" % (v(d), v(a_), v(b_))


class Vm:
    def __init__(self, A):
        self.A = A
        self.n = 0
        self.tag = {}

    def op(self, ins, tag=None):
        self.A(ins)
        self.n += 1
        if tag:
            self.tag[tag] = self.n

    def cnt(self, tag):
        k = self.n - self.tag[tag]
        assert k <= 63
        return k


def ticket(A):
    L = A.newlabel("tk")
    A("s_cmp_lg_u32 s8, 0")
    A("s_cbranch_scc1 %s" % L)
    A("s_lshl_b32 s22, s10, 5")
    A("s_mov_b64 exec, 1")
    A("buffer_atomic_add v19, off, %s, s22 sc0" % DSRD)
    A("s_mov_b64 exec, -1")
    A.label(L)


def wait_word(A, off_, target, abort, sleep=2):
    L = A.newlabel("ww")
    G = A.newlabel("wwg")
    A.label(L)
    A("buffer_load_dword v21, off, %s, 0 offset:%d sc1" % (DSRD, off_))
    A("s_sub_u32 s19, s19, 1")
    A("s_cbranch_scc1 %s" % abort)
    A("s_waitcnt vmcnt(0)")
    A("v_readfirstlane_b32 s23, v21")
    A("s_cmp_ge_u32 s23, %d" % target)
    A("s_cbranch_scc1 %s" % G)
    A("s_sleep %d" % sleep)
    A("s_branch %s" % L)
    A.label(G)


def gen_phase1(A, abort, PARAM):
    EB = 0x20000
    A("""
    s_cmp_ge_u32 s2, 256
    s_cbranch_scc1 .role_none
    s_load_dwordx8 s[44:51], s[0:1], 16
    s_load_dwordx2 s[4:5], s[0:1], 96
    s_load_dwordx2 s[92:93], s[0:1], 88
    s_load_dwordx4 s[40:43], s[0:1], 0
    v_lshrrev_b32 v1, 6, v0
    v_lshlrev_b32 v8, 4, v0
    s_getreg_b32 s10, hwreg(HW_REG_XCC_ID)
    s_mov_b32 s6, 0x%x
    s_mov_b32 s7, 0x00020000
    s_mov_b32 s94, 256
    s_mov_b32 s95, 0x00020000
    v_readfirstlane_b32 s8, v1
    v_and_b32 v0, 63, v0
    v_lshlrev_b32 v9, 4, v0
    v_mov_b32 v19, 1
    v_mov_b32 v20, 1
    s_and_b32 s10, s10, 7
    s_mov_b32 s19, 0x%x
    s_and_b32 s22, s2, 7
    s_cmp_eq_u32 s22, 0
    s_cbranch_scc1 .p1_misc
    s_lshl_b32 s22, s22, 5
    s_lshr_b32 s23, s2, 3
    s_add_u32 s22, s22, s23
    s_sub_u32 s22, s22, 32
    """ % (WS_BYTES, SPIN_MAX))
    if PARAM.get("map", 1) == 0:
        A("""
        s_mul_i32 s30, s22, 4682
        s_lshr_b32 s30, s30, 16
        s_mul_i32 s23, s30, 14
        s_sub_u32 s22, s22, s23
        s_lshr_b32 s31, s22, 1
        s_and_b32 s29, s22, 1
        """)
    else:
        A("""
        s_mul_i32 s30, s22, 9363
        s_lshr_b32 s30, s30, 16
        s_mul_i32 s23, s30, 7
        s_sub_u32 s31, s22, s23
        s_lshr_b32 s29, s30, 4
        s_and_b32 s30, s30, 15
        """)
    SL, TL, IP = 16896, 8448, 1056
    RB = 7 * SL
    R, P, BV, BA, AF, ACC, OUT = 24, 56, 88, 120, 152, 216, 232
    bits(A, "v11", [(4, 2, 8 * 896), (0, 4, 8)])
    bits(A, "v10", [(0, 5, 16), (5, 1, 16 * 8192)])
    A("""
    v_add_u32 v12, %d, v11
    s_mul_i32 s24, s30, 229376
    s_lshl_b32 s25, s31, 7
    s_add_u32 s24, s24, s25
    s_mul_i32 s25, s8, %d
    s_add_u32 s24, s24, s25
    s_add_u32 s25, s24, %d
    s_lshl_b32 s26, s30, 9
    s_lshl_b32 s27, s8, 15
    s_add_u32 s26, s26, s27
    s_mul_i32 s27, s29, %d
    s_add_u32 s26, s26, s27
    s_and_b32 s27, s8, 1
    s_mul_i32 s27, s27, %d
    s_lshr_b32 s28, s8, 1
    s_mul_i32 s28, s28, %d
    s_add_u32 s27, s27, s28
    """ % (4 * 896, 64 * 896, 32 * 896, 7 * 32 * 8192, TL, 4 * IP))
    for i in range(7):
        A("s_add_u32 s22, s31, %d" % i)
        A("s_sub_u32 s23, s22, 7")
        A("s_min_u32 s%d, s22, s23" % (32 + i))
    A("s_waitcnt lgkmcnt(0)")
    A("s_and_b32 s5, s5, 0xffff")
    A("s_and_b32 s93, s93, 0xffff")
    srd(A, 60, 50, WBYTES)
    srd(A, 64, 48, WBYTES)
    event(A, 0, "s2", EB)
    vm = Vm(A)
    for k2 in range(2):
        for j in range(8):
            o = " offset:%d" % ((j & 3) * 896) if j & 3 else ""
            vm.op("buffer_load_dwordx2 %s, %s, s[60:63], s%d offen%s" % (v(R + (k2 * 8 + j) * 2, 2), "v11" if j < 4 else "v12", 24 + k2, o), "wo")

    def adma(step):
        sl = step % 7
        sr = "s[64:67]" if step < 7 else "s[68:71]"
        A("s_lshl_b32 s22, s%d, 18" % (32 + sl))
        A("s_add_u32 s22, s22, s26")
        for j in range(4):
            A("s_add_u32 m0, s27, %d" % (sl * SL + j * IP))
            A("s_add_u32 s23, s22, %d" % (j * 8192))
            vm.op("buffer_load_dwordx4 v10, %s, s23 offen lds" % sr, "a%d" % step)
    for st in range(7):
        adma(st)
    event(A, 6, "s2", EB)
    ticket(A)
    srd(A, 68, 44, WBYTES)
    srd(A, 72, 46, WBYTES)
    A("""
    s_lshl_b32 s39, s31, 2
    s_add_u32 s39, s39, s8
    s_mul_i32 s22, s39, 37
    s_lshr_b32 s22, s22, 8
    s_mul_i32 s23, s22, 7
    s_sub_u32 s23, s39, s23
    s_lshl_b32 s24, s23, 3
    s_mov_b32 s52, 0x06020400
    s_mov_b32 s53, 0x00c04440
    s_lshr_b64 s[52:53], s[52:53], s24
    s_and_b32 s52, s52, 0xff
    s_cmp_eq_u32 s23, 6
    s_cselect_b32 s24, 4, 96
    s_and_b32 s25, s22, 1
    s_mul_i32 s24, s24, s25
    s_add_u32 s52, s52, s24
    s_lshr_b32 s22, s22, 1
    s_mul_i32 s22, s22, 224
    s_add_u32 s52, s52, s22
    s_lshl_b32 s52, s52, 13
    s_lshl_b32 s22, s30, 9
    s_add_u32 s52, s52, s22
    s_cmp_lt_u32 s23, 4
    s_cselect_b32 s53, 16, 2
    s_cselect_b32 s24, 32, 16
    s_lshl_b32 s53, s53, 13
    s_lshl_b32 s24, s24, 13
    s_add_u32 s53, s53, s52
    v_lshrrev_b32 v1, 5, v0
    v_mul_u32_u24 v1, s24, v1
    v_and_b32 v14, 31, v0
    v_lshl_add_u32 v14, v14, 4, v1
    s_mul_i32 s54, s8, %d
    s_add_u32 s54, s54, %d
    s_mul_i32 s55, s30, 28
    s_add_u32 s55, s55, s39
    s_mul_i32 s55, s55, 14336
    s_mul_i32 s22, s29, 7168
    s_add_u32 s55, s55, s22
    s_mov_b32 s56, 0x05040100
    s_mov_b32 s57, 0x07060302
    s_lshl_b32 s22, s8, 13
    s_add_u32 s22, s22, %d
    v_add_u32 v13, s22, v9
    s_lshl_b32 s22, s8, 10
    s_add_u32 s22, s22, %d
    v_add_u32 v22, s22, v9
    s_mov_b32 s58, 0x%x
    """ % (TL, RB, RB, RB, CSC))
    bits(A, "v15", [(0, 3, IP), (3, 1, 512), (4, 2, 16)])
    A("v_add_u32 v16, %d, v15" % (3 * SL))
    A("v_add_u32 v17, %d, v15" % (6 * SL))
    A("v_add_u32 v18, s54, v15")
    event(A, 7, "s2", EB)
    A("s_waitcnt vmcnt(%d)" % (vm.cnt("wo") + 2 * EV["on"]))
    event(A, 8, "s2", EB)
    for k2 in range(2):
        for u in range(4):
            for p in range(4):
                A("v_perm_b32 %s, %s, %s, s%d" % (v(P + (k2 * 4 + u) * 4 + p), v(R + (k2 * 8 + 2 * p + 1) * 2 + (u >> 1)),
                                                 v(R + (k2 * 8 + 2 * p) * 2 + (u >> 1)), 56 + (u & 1)))
            A("ds_write_b128 v13, %s offset:%d" % (v(P + (k2 * 4 + u) * 4, 4), (k2 * 4 + u) * 1024))
    A("s_waitcnt lgkmcnt(0)")
    A("s_barrier")
    for kk in range(8):
        A("ds_read_b128 %s, v22 offset:%d" % (v(BV + 4 * kk, 4), kk * 4096))
    event(A, 1, "s2", EB)

    def epi(step):
        out = []
        r, o = ACC + (step & 1) * 8, OUT + (step & 1) * 4
        if step >= 7:
            for i in range(8):
                out.append("v_mul_f32 %s, s58, %s" % (v(r + i), v(r + i)))
        for i in range(4):
            out.append(cvt(o + i, r + 2 * i, r + 2 * i + 1))
        out.append("s_lshl_b32 s22, s%d, 10" % (32 + step % 7))
        out.append("s_add_u32 s22, s22, s55")
        out.append("s_add_u32 s22, s22, 0x%x" % (VW if step < 7 else AW))
        out.append(("st", "buffer_store_dwordx4 %s, v9, s[4:7], s22 offen sc1" % v(o, 4)))
        return out

    def emit(o):
        if isinstance(o, tuple):
            vm.op(o[1], "st")
        else:
            A(o)

    def publish(line_expr, first):
        L = A.newlabel("pub")
        A("s_waitcnt vmcnt(0)")
        A("s_barrier")
        A("s_cmp_lg_u32 s8, 0")
        A("s_cbranch_scc1 %s" % L)
        if first:
            wait_word(A, D_READY, 1, abort)
        A(line_expr)
        A("s_mov_b64 exec, 1")
        A("buffer_atomic_add v20, off, s[4:7], s22")
        A("s_mov_b64 exec, -1")
        A.label(L)

    for st in range(14):
        sl = st % 7
        if st != 7:
            A("s_waitcnt vmcnt(%d) lgkmcnt(0)" % vm.cnt("a%d" % st))
            A("s_barrier")
            if st < 7:
                event(A, 9 + st, "s2", EB)
        base = "v%d" % (15 + sl // 3)
        for kk in range(8):
            for mt in range(2):
                A("ds_read_b128 %s, %s offset:%d" % (v(AF + (kk * 2 + mt) * 4, 4), base, (sl % 3) * SL + mt * TL + kk * 64))
                if st == 7 and mt == 1:
                    A("ds_read_b128 %s, v18 offset:%d" % (v(BA + 4 * kk, 4), kk * 64))
                    if kk == 3:
                        A("s_waitcnt lgkmcnt(0)")
        if st == 0:
            for i in range(8):
                A("s_add_u32 m0, s54, %d" % (i * IP))
                A("s_add_u32 s23, s%d, %d" % (52 + (i >> 2), ((i & 1) + 8 * ((i >> 1) & 1)) * 8192))
                vm.op("buffer_load_dwordx4 v14, s[72:75], s23 offen lds", "wk")
        if 1 <= st <= 7:
            adma(st + 6)
        ep = epi(st - 1) if st not in (0, 7) else []
        B = BV if st < 7 else BA
        for kk in range(8):
            A("s_waitcnt lgkmcnt(%d)" % (0 if st == 7 else 14 - 2 * kk))
            for mt in range(2):
                d = v(ACC + (st & 1) * 8 + 4 * mt, 4)
                A("%s %s, %s, %s, %s" % (MF32, d, v(AF + (kk * 2 + mt) * 4, 4), v(B + 4 * kk, 4), d if kk else "0"))
                if kk >= 1:
                    for _ in range(2):
                        if ep:
                            emit(ep.pop(0))
        assert not ep
        if st in (6, 13):
            A("s_nop 7")
            for o in epi(st):
                emit(o)
            event(A, 2 if st == 6 else 4, "s2", EB)
        if st == 6:
            publish("""
            s_lshl_b32 s22, s31, 2
            s_lshr_b32 s23, s30, 2
            s_add_u32 s22, s22, s23
            s_lshl_b32 s22, s22, 7
            s_add_u32 s22, s22, 0x%x
            """ % (CNT + C_V * 128), True)
            event(A, 3, "s2", EB)
    publish("""
    s_lshl_b32 s22, s30, 7
    s_add_u32 s22, s22, 0x%x
    """ % (CNT + C_A * 128), False)
    event(A, 5, "s2", EB)
    A("s_branch .p1_role")

    A.label(".p1_misc")
    A("""
    s_lshr_b32 s9, s2, 3
    v_mov_b32 v12, 0
    v_mov_b32 v13, 0
    v_mov_b32 v14, 0
    v_mov_b32 v15, 0
    v_mov_b32 v4, -1
    v_mov_b32 v5, -1
    v_mov_b32 v6, -1
    v_mov_b32 v7, -1
    s_waitcnt lgkmcnt(0)
    s_and_b32 s5, s5, 0xffff
    s_and_b32 s93, s93, 0xffff
    """)
    event(A, 0, "s2", EB)
    srd(A, 12, 40, 2048 * 896)
    srd(A, 60, 42, 8 * 896)
    A("""
    s_cmp_lg_u32 s9, 0
    s_cbranch_scc1 .p1_m1
    s_mov_b32 s22, 0x%x
    """ % CNT)
    for i in range(3):
        A("buffer_store_dwordx4 v[12:15], v8, s[4:7], s22 offen sc1")
        A("s_add_u32 s22, s22, 4096")
    A("""
    s_waitcnt vmcnt(0)
    s_barrier
    s_mov_b64 exec, 1
    buffer_store_dword v20, off, %s, 0 offset:%d sc1
    s_mov_b64 exec, -1
    """ % (DSRD, D_READY))
    A.label(".p1_m1")
    A("""
    s_mul_i32 s22, s8, 14336
    s_mul_i32 s23, s9, 57344
    s_add_u32 s23, s23, s22
    """)
    for i in range(14):
        if i & 3 == 0:
            A("s_add_u32 m0, s22, %d" % (i * 1024))
            A("s_add_u32 s24, s23, %d" % (i * 1024))
        A("buffer_load_dwordx4 v9, s[12:15], s24 offen%s lds" % (" offset:%d" % ((i & 3) * 1024) if i & 3 else ""))
    ticket(A)
    nf = 0
    for base, k in [(SENT0, 2), (PM, 4 if PARAM["flag"] else 3)]:
        A("s_lshl_b32 s22, s9, 15")
        A("s_add_u32 s22, s22, 0x%x" % base)
        for i in range(8):
            if (i & 3) < k:
                A("s_add_u32 s23, s22, %d" % (i * 4096))
                A("buffer_store_dwordx4 v[4:7], v8, s[4:7], s23 offen sc1")
                nf += 1
    A("""
    s_lshr_b32 s26, s8, 1
    s_and_b32 s27, s8, 1
    s_mul_i32 s24, s26, %d
    s_mul_i32 s25, s27, %d
    s_add_u32 s24, s24, s25
    s_mul_i32 s27, s27, 192
    s_sub_u32 s27, 256, s27
    """ % (28 * 16, 12 * 16))
    bits(A, "v10", [(0, 4, 896), (5, 1, 32), (4, 1, 4)], "s24")
    bits(A, "v11", [(0, 4, 896), (5, 1, 4)], "s24")
    A("v_bfe_u32 v1, v0, 4, 1")
    A("v_mad_u32_u24 v11, v1, s27, v11")
    A("""
    s_lshl_b32 s22, s9, 16
    s_lshl_b32 s23, s8, 13
    s_add_u32 s22, s22, s23
    s_add_u32 s22, s22, 0x%x
    s_add_u32 s23, s22, 4096
    s_waitcnt vmcnt(%d)
    s_barrier
    """ % (XH, nf))
    event(A, 1, "s2", EB)
    for sg in range(2):
        for tile in range(2):
            for b in range(2):
                for hf in range(2):
                    r = 24 + (((sg * 2 + b) * 2 + tile) * 2 + hf) * 4
                    base = (64 * hf if b == 0 else 128 + 32 * hf) // 4
                    for e in range(2):
                        A("ds_read2_b32 %s, %s offset0:%d offset1:%d" % (v(r + 2 * e, 2), "v11" if b else "v10", base + 4 * e, base + 4 * e + 2))
            A("v_add_u32 v10, %d, v10" % (16 * 896))
            A("v_add_u32 v11, %d, v11" % (16 * 896))
            A("s_waitcnt lgkmcnt(0)")
            for b in range(2):
                for hf in range(2):
                    r = 24 + (((sg * 2 + b) * 2 + tile) * 2 + hf) * 4
                    o = (tile * 2 + hf) * 1024
                    A("buffer_store_dwordx4 %s, v9, s[4:7], s%d offen%s sc1" % (v(r, 4), 22 + b, " offset:%d" % o if o else ""))
        A("s_add_u32 s22, s22, 32768")
        A("s_add_u32 s23, s23, 32768")
    A("""
    s_sub_u32 s22, s9, 1
    s_cmp_ge_u32 s22, 2
    s_cbranch_scc1 .p1_m2
    s_lshl_b32 s22, s22, 2
    s_add_u32 s22, s22, s8
    s_lshl_b32 s23, s22, 7
    s_lshl_b32 s22, s22, 10
    s_add_u32 s22, s22, 0x%x
    s_add_u32 s24, s22, 8192
    """ % MEM)
    bits(A, "v10", [(4, 2, 32), (1, 1, 4), (2, 2, 2 * 896), (0, 1, 896)])
    for e in range(4):
        A("buffer_load_dword %s, v10, s[60:63], s23 offen offset:%d" % (v(12 + e), 8 * e))
    A("s_waitcnt vmcnt(0)")
    for e in range(4):
        A("v_min_u32 %s, -2, %s" % (v(12 + e), v(12 + e)))
    A("buffer_store_dwordx4 v[12:15], v9, s[4:7], s22 offen sc1")
    A("buffer_store_dwordx4 v[12:15], v9, s[4:7], s24 offen sc1")
    A.label(".p1_m2")
    A("""
    s_waitcnt vmcnt(0)
    s_barrier
    s_cmp_lg_u32 s8, 0
    s_cbranch_scc1 .p1_m3
    s_mov_b64 exec, 1
    buffer_atomic_add v20, off, %s, 0 offset:%d
    s_mov_b64 exec, -1
    """ % (DSRD, D_MISC))
    wait_word(A, D_READY, 1, abort)
    A.label(".p1_m3")
    event(A, 5, "s2", EB)

    A.label(".p1_role")
    A("""
    v_mov_b32 v1, %d
    s_cmp_lg_u32 s8, 0
    s_cbranch_scc1 .p1_wait_role
    s_mov_b32 s22, s10
    s_mov_b32 s24, 0
    s_mov_b64 exec, 1
    """ % L_ROLE)
    A.label(".p1_claim")
    A("""
    v_readfirstlane_b32 s25, v19
    s_cmp_lt_u32 s25, 32
    s_cbranch_scc1 .p1_got
    s_add_u32 s22, s22, 1
    s_and_b32 s22, s22, 7
    s_add_u32 s24, s24, 1
    s_mov_b32 s9, 256
    s_cmp_ge_u32 s24, 8
    s_cbranch_scc1 .p1_pub
    s_lshl_b32 s23, s22, 5
    v_mov_b32 v19, 1
    buffer_atomic_add v19, off, %s, s23 sc0
    s_waitcnt vmcnt(0)
    s_branch .p1_claim
    """ % DSRD)
    A.label(".p1_got")
    A("""
    s_lshl_b32 s9, s22, 5
    s_add_u32 s9, s9, s25
    s_cmp_lg_u32 s22, 0
    s_cbranch_scc1 .p1_pub
    s_cmp_lg_u32 s10, 0
    s_cselect_b32 s25, 0x101, 1
    s_lshl_b32 s25, s25, 8
    v_mov_b32 v2, s25
    buffer_atomic_add v2, off, %s, 0 offset:%d
    """ % (DSRD, D_MISC))
    A.label(".p1_pub")
    A("""
    v_mov_b32 v2, s9
    ds_write_b32 v1, v2
    s_mov_b64 exec, -1
    s_waitcnt lgkmcnt(0)
    """)
    A.label(".p1_wait_role")
    A("""
    s_barrier
    ds_read_b32 v2, v1
    s_waitcnt lgkmcnt(0)
    v_readfirstlane_b32 s9, v2
    """)


def gen_fill(A):
    A("""
    s_sub_u32 s30, s9, %d
    v_lshlrev_b32 v8, 4, v0
    s_lshl_b32 s22, s8, 10
    v_add_u32 v8, s22, v8
    v_mov_b32 v4, -1
    v_mov_b32 v5, -1
    v_mov_b32 v6, -1
    v_mov_b32 v7, -1
    v_mov_b32 v12, 0
    v_mov_b32 v13, 0
    v_mov_b32 v14, 0
    v_mov_b32 v15, 0
    v_mov_b32 v20, 0x1000000
    s_lshl_b32 s22, s30, 16
    s_add_u32 s22, s22, 0x%x
    """ % (R_F, MEMW + MEM_S))
    for i in range(8):
        A("s_add_u32 s23, s22, %d" % ((i >> 1) * MEM_S + (i & 1) * 4096))
        A("buffer_store_dwordx4 v[4:7], v8, s[4:7], s23 offen sc1")
    A("""
    s_lshl_b32 s22, s30, 12
    s_add_u32 s22, s22, 0x%x
    buffer_store_dwordx4 v[12:15], v8, s[4:7], s22 offen sc1
    s_mul_i32 s22, s30, %d
    s_add_u32 s22, s22, 0x%x
    s_mov_b32 s24, 40
    """ % (KV, 4 * PX_S, PX))
    A.label(".fill_loop")
    A("""
    buffer_store_dwordx4 v[4:7], v8, s[4:7], s22 offen sc1
    s_add_u32 s22, s22, 4096
    s_sub_u32 s24, s24, 1
    s_cmp_lg_u32 s24, 0
    s_cbranch_scc1 .fill_loop
    s_waitcnt vmcnt(0)
    s_barrier
    s_cmp_lg_u32 s8, 0
    s_cbranch_scc1 .fill_end
    s_mov_b64 exec, 1
    buffer_atomic_add v20, off, %s, 0 offset:%d
    s_mov_b64 exec, -1
    """ % (DSRD, D_MISC))
    A.label(".fill_end")
    event(A, 3)
    A("s_endpgm")
```

```python
import sys
from common import *
from chain import *
from k1 import gen_phase1, gen_fill
from workers import *

HEADER = open("cdna_kernels/%s.s.ref" % NAME).read().split("; Override launch")[0]


def kdesc(A, name, nvgpr=512, acc=256, nsgpr=102):
    A.raw(".amdhsa_kernel %s" % name)
    A.raw("  .amdhsa_next_free_vgpr %d" % nvgpr)
    A.raw("  .amdhsa_next_free_sgpr %d" % nsgpr)
    A.raw("  .amdhsa_accum_offset %d" % acc)
    A.raw("  .amdhsa_group_segment_fixed_size 0")
    A.raw("  .amdhsa_kernarg_size 104")
    A.raw("  .amdhsa_user_sgpr_count 2")
    A.raw("  .amdhsa_user_sgpr_kernarg_segment_ptr 1")
    A.raw("  .amdhsa_system_sgpr_workgroup_id_x 1")
    A.raw(".end_amdhsa_kernel")


def kstart(A, name):
    A.raw(".globl %s" % name)
    A.raw(".p2align 8")
    A.raw(".type %s,@function" % name)
    A.label(name)


def build_full(diag=0):
    A = Asm()
    A.raw(HEADER.rstrip("\n"))
    K = NAME + "_kernel"
    A.raw("; @launch grid=(256,1,1) block=(256,1,1) lds=160000")
    A.raw('.amdgcn_target "amdgcn-amd-amdhsa--gfx950"')
    A.raw(".text")
    A.raw("; diag%d" % diag)
    kstart(A, K)
    gen_phase1(A, ".abort", PARAM)
    event(A, 0)
    A("""
    s_cmp_lt_u32 s9, 16
    s_cbranch_scc1 .role_score
    s_cmp_lt_u32 s9, 30
    s_cbranch_scc1 .role_out
    s_cmp_eq_u32 s9, 30
    s_cbranch_scc1 .role_pf
    s_cmp_eq_u32 s9, 31
    s_cbranch_scc1 .role_pf2
    s_cmp_ge_u32 s9, 256
    s_cbranch_scc1 .role_none
    s_cmp_ge_u32 s9, %d
    s_cbranch_scc1 .role_fill
    s_cmp_ge_u32 s9, %d
    s_cbranch_scc1 .role_bw
    s_cmp_ge_u32 s9, %d
    s_cbranch_scc1 .role_tw
    s_and_b32 s22, s9, 31
    s_cmp_ge_u32 s22, 28
    s_cbranch_scc1 .role_none
    s_cmp_ge_u32 s9, %d
    s_cbranch_scc1 .role_sh
    s_branch .role_uw
    """ % (R_F, R_B1, R_T, R_SH))
    A.label(".role_none")
    A("s_endpgm")
    A.label(".abort")
    A("""
    s_load_dwordx2 s[4:5], s[0:1], 88
    s_mov_b32 s6, 256
    s_mov_b32 s7, 0x00020000
    s_mov_b64 exec, -1
    v_mov_b32 v1, 0
    v_mov_b32 v2, s9
    v_or_b32 v2, 0xdead0000, v2
    s_waitcnt lgkmcnt(0)
    s_and_b32 s5, s5, 0xffff
    buffer_store_dword v2, v1, s[4:7], 0 offen offset:%d
    s_endpgm
    """ % D_ABORT)
    A.label(".role_fill")
    gen_fill(A, PARAM)
    A.label(".role_pf")
    gen_pf(A, ".abort")
    A.label(".role_pf2")
    gen_pf2(A, ".abort")
    A.label(".role_score")
    gen_score(A, ".abort", diag)
    A.label(".role_out")
    gen_out(A, ".abort", diag)
    A.label(".role_sh")
    gen_shadow(A, ".abort")
    A.label(".role_uw")
    gen_uworker(A, ".abort")
    A.label(".role_tw")
    gen_tworker(A, ".abort")
    A.label(".role_bw")
    gen_bworker(A, ".abort")
    A.raw('.section .rodata,"a"')
    A.raw(".p2align 6")
    kdesc(A, K)
    return A.text()


if __name__ == "__main__":
    diag = 0
    for x in sys.argv[2:]:
        k, val = x.split("=")
        if k == "diag":
            diag = int(val)
        elif k == "ev":
            EV["on"] = int(val)
        else:
            PARAM[k] = int(val)
    out = sys.argv[1]
    open(out, "w").write(build_full(diag))
```

```python
import sys
from common import *
from build import kdesc, kstart, HEADER
from k1 import srd
A = Asm()
A.raw(HEADER.rstrip("\n"))
K = NAME + "_kernel"
A.raw('.amdgcn_target "amdgcn-amd-amdhsa--gfx950"')
A.raw(".text")
kstart(A, K)
A("""
s_memtime s[60:61]
s_load_dwordx2 s[4:5], s[0:1], 96
s_load_dwordx8 s[44:51], s[0:1], 16
s_mov_b32 s6, 0x10000000
s_mov_b32 s7, 0x00020000
v_lshlrev_b32 v1, 2, v0
s_waitcnt lgkmcnt(0)
s_and_b32 s5, s5, 0xffff
""")
for i in range(4):
    srd(A, 12 + 4 * i, 44 + 2 * i, 448 * 8192)
T = [(0, 0), (0, 256), (0, 4096), (0, 65536), (0, 0x40000), (0, 0x100000), (0, 0x200000), (0, 0x300000), (1, 0), (1, 0x200000), "par", (2, 0x1000), (3, 0x1000), (2, 0x201000)]
A("s_lshl_b32 s40, s2, 9")
A("s_memtime s[62:63]")
A("s_waitcnt lgkmcnt(0)")
for n, t in enumerate(T):
    A.raw("; VAR %s" % str(t))
    if t == "par":
        for b, o in [(2, 0), (3, 0), (2, 0x200000), (3, 0x200000)]:
            A("s_add_u32 s41, s40, 0x%x" % o)
            A("buffer_load_dword v2, v1, s[%d:%d], s41 offen" % (12 + 4 * b, 15 + 4 * b))
    else:
        b, o = t
        A("s_add_u32 s41, s40, 0x%x" % o)
        A("buffer_load_dword v2, v1, s[%d:%d], s41 offen" % (12 + 4 * b, 15 + 4 * b))
    A("s_waitcnt vmcnt(0)")
    A("s_memtime s[%d:%d]" % (64 + 2 * n, 65 + 2 * n))
    A("s_waitcnt lgkmcnt(0)")
A("s_lshl_b32 s40, s2, 8")
for n in range(len(T) + 2):
    A("v_mov_b32 v3, s%d" % (60 + 2 * n))
    A("buffer_store_dword v3, off, s[4:7], s40 offset:%d" % (4 * n))
A("s_endpgm")
A.raw('.section .rodata,"a"')
A.raw(".p2align 6")
kdesc(A, K)
open("mb12.s", "w").write(A.text())
```

```python
import sys
from common import *
from build import kdesc, kstart, HEADER
mode = sys.argv[1]
fl = sys.argv[2] if len(sys.argv) > 2 else ""
A = Asm()
A.raw(HEADER.rstrip("\n"))
K = NAME + "_kernel"
A.raw('.amdgcn_target "amdgcn-amd-amdhsa--gfx950"')
A.raw(".text")
kstart(A, K)
A("""
s_load_dwordx2 s[4:5], s[0:1], 96
s_load_dwordx2 s[12:13], s[0:1], 48
s_mov_b32 s6, 0x10000000
s_mov_b32 s7, 0x00020000
v_lshrrev_b32 v1, 6, v0
v_and_b32 v0, 63, v0
v_lshlrev_b32 v9, 4, v0
v_readfirstlane_b32 s8, v1
s_waitcnt lgkmcnt(0)
s_load_dwordx4 s[16:19], s[12:13], 0
s_and_b32 s5, s5, 0xffff
s_waitcnt lgkmcnt(0)
s_and_b32 s9, s2, 7
s_cmp_ge_u32 s9, s17
s_cbranch_scc1 .end
s_lshr_b32 s9, s2, 3
s_cmp_ge_u32 s9, s16
s_cbranch_scc1 .end
s_mul_i32 s22, s2, s18
s_mul_i32 s23, s8, 0x18000
s_add_u32 s22, s22, s23
s_add_u32 s22, s22, 0x100000
s_lshl_b32 s24, s8, 15
""")
for rep in range(2):
    A("s_memrealtime s[%d:%d]" % (60 + 4 * rep, 61 + 4 * rep))
    A("s_waitcnt lgkmcnt(0)")
    for n in range(96):
        if n & 3 == 0:
            A("s_add_u32 s23, s22, %d" % (n * 1024))
            if mode == "lds":
                A("s_add_u32 m0, s24, %d" % ((n & 31) * 1024))
                A("s_nop 0")
        o = " offset:%d" % ((n & 3) * 1024) if n & 3 else ""
        if mode == "lds":
            A("buffer_load_dwordx4 v9, s[4:7], s23 offen%s %s lds" % (o, fl))
        else:
            A("buffer_load_dwordx4 %s, v9, s[4:7], s23 offen%s %s" % (a(4 * n, 4) if n < 64 else v(16 + 4 * (n - 64), 4), o, fl))
        if n % 16 == 15 and n >= 47:
            A("s_waitcnt vmcnt(40)")
    A("s_waitcnt vmcnt(0)")
    A("s_memrealtime s[%d:%d]" % (62 + 4 * rep, 63 + 4 * rep))
    A("s_waitcnt lgkmcnt(0)")
    A("s_barrier")
A("s_lshl_b32 s40, s2, 6")
A("s_lshl_b32 s41, s8, 4")
A("s_add_u32 s40, s40, s41")
for n in range(4):
    A("v_mov_b32 v3, s%d" % (60 + 2 * n))
    A("buffer_store_dword v3, off, s[4:7], s40 offset:%d" % (4 * n))
A.label(".end")
A("s_endpgm")
A.raw('.section .rodata,"a"')
A.raw(".p2align 6")
kdesc(A, K)
open("mb13_%s%s.s" % (mode, fl), "w").write(A.text())
```

```python
from common import *

SRD = "s[4:7]"
S_W, S_ROLE, S_XCC, S_STEP = 8, 9, 10, 11
S_MEM, S_MEM2, S_P, S_X, S_X2, S_Y, S_SLOW, S_SPIN = 12, 13, 14, 15, 16, 17, 18, 19
S_MEMN, S_XL = 20, 21
S_KB = 32
SPIN_MAX = 1 << 20

SMF = "v_smfmac_f32_16x16x64_bf16"
SMF32 = "v_smfmac_f32_16x16x32_bf16"
MF32 = "v_mfma_f32_16x16x32_bf16"
MF16 = "v_mfma_f32_16x16x16_bf16"

PARAM = dict(sc_sleep=8, oc_sleep=8, oc_msleep=1, sc_sets=2, oc_sets=2, spread=1, ymode=0, ahead=0)


def ld(dst, voff, soff, off=0, flags="sc1"):
    o = " offset:%d" % off if off else ""
    return "buffer_load_dwordx4 %s, %s, %s, %s offen%s %s" % (dst, voff, SRD, soff, o, flags)


def chk_ops(chk, regs):
    out = []
    regs = list(regs)
    out.append("v_max3_u32 %s, %s, %s, %s" % (v(chk), v(regs[0]), v(regs[1]), v(regs[2])))
    regs = regs[3:]
    while len(regs) >= 2:
        out.append("v_max3_u32 %s, %s, %s, %s" % (v(chk), v(chk), v(regs[0]), v(regs[1])))
        regs = regs[2:]
    if regs:
        out.append("v_max_u32 %s, %s, %s" % (v(chk), v(chk), v(regs[0])))
    return out


def spin_guard(A, abort):
    A("s_sub_u32 %s, %s, 1" % (s(S_SPIN), s(S_SPIN)))
    A("s_cbranch_scc1 %s" % abort)


class Stamps:
    def __init__(self, lvl):
        self.lvl = lvl

    def st(self, A, i):
        if self.lvl == 4:
            A("s_memrealtime s[%d:%d]" % (60 + 2 * i, 61 + 2 * i))
        elif self.lvl >= 2 or (self.lvl == 1 and i == 0):
            A("s_memtime s[%d:%d]" % (60 + 2 * i, 61 + 2 * i))

    LB = 131072

    def flush(self, A, n, tmp):
        if not self.lvl:
            return
        A("s_lshl_b32 s58, %s, 12" % s(S_W))
        A("s_lshl_b32 s59, %s, 6" % s(S_STEP))
        A("s_add_u32 s58, s58, s59")
        A("s_add_u32 s58, s58, %d" % self.LB)
        A("v_mbcnt_lo_u32_b32 %s, -1, 0" % v(tmp + 1))
        A("v_lshl_add_u32 %s, %s, 2, s58" % (v(tmp + 1), v(tmp + 1)))
        A("s_waitcnt lgkmcnt(0)")
        for i in range(n):
            if self.lvl == 1 and i not in (0, 4):
                continue
            A("v_writelane_b32 %s, s%d, %d" % (v(tmp), 60 + 2 * i, i))
        A("s_mov_b64 exec, 0xffff")
        A("ds_write_b32 %s, %s" % (v(tmp + 1), v(tmp)))
        A("s_mov_b64 exec, -1")

    def dump(self, A):
        if not self.lvl:
            return
        A("s_lshl_b32 s58, %s, 12" % s(S_W))
        A("s_add_u32 s59, s58, %d" % self.LB)
        A("v_mbcnt_lo_u32_b32 v0, -1, 0")
        A("v_mbcnt_hi_u32_b32 v0, -1, v0")
        A("v_lshlrev_b32 v0, 4, v0")
        A("v_add_u32 v1, s59, v0")
        for i in range(4):
            A("ds_read_b128 %s, v1 offset:%d" % (v(4 + 4 * i, 4), i * 1024))
        A("s_lshl_b32 s59, %s, 14" % s(S_ROLE))
        A("s_add_u32 s58, s58, s59")
        A("s_add_u32 s58, s58, 0x%x" % DBG)
        A("s_waitcnt lgkmcnt(0)")
        for i in range(4):
            A("buffer_store_dwordx4 %s, v0, %s, s58 offen offset:%d" % (v(4 + 4 * i, 4), SRD, i * 1024))


class Lg:
    def __init__(self):
        self.n = 0
        self.done = 0
        self.tag = {}

    def issue(self, op, tag):
        self.n += 1
        self.tag[tag] = self.n
        return op

    def wait(self, tag):
        if self.tag[tag] <= self.done:
            return ""
        self.done = self.tag[tag]
        k = self.n - self.tag[tag]
        assert k <= 15
        return "s_waitcnt lgkmcnt(%d)" % k


DSRD = "s[92:95]"


def wait_dep(A, kind, sreg, abort, sleep=2, ph=2):
    L = A.newlabel("wd")
    G = A.newlabel("wdg")
    msk = None
    if kind == "V":
        A("s_and_b32 s100, %s, 28" % sreg)
        A("s_add_u32 s100, s100, %s" % s(S_W))
        A("s_lshl_b32 s100, s100, 7")
        A("s_add_u32 s100, s100, 0x%x" % (CNT + C_V * 128))
        l, tgt = "buffer_load_dword v1, off, %s, s100 sc1" % SRD, 16
    elif kind == "A":
        A("s_lshl_b32 s100, %s, 7" % sreg)
        A("s_add_u32 s100, s100, 0x%x" % (CNT + C_A * 128))
        l, tgt = "buffer_load_dword v1, off, %s, s100 sc1" % SRD, 28
    elif kind == "U":
        A("s_and_b32 s100, %s, 15" % sreg)
        A("s_lshl_b32 s100, s100, 7")
        A("s_add_u32 s100, s100, 0x%x" % (CNT + C_UF * 128))
        l, tgt, ph = "buffer_load_dword v1, off, %s, s100 sc1" % SRD, 1, 0
    else:
        l = "buffer_load_dword v1, off, %s, 0 offset:%d sc1" % (DSRD, D_MISC)
        tgt = msk = {"C": 0x2020, "M": 0x20, "F": 0x10000020}[kind]
    A.label(L)
    A(l)
    spin_guard(A, abort)
    A("s_waitcnt vmcnt(0)")
    A("v_readfirstlane_b32 s101, v1")
    if msk:
        A("s_and_b32 s100, s101, 0x%x" % msk)
        A("s_cmp_eq_u32 s100, 0x%x" % tgt)
    else:
        A("s_bfe_u32 s101, s101, 0x%x" % (0x80000 + 8 * ph))
        A("s_cmp_ge_u32 s101, %d" % tgt)
    A("s_cbranch_scc1 %s" % G)
    A("s_sleep %d" % sleep)
    A("s_branch %s" % L)
    A.label(G)
    if kind == "C":
        A("s_bfe_u32 %s, s101, 0x80010" % s(S_SLOW))


def stream(A, kind, sreg, phases, abort, tails, hold, pace, ev):
    tgt = 16 if kind == "V" else 28
    wait_dep(A, kind, sreg, abort, ph=0)
    event(A, ev)
    l = "buffer_load_dword v1, off, %s, s100 sc1" % SRD
    for p, gs in enumerate(phases):
        k = len(gs) - hold if p < 2 else len(gs)
        for g_ in gs[:k]:
            for o in g_:
                A(o)
        if p == 2:
            break
        A("s_waitcnt vmcnt(%d)" % pace)
        A(l)
        for g_ in gs[k:]:
            for o in g_:
                A(o)
        A("s_waitcnt vmcnt(%d)" % (2 * hold))
        L = A.newlabel("stl")
        F = A.newlabel("stf")
        A.label(L)
        A("v_readfirstlane_b32 s101, v1")
        A("s_bfe_u32 s101, s101, 0x%x" % (0x80000 + 8 * (p + 1)))
        A("s_cmp_lt_u32 s101, %d" % tgt)
        A("s_cbranch_scc1 %s" % F)
        event(A, 5 + p)

        def tail(L=L, F=F):
            A.label(F)
            A(l)
            spin_guard(A, abort)
            A("s_waitcnt vmcnt(0)")
            A("s_branch %s" % L)
        tails.append(tail)


def wait_counter(A, t0, slot, target, abort):
    L = A.newlabel("wc")
    A("v_mov_b32 %s, 0" % v(t0))
    A("s_mov_b32 s22, 0x%x" % (CNT + slot * 128))
    A.label(L)
    spin_guard(A, abort)
    A("buffer_load_dword %s, %s, %s, s22 offen sc1" % (v(t0 + 1), v(t0), SRD))
    A("s_waitcnt vmcnt(0)")
    A("v_readfirstlane_b32 s23, %s" % v(t0 + 1))
    A("s_cmp_lt_u32 s23, %d" % target)
    A("s_cbranch_scc1 %s" % L)


def poll(A, loads, regs, CHK, abort, sets=2, sleep=0):
    L = A.newlabel("pm")
    G = A.newlabel("pmg")
    if sets == 2:
        for l in loads:
            A(l)
        A("s_nop 15")
        A("s_nop 7")
    A.label(L)
    for l in loads:
        A(l)
    A("s_waitcnt vmcnt(%d)" % (len(loads) if sets == 2 else 0))
    for i in chk_ops(CHK, regs):
        A(i)
    A("v_cmp_eq_u32 vcc, -1, %s" % v(CHK))
    A("s_cbranch_vccz %s" % G)
    spin_guard(A, abort)
    if sleep:
        A("s_sleep %d" % sleep)
    A("s_branch %s" % L)
    A.label(G)


def slot_consts(A, VLP, A1, memi, rot=None):
    A("v_lshlrev_b32 v9, 4, v0")
    A("s_lshl_b32 s22, %s, 1" % s(S_W))
    for j in range(7):
        A("s_add_u32 s23, s22, %d" % j)
        A("s_cmp_ge_u32 s23, 7")
        A("s_cselect_b32 s24, 7, 0")
        A("s_sub_u32 s23, s23, s24")
        A("s_lshl_b32 s%d, s23, 11" % (S_KB + j))
    A("s_lshl_b32 s22, %s, 11" % s(S_W))
    A("v_add_u32 %s, s22, v9" % v(VLP))
    for i in range(3):
        A("s_lshr_b32 s23, s%d, 1" % (S_KB + 2 + 2 * i))
        A("s_add_u32 s23, s23, %d" % memi)
        A("v_add_u32 %s, s23, v9" % v(A1 + i))
    if rot:
        for j in range(7):
            A("s_add_u32 s23, s%d, %s" % (S_KB + j, rot))
            A("s_sub_u32 s24, s23, %d" % (7 * 2048))
            A("s_min_u32 s%d, s23, s24" % (S_KB + j))
    for j in range(2):
        A("s_lshr_b32 s23, s%d, 1" % (S_KB + j))
        A("s_sub_u32 s23, s23, s22")
        A("s_add_u32 %s, s23, 0x%x" % (s(S_MEM + j), MEM))


def mem_reads(lg, MA, A1):
    out = []
    for j in range(2, 7):
        i = (j - 2) >> 1
        out.append(lg.issue("ds_read_b128 %s, %s offset:%d" % (v(MA + 4 * j, 4), v(A1 + i), (j & 1) * 1024), "m%d" % j))
    return out


SC_MEMI, SC_XL, SC_TAB = 8192, 16384, 49664
SRS = 56


def idx_const(A, IDX):
    A("""
    v_and_b32 v1, 2, v0
    v_mov_b32 v2, 0x4444
    v_mov_b32 v3, 0xeeee
    v_cmp_eq_u32 vcc, 0, v1
    s_nop 1
    v_cndmask_b32 %s, v3, v2, vcc
    """ % v(IDX))


def pkadd(d, a_, b_):
    return "v_pk_add_f32 %s, %s, %s" % (v(d, 2), v(a_, 2), v(b_, 2))


def cvt(d, a_, b_):
    return "v_cvt_pk_bf16_f32 %s, %s, %s" % (v(d), v(a_), v(b_))


PARAM.update(dict(sc_nd=2, oc_nd=2, sc_gap=24, oc_gap=24, pfa=3, upf=0, mask=0, fillz=1, dsp=5, sync=0, nobar=1, sc_dly=4, sc_f2=2, oc_f=3, nu1=4, oc_sleep=0, usp=4, sc_sleep=4))


PF_FL = ["sc1", "", "nt"]
PARAM.update(dict(upos=31, pffl=0, ufl=0, d0=8, dsp=3, upf=0, pfa=0, flag=1, sc_fpos=2, sc_sleep=0, sc_nfl=3, sc_fgap=10, sc_fd=0,
                  oc_nfl=3, oc_fgap=10, oc_fd=0, oc_mfd=24, nu0=0, u0=0, usp1=2, sc_sets=1, oc_sets=1))
MEM_FL = 12288
P_FL = 10240
S_NOFL = 50


def flag_wait(A, F, VF, sbase, abort, nfl, gap, dly):
    if not PARAM["flag"]:
        return
    L = A.newlabel("fw")
    G = A.newlabel("fwg")
    l = "buffer_load_dword %s, %s, %s, %s offen sc1" % (v(F), v(VF), SRD, sbase)
    A("s_cmp_lg_u32 %s, 0" % s(S_NOFL))
    A("s_cbranch_scc1 %s" % G)
    for k in range(nfl if gap else 0):
        A(l)
        nops(A, gap)
    A.label(L)
    A(l)
    spin_guard(A, abort)
    A("s_waitcnt vmcnt(%d)" % nfl)
    A("v_cmp_eq_u32 vcc, -1, %s" % v(F))
    A("s_cbranch_vccnz %s" % L)
    nops(A, dly)
    A.label(G)


def fadd(d, a_, b_):
    return "v_add_f32 %s, %s, %s" % (v(d), v(a_), v(b_))


def nops(A, n):
    while n > 0:
        k = min(n, 16)
        A("s_nop %d" % (k - 1))
        n -= k


def spec_poll(A, loads, chk, spec, zero, abort, sets, gap, nd):
    L = A.newlabel("sp")
    for k in range(sets - 1):
        for l in loads:
            A(l)
        nops(A, gap)
    A.label(L)
    for l in loads:
        A(l)
    spin_guard(A, abort)
    if PARAM["mask"]:
        A("s_mov_b64 exec, -1")
    for i in range(max(nd, len(zero))):
        A("v_mov_b64 %s, 0" % v(zero[i % len(zero)], 2))
    A("s_waitcnt vmcnt(%d)" % (len(loads) * (sets - 1)))
    for o in chk:
        A(o)
    for o in spec:
        A(o)
    if PARAM["mask"]:
        A("s_mov_b64 exec, vcc")
    A("s_cbranch_vccnz %s" % L)
    if PARAM["mask"]:
        A("s_mov_b64 exec, -1")


def gen_score(A, abort, diag=0, nsteps=63):
    MA, T, MH0, XR, SAB = 0, 28, 56, 64, 96
    BS, BS3, IDX, VLP, VH0, VH1, VP, VLW, VLR, CHK = 108, 110, 112, 113, 114, 115, 116, 117, 118, 119
    MH1 = MA
    SA = [SAB, SAB + 4, SAB + 8]
    S_A1, S_UP, S_UPS, S_PF, S_FB = 40, 43, 44, 46, 47
    st = Stamps(diag)

    def W(tau, j):
        i = (tau * 7 + j) * 8
        return a(i, 8) if i < 256 else v(120 + i - 256, 8)

    def Wh(tau, j, hf):
        i = (tau * 14 + 2 * j + hf) * 4
        return a(i, 4) if i < 256 else v(120 + i - 256, 4)

    A("s_load_dwordx2 s[52:53], s[0:1], 0")
    slot_consts(A, VLP, 10, SC_MEMI)
    for i in range(3):
        A("s_lshr_b32 s23, s%d, 1" % (S_KB + 2 + 2 * i))
        A("s_add_u32 s23, s23, %d" % SC_MEMI)
        A("s_sub_u32 s%d, s23, s22" % (S_A1 + i))
    A("""
    s_mul_i32 s22, %s, %d
    s_mul_i32 s23, %s, %d
    s_add_u32 s22, s22, s23
    s_add_u32 s22, s22, 0x%x
    """ % (s(S_ROLE), 28 * 14336, s(S_W), 7 * 14336, AW))
    A("""
    s_mul_i32 {XL}, {W}, 8320
    s_add_u32 {XL}, {XL}, {SC_XL}
    s_lshr_b32 s24, {W}, 1
    s_mul_i32 {X}, s24, 448
    s_and_b32 s24, {W}, 1
    s_mul_i32 s24, s24, 192
    s_add_u32 {X}, {X}, s24
    s_add_u32 {X2}, {X}, 3584
    s_sub_u32 s24, 192, s24
    s_mov_b32 s54, {XB}
    s_mov_b32 s55, 0x00020000
    v_bfe_u32 v2, v0, 4, 1
    v_lshlrev_b32 v2, 3, v2
    v_xor_b32 v2, v2, v0
    v_and_b32 v2, 15, v2
    v_add_u32 v3, 4, v2
    v_lshrrev_b32 v3, 4, v3
    v_mul_u32_u24 v3, s24, v3
    v_lshl_add_u32 v3, v2, 4, v3
    s_add_u32 s24, {XL}, 128
    """.format(W=s(S_W), XL=s(S_XL), X=s(S_X), X2=s(S_X2), SC_XL=SC_XL, XB=2048 * 896))
    bits(A, v(SAB + 2), [(4, 2, 8 * 896)], "v3")
    bits(A, v(SAB), [(0, 3, 1040), (3, 1, 384), (5, 1, 32), (4, 1, 4)], s(S_XL))
    bits(A, v(SAB + 1), [(0, 3, 1040), (3, 1, 128), (4, 1, 64), (5, 1, 4)], "s24")
    A("ds_write_b96 %s, %s offset:%d" % (v(VLP), v(SAB, 3), SC_TAB))
    A("s_waitcnt lgkmcnt(0)")
    A("s_and_b32 s53, s53, 0xffff")

    def xh_dma():
        out = []
        for i in range(8):
            o = (i & 3) * 896
            out.append(["s_add_u32 m0, %s, %d" % (s(S_XL), i * 1040 - o),
                        "buffer_load_dwordx4 %s, s[52:55], %s offen%s lds" % (v(SAB + 2), s(S_X if i < 4 else S_X2), " offset:%d" % o if o else "")])
        return out

    for g_ in xh_dma():
        A(g_[0])
        A("s_nop 0")
        A(g_[1])
    for j in range(7):
        A("s_add_u32 s%d, s22, s%d" % (S_KB + j, S_KB + j))
    tails = []
    ph = [[], [], []]
    for q in range(7):
        for tau in range(7):
            j = (tau + q) % 7
            ph[min(q >> 1, 2)].append(["s_add_u32 s23, s%d, %d" % (S_KB + j, tau * 14336)] +
                                      [ld(Wh(tau, j, hf), "v9", "s23", hf * 1024, PF_FL[PARAM.get("wfl", 1)]) for hf in range(2)])
    stream(A, "A", s(S_ROLE), ph, abort, tails, PARAM.get("sc_hold", 5), PARAM.get("sc_pace", 8), 2)
    idx_const(A, IDX)
    A("""
    v_bfe_u32 v1, v0, 2, 2
    v_bfe_u32 v2, v0, 4, 2
    v_xor_b32 v1, v1, v2
    v_and_b32 v2, 3, v0
    v_lshl_or_b32 v3, v1, 2, v2
    v_mov_b32 v4, 0x3f80
    v_mov_b32 v5, 0x3f800000
    """)
    for r in range(2):
        A("""
        v_cmp_eq_u32 vcc, %d, v3
        v_cmp_eq_u32 s[22:23], %d, v3
        s_nop 1
        v_cndmask_b32 v6, 0, v4, vcc
        v_cndmask_b32 v7, 0, v5, s[22:23]
        v_or_b32 %s, v6, v7
        """ % (2 * r, 2 * r + 1, v(BS + r)))
    A("""
    s_and_b32 s24, {W}, 1
    s_cmp_eq_u32 s24, 1
    s_cselect_b64 s[22:23], -1, 0
    v_cndmask_b32 {BS3}, {BS0}, {BS1}, s[22:23]
    v_mov_b32 {BS3b}, 0
    s_lshr_b32 s25, {W}, 1
    s_mul_i32 s25, s25, 28
    s_mul_i32 s26, s24, 12
    s_add_u32 s25, s25, s26
    s_lshl_b32 s25, s25, 7
    s_add_u32 s25, s25, {MEMI}
    s_sub_u32 s26, 16, s26
    s_lshl_b32 s26, s26, 7
    """.format(W=s(S_W), MEMI=SC_MEMI, BS3=v(BS3), BS3b=v(BS3 + 1), BS0=v(BS), BS1=v(BS + 1)))
    bits(A, v(VH0), [(5, 1, 256), (1, 2, 64), (4, 1, 32), (0, 1, 16)], "s25")
    A("s_add_u32 s25, s25, 1024")
    bits(A, v(VH1), [(1, 2, 64), (5, 1, 32), (0, 1, 16)], "s25")
    A("v_bfe_u32 v1, v0, 4, 1")
    A("v_mad_u32_u24 %s, v1, s26, %s" % (v(VH1), v(VH1)))
    A("""
    s_lshl_b32 s22, {R}, 9
    s_lshl_b32 s23, {W}, 6
    s_add_u32 s22, s22, s23
    s_lshr_b32 s23, {R}, 2
    s_lshl_b32 s23, s23, 9
    s_lshl_b32 s24, {W}, 5
    s_add_u32 s23, s23, s24
    s_and_b32 s24, {R}, 1
    s_lshl_b32 s24, s24, 4
    s_add_u32 s23, s23, s24
    s_and_b32 s24, {R}, 2
    s_lshl_b32 s24, s24, 1
    s_add_u32 s23, s23, s24
    s_add_u32 s23, s23, 8192
    s_mul_i32 s24, {W}, {RS2}
    s_add_u32 s25, s24, 64
    v_and_b32 v2, 16, v0
    v_cmp_ne_u32 vcc, 0, v2
    """.format(R=s(S_ROLE), W=s(S_W), RS2=2 * SRS * 4))
    bits(A, "v2", [(3, 1, 256), (2, 1, 32), (5, 1, 16), (0, 2, 4)], "s22")
    bits(A, "v3", [(0, 2, 128), (5, 1, 8)], "s23")
    A("v_cndmask_b32 %s, v2, v3, vcc" % v(VP))
    bits(A, "v2", [(5, 1, SRS * 4), (0, 1, 64), (3, 1, 32), (1, 1, 16), (2, 1, 8)], "s25")
    bits(A, "v3", [(5, 1, SRS * 4), (0, 2, 8)], "s24")
    A("v_cndmask_b32 %s, v2, v3, vcc" % v(VLR))
    A("s_mul_i32 s24, %s, %d" % (s(S_W), SRS * 32))
    bits(A, v(VLW), [(4, 2, 2 * SRS * 4), (0, 4, 4)], "s24")
    A("s_mov_b32 %s, 0" % s(S_STEP))
    A("s_mov_b32 %s, 0x%x" % (s(S_P), PM))
    wait_dep(A, "C", None, abort)
    event(A, 1)
    for i in range(28):
        A("v_mov_b32 %s, 0" % v(T + i))
    A("v_mov_b32 v2, -1")
    A("v_mov_b32 v3, -1")
    for k in range(4):
        A("ds_write_b64 %s, v[2:3] offset:%d" % (v(VLR), k * SRS * 32))
    A("s_movk_i32 s45, 2000")

    def M(tau, j):
        return "%s %s, %s, %s, %s" % (SMF, v(T + 4 * tau, 4), v(MA + 4 * j, 4), W(tau, j), v(IDX))

    def TPr(tau):
        return T + 4 if tau == 6 else T + 8 * (tau >> 1) + 2 + (tau & 1)
    D = [T + 4, T + 12, T + 20, T + 24]
    DP = [T, T + 8]

    def c(tau):
        t = T + 4 * tau
        return [fadd(t, t, t + 2), fadd(t + 1, t + 1, t + 3), cvt(TPr(tau), t, t + 1)]

    def d(p):
        dst = DP[p >> 1] + 2 * (p & 1)
        return [cvt(dst, D[p], D[p] + 1), cvt(dst + 1, D[p] + 2, D[p] + 3)]

    def X(p):
        return "%s %s, %s, %s, 0" % (MF16, v(D[p], 4), v(TPr(2 * p), 2), v(BS if p < 3 else BS3, 2))

    def S(b, u):
        bop = v((MH0, MH1)[b], 8) if u == 0 else v(XR + (b * 2 + u - 1) * 8, 8)
        return "%s %s, %s, %s, %s" % (SMF, v(SA[u], 4), v(DP[b], 4), bop, v(IDX))

    LOOP = A.newlabel("sc_loop")
    A.label(LOOP)
    A("ds_read_b96 %s, %s offset:%d" % (v(SAB, 3), v(VLP), SC_TAB))
    for i in range(3, 12):
        A("v_mov_b32 %s, 0" % v(SAB + i))
    for i in range(3):
        A("v_add_u32 %s, s%d, %s" % (v(MA + 8 + 8 * i), S_A1 + i, v(VLP)))
    A("s_add_u32 %s, %s, %d" % (s(S_X), s(S_X), 32 * 896))
    A("s_add_u32 %s, %s, %d" % (s(S_X2), s(S_X2), 32 * 896))
    A("s_waitcnt vmcnt(0) lgkmcnt(0)")
    for b_ in range(2):
        for tile in range(2):
            for hf in range(2):
                for e in range(2):
                    o = tile * 128 + (8 if b_ else 16) * hf + 4 * e
                    A("ds_read2_b32 %s, %s offset0:%d offset1:%d" % (v(XR + (b_ * 2 + tile) * 8 + hf * 4 + 2 * e, 2), v(SAB + b_), o, o + 2))
    st.st(A, 0)
    if diag == 5:
        A("s_mov_b32 s86, %s" % s(S_SPIN))
    if diag == 5:
        A("s_mov_b32 s78, %s" % s(S_SPIN))
        A("s_memtime s[84:85]")
    spec_poll(A, [ld(v(MA, 4), v(VLP), s(S_MEM)), ld(v(MA + 4, 4), v(VLP), s(S_MEM2))],
              ["v_max_u32 %s, %s, %s" % (v(CHK), v(MA), v(MA + 4)), "v_cmp_eq_u32 vcc, -1, %s" % v(CHK)],
              [M(0, 0)], [T, T + 2], abort, PARAM["sc_sets"], PARAM["sc_gap"], PARAM["sc_nd"])
    st.st(A, 1)

    mf = [M(t, 0) for t in range(7)] + [M(t, 1) for t in range(7)]
    for t in range(7):
        for j in range(2, 7):
            mf.append(M(t, j))
        if t in (2, 4):
            mf.append(X((t >> 1) - 1))
    mf += [S(0, 1), X(2), S(0, 0), X(3), S(0, 2)]
    assert len(mf) == 56
    nv = {i: [] for i in range(56)}
    va = {i: [] for i in range(56)}

    def rd(j):
        return "ds_read_b128 %s, %s%s" % (v(MA + 4 * j, 4), v(MA + 8 * (j >> 1)), " offset:1024" if j & 1 else "")
    nv[0] += ["ds_write_b128 %s, %s offset:%d" % (v(VLP), v(MA, 4), SC_MEMI)]
    nv[1] += ["ds_write_b128 %s, %s offset:%d" % (v(VLP), v(MA + 4, 4), SC_MEMI + 1024)]
    nv[5] += ["s_waitcnt lgkmcnt(0)", "s_barrier", rd(3)]
    nv[6] += [rd(2), rd(5), rd(4)]
    nv[7] += [rd(6), "ds_read_b128 %s, %s" % (v(MH0, 4), v(VH0)), "ds_read_b128 %s, %s offset:512" % (v(MH0 + 4, 4), v(VH0))]
    nv[13] += ["s_waitcnt lgkmcnt(0)"]
    dpos = []
    for k, g_ in enumerate(xh_dma()):
        p0 = PARAM["d0"] + PARAM["dsp"] * k
        nv[p0 - 1] += g_[:1]
        nv[p0] += g_[1:]
        dpos.append(p0)
    va[2] += ["v_mov_b32 %s, 0" % v(SAB)]
    va[3] += ["v_mov_b32 %s, 0" % v(SAB + 1)]
    assert dpos[-1] < 39
    va[39] += ["v_mov_b32 %s, 0" % v(SAB + 2)]
    p0 = 19
    assert p0 not in dpos
    nv[p0] += ["s_waitcnt vmcnt(%d)" % len([x for x in dpos if x < p0]),
               "ds_read_b128 %s, %s" % (v(MH1, 4), v(VH1)), "ds_read_b128 %s, %s offset:256" % (v(MH1 + 4, 4), v(VH1))]
    nv[29] += ["s_waitcnt lgkmcnt(0)"]
    if PARAM.get("vw"):
        nv[PARAM["vw"]] += ["s_waitcnt vmcnt(0)"]
    nv[39] += ["s_add_u32 %s, %s, %d" % (s(S_MEM), s(S_MEM), MEM_S),
               "s_add_u32 %s, %s, %d" % (s(S_MEM2), s(S_MEM2), MEM_S)]
    if PARAM["sync"]:
        nv[PARAM["sync"]] += ["s_barrier"]
    for lst, p0 in [(c(0), 20), (c(1), 25), (c(2), 30), (d(0), 33), (["v_mov_b32 %s, 0" % v(T + 5)], 35), (c(3), 36),
                    (c(4), 41), (d(1), 44), (c(5), 47)]:
        for k, o in enumerate(lst):
            va[p0 + k].append(o)
    va[52] += c(6)
    va[54] += d(2)
    k5 = [0]

    def st5():
        if diag == 5:
            A("s_memtime s[%d:%d]" % (70 + 2 * k5[0], 71 + 2 * k5[0]))
            k5[0] += 1
    for i in range(56):
        if i:
            A(mf[i])
        for o in nv[i]:
            A(o)
        if i in (15, 32, 50):
            st5()
        for o in va[i]:
            A(o)
    def fst(pos):
        if PARAM["flag"] and PARAM["sc_fpos"] == pos:
            A("s_mov_b64 exec, 15")
            A("buffer_store_dword %s, v8, %s, %s offen" % (v(IDX), SRD, s(S_PF)))
            A("s_mov_b64 exec, -1")
            if PARAM.get("fack"):
                A("s_waitcnt vmcnt(0)")
            return True
        return False
    A("s_nop 3")
    for o in d(3):
        A(o)
    A("s_nop 1")
    for u in [1, 0, 2]:
        A(S(1, u))
    fst(0)
    for u in [1, 0, 2]:
        r = SA[u]
        A(fadd(r, r, r + 2))
        A(fadd(r + 1, r + 1, r + 3))
        A("ds_write2_b32 %s, %s, %s offset0:%d offset1:%d" % (v(VLW), v(r), v(r + 1), 16 * u, SRS + 16 * u))
    st.st(A, 2)
    fst(1)
    R = MH0
    zr = list(range(T, T + 28))

    def zero(n=1):
        for i in range(n):
            A("v_mov_b32 %s, 0" % v(zr.pop(0)))
    RT = A.newlabel("sc_rt")
    if PARAM["nobar"]:
        zero(PARAM["sc_dly"])
        A.label(RT)
    else:
        for i in range(3):
            A("s_nop 2")
            zero()
        A("s_waitcnt lgkmcnt(0)")
        A("s_barrier")
    for k in range(4):
        A("ds_read_b64 %s, %s offset:%d" % (v(R + 2 * k, 2), v(VLR), k * SRS * 32))
        zero()
    fst(2)
    for i in range(PARAM["sc_f2"]):
        A("s_nop 1")
        zero()
    A("s_waitcnt lgkmcnt(2)")
    A(pkadd(R, R, R + 2))
    A("s_waitcnt lgkmcnt(0)")
    A(pkadd(R + 4, R + 4, R + 6))
    A(pkadd(R, R, R + 4))
    m, m2 = R + 2, R + 3
    st5()
    A("v_max_f32 %s, %s, %s" % (v(m), v(R), v(R + 1)))
    RF = A.newlabel("sc_rf")
    RB = A.newlabel("sc_rb")
    for ror in [8, 4, 2, 1]:
        if PARAM["nobar"] and ror == 8:
            A("v_cmp_u_f32 vcc, %s, %s" % (v(R), v(R + 1)))
            A("s_cmp_eq_u32 %s, 0" % s(S_SLOW))
        elif PARAM["nobar"] and ror == 2:
            A("s_cbranch_vccnz %s" % RF)
            A.label(RB)
            A("s_nop 0")
        elif ror == 4:
            A("s_cmp_eq_u32 %s, 0" % s(S_SLOW))
            if not fst(3):
                A("s_nop 0")
        else:
            A("s_nop 1")
        A("v_max_f32_dpp %s, %s, %s row_ror:%d row_mask:0xf bank_mask:0xf" % (v(m), v(m), v(m), ror))
    A("v_mov_b32 %s, %s" % (v(m2), v(m)))
    A("s_nop 1")
    A("v_permlane16_swap_b32 %s, %s" % (v(m), v(m2)))
    A("v_max_f32 %s, %s, %s" % (v(m), v(m), v(m2)))
    A("v_sub_f32 %s, %s, %s" % (v(R), v(R), v(m)))
    A("v_sub_f32 %s, %s, %s" % (v(R + 1), v(R + 1), v(m)))
    A("v_exp_f32 %s, %s" % (v(R), v(R)))
    A("v_exp_f32 %s, %s" % (v(R + 1), v(R + 1)))
    if not fst(4):
        A("s_nop 0")
    A("v_add_f32 %s, %s, %s" % (v(m), v(R), v(R + 1)))
    for ror in [8, 4, 2, 1]:
        A("s_nop 1")
        A("v_add_f32_dpp %s, %s, %s row_ror:%d row_mask:0x%x bank_mask:0xf" % (v(m), v(m), v(m), ror, 0x5 if ror >= 4 else 0xf))
    A("v_mov_b32 %s, %s" % (v(m2), v(m)))
    A("s_nop 1")
    A("v_permlane16_swap_b32 %s, %s" % (v(m), v(m2)))
    A("v_add_f32 %s, %s, %s" % (v(m), v(m), v(m2)))
    A("v_rcp_f32 %s, %s" % (v(m), v(m)))
    A("s_nop 0")
    A("v_mul_f32 %s, %s, %s" % (v(R), v(R), v(m)))
    A("v_mul_f32 %s, %s, %s" % (v(R + 1), v(R + 1), v(m)))
    A("v_cvt_pk_bf16_f32 %s, %s, %s" % (v(R), v(R), v(R + 1)))
    A("v_min_u32 %s, -2, %s" % (v(R), v(R)))
    SL = A.newlabel("slowp")
    BK = A.newlabel("backp")
    A("s_cbranch_scc0 %s" % SL)
    A("buffer_store_dword %s, %s, %s, %s offen" % (v(R), v(VP), SRD, s(S_P)))
    A.label(BK)
    if PARAM.get("pack"):
        A("s_waitcnt vmcnt(0)")
    st.st(A, 3)
    if diag == 5:
        A("s_mov_b32 s80, %s" % s(S_SPIN))
    if diag:
        A("s_memrealtime s[68:69]")
    st.flush(A, 14, R + 4)

    def tail_slow():
        A.label(SL)
        A("buffer_store_dword %s, %s, %s, %s offen sc1" % (v(R), v(VP), SRD, s(S_P)))
        A("s_branch %s" % BK)
    tails.append(tail_slow)

    def tail_retry():
        A.label(RF)
        A("s_sub_u32 s45, s45, 1")
        A("s_cbranch_scc0 %s" % RT)
        A("s_cmp_eq_u32 %s, 0" % s(S_SLOW))
        A("s_branch %s" % RB)
    if PARAM["nobar"]:
        tails.append(tail_retry)
        A("v_mov_b32 %s, -1" % v(R + 2))
        A("v_mov_b32 %s, -1" % v(R + 3))
        for k in range(4):
            A("ds_write_b64 %s, %s offset:%d" % (v(VLR), v(R + 2, 2), k * SRS * 32))
        if diag == 5:
            A("s_mov_b32 s82, s45")
        A("s_movk_i32 s45, 2000")
    zero(len(zr))
    A("s_add_u32 %s, %s, 16384" % (s(S_P), s(S_P)))
    A("s_add_u32 %s, %s, 1" % (s(S_STEP), s(S_STEP)))
    if PARAM["sc_sleep"]:
        A("s_sleep %d" % PARAM["sc_sleep"])
    A("s_cmp_lt_u32 %s, %d" % (s(S_STEP), nsteps))
    A("s_cbranch_scc1 %s" % LOOP)
    A("s_waitcnt vmcnt(0)")
    st.dump(A)
    event(A, 3)
    A("s_endpgm")
    for t in tails:
        t()


RED2 = 0
OC_MEMI = 4096
OC_WL = 12288


def gen_out(A, abort, diag=0, nsteps=63):
    MA, YA, YP, U, P, D, WS = 0, 28, 60, 76, 108, 120, 128
    IDX, VLP, VPA, VPB, VLW, VLR, VST, CHK, VWL, R, A1 = 160, 161, 162, 163, 164, 165, 166, 167, 168, 169, 172
    Q, Z, VX = 68, 0, 72
    VFM, VFP, VFS = 165, 171, 175
    st = Stamps(diag)

    def W(i, j):
        x = (i * 7 + j) * 8
        return a(x, 8) if x < 256 else v(176 + x - 256, 8)

    def Wh(i, j, hf):
        x = (i * 14 + 2 * j + hf) * 4
        return a(x, 4) if x < 256 else v(176 + x - 256, 4)

    A("s_sub_u32 s30, %s, 16" % s(S_ROLE))
    A("s_lshr_b32 s25, s30, 1")
    A("s_lshl_b32 s25, s25, 11")
    slot_consts(A, VLP, A1, OC_MEMI, "s25")
    A("""
    s_mul_i32 s22, %s, %d
    s_mul_i32 s23, s30, %d
    s_add_u32 s22, s22, s23
    s_add_u32 s22, s22, 0x%x
    s_mul_i32 s24, %s, 28672
    s_add_u32 s24, s24, %d
    """ % (s(S_W), 4 * 28 * 14336, 2 * 14336, VW, s(S_W), OC_WL))
    A("s_lshl_b32 s25, s30, 1")
    for j in range(7):
        A("s_add_u32 s%d, s22, s%d" % (S_KB + j, S_KB + j))
    tails = []
    ph = [[], [], []]
    for j in range(7):
        for hh in range(4):
            for ct in range(2):
                g_ = ["s_add_u32 m0, s24, %d" % (ct * 14336 + j * 2048)] if hh == 3 else []
                g_.append("s_add_u32 s23, s%d, %d" % (S_KB + j, hh * 28 * 14336 + ct * 14336))
                for hf in range(2):
                    if hh < 3:
                        g_.append(ld(Wh(2 * hh + ct, j, hf), "v9", "s23", hf * 1024, PF_FL[PARAM.get("wfl", 1)]))
                    else:
                        o = " offset:1024" if hf else ""
                        g_.append("buffer_load_dwordx4 v9, %s, s23 offen%s %s lds" % (SRD, o, PF_FL[PARAM.get("wfl", 1)]))
                ph[min(j >> 1, 2)].append(g_)
    stream(A, "V", "s25", ph, abort, tails, PARAM.get("oc_hold", 5), PARAM.get("oc_pace", 8), 4)
    idx_const(A, IDX)
    A("""
    s_lshl_b32 s24, {W}, 9
    s_add_u32 s24, s24, 8192
    v_lshl_add_u32 {VPB}, v0, 3, s24
    s_lshl_b32 s24, {W}, 10
    s_add_u32 s24, s24, {RED2}
    v_add_u32 {VLW}, s24, v9
    s_mul_i32 s24, {W}, 28672
    s_add_u32 s24, s24, {OC_WL}
    v_add_u32 {VWL}, s24, v9
    s_lshr_b32 s25, s30, 1
    s_lshl_b32 s25, s25, 10
    s_and_b32 s26, s30, 1
    s_lshl_b32 s26, s26, 5
    s_add_u32 s25, s25, s26
    """.format(W=s(S_W), VPB=v(VPB), VLW=v(VLW), VWL=v(VWL), RED2=RED2, OC_WL=OC_WL))
    for k in range(3):
        A("v_xor_b32 %s, %d, %s" % (v(VX + k), 1024 * (k + 1), v(VLW)))
    bits(A, v(VST), [(2, 2, 256), (4, 2, 64), (0, 2, 4)], "s25")
    A("""
    s_lshl_b32 s24, {W}, 4
    s_lshl_b32 s25, s30, 7
    s_add_u32 s24, s24, s25
    s_add_u32 s24, s24, {PF}
    v_and_b32 v1, 3, v0
    v_lshl_add_u32 {VFP}, v1, 2, s24
    s_lshl_b32 s24, s30, 4
    s_lshl_b32 s25, {W}, 2
    s_add_u32 s24, s24, s25
    s_add_u32 s24, s24, {MF}
    s_cmp_lt_u32 s30, 2
    s_cselect_b32 s48, -1, 0xffff
    s_mov_b32 s49, 0
    v_and_b32 v1, 15, v0
    v_lshl_add_u32 {VFS}, v1, 8, s24
    v_bfe_u32 v1, v0, 4, 1
    v_mul_u32_u24 v1, 224, v1
    v_add_u32 {VFS}, {VFS}, v1
    """.format(W=s(S_W), MF=MEM_FL, PF=P_FL, VFM=v(VFM), VFP=v(VFP), VFS=v(VFS)))
    A("s_mov_b32 %s, 0" % s(S_STEP))
    A("s_mov_b32 %s, 0x%x" % (s(S_P), PM))
    A("s_mul_i32 %s, %s, 6144" % (s(S_X), s(S_W)))
    A("s_lshl_b32 s24, s30, 15")
    A("s_add_u32 %s, %s, s24" % (s(S_X), s(S_X)))
    A("s_add_u32 %s, %s, 0x%x" % (s(S_X), s(S_X), UB))
    A("s_add_u32 %s, %s, 4096" % (s(S_X2), s(S_X)))
    A("""
    s_lshr_b32 s24, s30, 1
    s_lshl_b32 s24, s24, 2
    s_add_u32 s24, s24, {W}
    s_lshl_b32 s24, s24, 7
    s_and_b32 s25, s30, 1
    s_lshl_b32 s25, s25, 3
    s_add_u32 s24, s24, s25
    s_add_u32 {Y}, s24, 0x{UF:x}
    """.format(W=s(S_W), Y=s(S_Y), UF=CNT + C_UF * 128))
    UFR, S_UPG = P + 10, 51
    ufl = "buffer_load_dwordx2 %s, off, %s, %s sc1" % (v(UFR, 2), SRD, s(S_Y))
    ufc = ["v_min_u32 %s, %s, %s" % (v(UFR), v(UFR), v(UFR + 1)), "s_nop 0", "v_readfirstlane_b32 %s, %s" % (s(S_UPG), v(UFR))]
    wait_dep(A, "C", None, abort)
    event(A, 1)
    A("s_mov_b32 %s, %s" % (s(S_NOFL), s(S_SLOW)))
    A("s_mov_b32 %s, 0x%x" % (s(S_MEMN), MEM + MEM_S))
    for i in range(4):
        A("v_mov_b32 %s, -1" % v(Z + 4 + i))
    A("ds_write_b128 %s, %s" % (v(VLW), v(Z + 4, 4)))
    if diag:
        A("s_mov_b32 s68, 0")
    for i in range(32):
        A("v_mov_b32 %s, 0" % v(YA + i))

    lg = Lg()
    frs = [(6, 0), (7, 0), (6, 1), (7, 1)] + [(6, j) for j in range(2, 7)] + [(7, j) for j in range(2, 7)]

    def stage(f):
        i, j = frs[f]
        return [lg.issue("ds_read_b128 %s, %s offset:%d" % (v(WS + 8 * (f & 3) + 4 * hf, 4), v(VWL), (i - 6) * 14336 + (2 * j + hf) * 1024),
                         "w%d" % f) for hf in range(2)]

    uloads = []
    for i in range(8):
        hh, ct = i >> 1, i & 1
        uloads.append(ld(v(U + ((hh >> 1) * 2 + ct) * 8 + (hh & 1) * 4, 4), v(VLP), s(S_X) if i < 4 else s(S_X2),
                         (i & 3) * 1024, PF_FL[PARAM["ufl"]]))
    nu0 = PARAM["nu0"]
    for f in range(4):
        for o in stage(f):
            A(o)
    A("s_waitcnt lgkmcnt(0)")
    lg.done = lg.n
    LOOP = A.newlabel("oc_loop")
    UW = A.newlabel("oc_uw")
    A.label(UW)
    A(ufl)
    spin_guard(A, abort)
    A("s_waitcnt vmcnt(0)")
    for o in ufc:
        A(o)
    A("s_cmp_gt_u32 %s, %s" % (s(S_UPG), s(S_STEP)))
    A("s_cbranch_scc0 %s" % UW)
    if EV["on"]:
        A("s_cmp_lg_u32 %s, 0" % s(S_STEP))
        A("s_cbranch_scc1 %s" % LOOP)
        event(A, 2)
    A.label(LOOP)
    if diag:
        st.flush(A, 10, P)
        A("s_mov_b32 s68, 0")
    for i in range(0, 8, 2):
        A("v_mov_b64 %s, 0" % v(D + i, 2))
    nops(A, PARAM["oc_mfd"])
    st.st(A, 0)
    ml = [ld(v(MA, 4), v(VLP), s(S_MEM)), ld(v(MA + 4, 4), v(VLP), s(S_MEM2))]
    for o in ml:
        A(o)
    for i in range(0, 32, 2):
        A("v_mov_b64 %s, 0" % v(YA + i, 2))
        if (i >> 1) % 4 == 3 and (i >> 3) < nu0:
            A(uloads[i >> 3])
    A("s_waitcnt vmcnt(%d)" % nu0)
    MF_ = A.newlabel("oc_mfail")
    MB_ = A.newlabel("oc_mback")
    A("v_max_u32 %s, %s, %s" % (v(CHK), v(MA), v(MA + 4)))
    A("v_cmp_eq_u32 vcc, -1, %s" % v(CHK))
    A("s_cbranch_vccnz %s" % MF_)
    A.label(MB_)

    def tail_mfail():
        A.label(MF_)
        spin_guard(A, abort)
        poll(A, ml, [MA, MA + 4, MA + 4], CHK, abort, 1, PARAM["oc_msleep"])
        A("s_branch %s" % MB_)
    tails.append(tail_mfail)
    st.st(A, 1)

    def yp(i):
        hh, ct = i >> 1, i & 1
        y = YA + 4 * i
        return [fadd(y, y, y + 2), fadd(y + 1, y + 1, y + 3), cvt(YP + 4 * ct + hh, y, y + 1)]

    order = [(i, j) for j in range(2) for i in [6, 7, 0, 1, 2, 3, 4, 5]]
    for L_, a0 in [(6, 0), (7, 3)]:
        reg = [(a0 + t, j) for t in range(3) for j in range(2, 7)]
        for k in range(20):
            if k % 3 == 0 and k < 15:
                order.append((L_, 2 + k // 3))
            else:
                order.append(reg.pop(0))
    vq = []
    nextf = 4
    upos = [-1] * nu0 + [PARAM["u0"] + PARAM["usp1"] * k for k in range(4 - nu0)]
    upos += [max(upos[-1], PARAM["u0"] - PARAM["usp"]) + PARAM["usp"] * (k + 1) for k in range(4)]
    fl = "buffer_load_dword %s, %s, %s, %s offen sc1" % (v(CHK), v(VFP), SRD, s(S_P))
    fpos = [55 - 3 * k for k in range(PARAM["oc_nfl"])] if PARAM["flag"] else []
    nxt = [2, 3, 0, 1]
    for n, (i, j) in enumerate(order):
        if i >= 6:
            f = frs.index((i, j))
            A(lg.wait("w%d" % f))
            bop = v(WS + 8 * (f & 3), 8)
        else:
            bop = W(i, j)
        if n == 16:
            A(lg.wait("m6"))
        A("%s %s, %s, %s, %s" % (SMF, v(YA + 4 * i, 4), v(MA + 4 * j, 4), bop, v(IDX)))
        if n < 2:
            A("ds_write_b128 %s, %s offset:%d" % (v(VLP), v(MA + 4 * n, 4), OC_MEMI + 1024 * n))
        elif n == 5:
            A("s_waitcnt lgkmcnt(0)")
            A("s_barrier")
            mr = mem_reads(lg, MA, A1)
            A(mr[0])
        elif n == 6:
            A(mr[1]); A(mr[2])
        elif n == 7:
            A(mr[3]); A(mr[4])
        elif n >= 8 and nextf < 14 and order.index(frs[nextf - 4]) < n:
            for o in stage(nextf):
                A(o)
            nextf += 1
        elif nextf >= 14 and nextf < 18 and order.index(frs[nextf - 4]) < n:
            for o in stage(nxt[nextf - 14]):
                A(o)
            nextf += 1
        if n in upos and not PARAM.get("nou"):
            A(uloads[upos.index(n)])
            if n == upos[-1]:
                A(ufl)
        if n in fpos:
            A(fl)
        if vq and vq[0][0] <= n:
            A(vq.pop(0)[1])
        if j == 6:
            vq += [(n + 2, o) for o in yp(i)]
    A("s_nop 4")
    for _, o in vq:
        A(o)
    assert nextf == 18
    st.st(A, 2)
    for r_, inc in [(S_MEM, MEM_S), (S_MEM2, MEM_S), (S_X, U_S), (S_X2, U_S)]:
        A("s_add_u32 %s, %s, %d" % (s(r_), s(r_), inc))
    A("s_waitcnt vmcnt(%d) lgkmcnt(0)" % len(fpos))
    for o in ufc:
        A(o)
    st.st(A, 5)
    if diag == 5:
        A("s_mov_b32 s78, %s" % s(S_SPIN))
    flag_wait(A, CHK, VFP, s(S_P), abort, PARAM["oc_nfl"], 0, PARAM["oc_fd"])
    if diag == 5:
        A("s_mov_b32 s72, %s" % s(S_SPIN))
        A("s_memtime s[76:77]")
    pl = [ld(v(P, 4), v(VLP), s(S_P), 0), ld(v(P + 4, 4), v(VLP), s(S_P), 1024),
          "buffer_load_dwordx2 %s, %s, %s, %s offen sc1" % (v(P + 8, 2), v(VPB), SRD, s(S_P))]

    def O(b, ct):
        if b < 2:
            return "%s %s, %s, %s, %s" % (SMF, v(D + 4 * ct, 4), v(P + 4 * b, 4), v(U + (b * 2 + ct) * 8, 8), v(IDX))
        return "%s %s, %s, %s, %s" % (SMF32, v(D + 4 * ct, 4), v(P + 8, 2), v(YP + 4 * ct, 4), v(IDX))
    spec_poll(A, pl,
              ["v_max3_u32 %s, %s, %s, %s" % (v(CHK), v(P), v(P + 4), v(P + 8)),
               "v_max_u32 %s, %s, %s" % (v(CHK), v(CHK), v(P + 9)), "v_cmp_eq_u32 vcc, -1, %s" % v(CHK)],
              [O(2, 0)], [D, D + 2], abort, PARAM["oc_sets"], PARAM["oc_gap"], PARAM["oc_nd"])
    st.st(A, 3)
    if PARAM["flag"]:
        A("s_mov_b64 exec, s[48:49]")
        A("buffer_store_dword %s, %s, %s, %s offen" % (v(IDX), v(VFS), SRD, s(S_P)))
        A("s_mov_b64 exec, -1")
    A(O(2, 1))
    A(O(0, 0))
    A(O(1, 0))
    A(O(0, 1))
    A(O(1, 1))
    A("s_cmp_eq_u32 %s, 0" % s(S_SLOW))
    A(fadd(Q, D, D + 2))
    A(fadd(Q + 2, D + 1, D + 3))
    A("s_nop 3")
    A(fadd(Q + 1, D + 4, D + 6))
    A(fadd(Q + 3, D + 5, D + 7))
    A("ds_write_b128 %s, %s" % (v(VLW), v(Q, 4)))
    for k in range(3):
        A("ds_read_b128 %s, %s" % (v(Z + 4 * k, 4), v(VX + k)))
    zr = list(range(YA, YA + 32))

    def zero(n=1):
        for i in range(n):
            A("v_mov_b32 %s, 0" % v(zr.pop(0)))
    for i in range(PARAM["oc_f"]):
        A("s_nop 1")
        zero()
    A("s_waitcnt lgkmcnt(2)")
    A(pkadd(Q, Q, Z))
    A(pkadd(Q + 2, Q + 2, Z + 2))
    A("s_waitcnt lgkmcnt(0)")
    A("v_max3_u32 %s, %s, %s, %s" % (v(CHK), v(Z), v(Z + 4), v(Z + 8)))
    A("v_cmp_eq_u32 vcc, -1, %s" % v(CHK))
    A(pkadd(Z + 4, Z + 4, Z + 8))
    A(pkadd(Z + 6, Z + 6, Z + 10))
    A(pkadd(Q, Q, Z + 4))
    A(pkadd(Q + 2, Q + 2, Z + 6))
    A(cvt(R, Q, Q + 1))
    A(cvt(R + 1, Q + 2, Q + 3))
    A("v_min_u32 %s, -2, %s" % (v(R), v(R)))
    A("v_min_u32 %s, -2, %s" % (v(R + 1), v(R + 1)))
    SL = A.newlabel("slowm")
    BK = A.newlabel("backm")
    RS = A.newlabel("resetm")
    A("s_cbranch_vccnz %s" % BK)
    A("s_cbranch_scc0 %s" % SL)
    A("buffer_store_dword %s, %s, %s, %s offen" % (v(R), v(VST), SRD, s(S_MEMN)))
    A("buffer_store_dword %s, %s, %s, %s offen offset:16" % (v(R + 1), v(VST), SRD, s(S_MEMN)))
    A.label(RS)
    if PARAM.get("mack"):
        A("s_waitcnt vmcnt(0)")
    st.st(A, 4)
    for i in range(4):
        A("v_mov_b32 %s, -1" % v(Z + i))
    A("ds_write_b128 %s, %s" % (v(VLW), v(Z, 4)))
    for k in range(3):
        A("ds_write_b128 %s, %s" % (v(VX + k), v(Z, 4)))
    A.label(BK)
    if diag == 5:
        A("s_mov_b32 s74, %s" % s(S_SPIN))

    def tail_slow():
        A.label(SL)
        A("buffer_store_dword %s, %s, %s, %s offen sc1" % (v(R), v(VST), SRD, s(S_MEMN)))
        A("buffer_store_dword %s, %s, %s, %s offen offset:16 sc1" % (v(R + 1), v(VST), SRD, s(S_MEMN)))
        A("s_branch %s" % RS)
    tails.append(tail_slow)
    for r_, inc in [(S_MEMN, MEM_S), (S_P, 16384), (S_STEP, 1)]:
        A("s_add_u32 %s, %s, %d" % (s(r_), s(r_), inc))
    A("s_cmp_eq_u32 %s, %d" % (s(S_STEP), nsteps - 1))
    A("s_cselect_b32 s22, 8192, 0")
    A("s_add_u32 %s, %s, s22" % (s(S_MEMN), s(S_MEMN)))
    A("s_or_b32 %s, %s, s22" % (s(S_SLOW), s(S_SLOW)))
    A("s_barrier")
    A("s_min_u32 %s, %s, %d" % (s(S_UPG), s(S_UPG), nsteps))
    A("s_cmp_gt_u32 %s, %s" % (s(S_UPG), s(S_STEP)))
    A("s_cbranch_scc1 %s" % LOOP)
    A("s_cmp_lt_u32 %s, %d" % (s(S_STEP), nsteps))
    A("s_cbranch_scc1 %s" % UW)
    A("s_waitcnt vmcnt(0)")
    st.dump(A)
    event(A, 3)
    A("s_endpgm")
    for t in tails:
        t()


def gen_pf(A, abort):
    wait_dep(A, "M", None, abort)
    A("""
    s_mov_b32 {STEP}, 1
    v_lshlrev_b32 v1, 4, v0
    s_lshl_b32 s22, {W}, 11
    s_min_u32 s22, s22, 5120
    v_add_u32 v1, s22, v1
    s_mov_b32 {MEM}, 0x{M1:x}
    s_mov_b32 {X}, 0x{W1:x}
    """.format(W=s(S_W), STEP=s(S_STEP), X=s(S_X), MEM=s(S_MEM), M1=MEM + MEM_S, W1=MEMW + MEM_S))
    LOOP = A.newlabel("pf_loop")
    A.label(LOOP)
    poll(A, [ld(v(4, 4), "v1", s(S_MEM)), ld(v(8, 4), "v1", s(S_MEM), 1024)], [4, 8, 8], 2, abort, 1, 3)
    A("buffer_store_dwordx4 v[4:7], v1, %s, %s offen sc1" % (SRD, s(S_X)))
    A("buffer_store_dwordx4 v[8:11], v1, %s, %s offen offset:1024 sc1" % (SRD, s(S_X)))
    A("s_add_u32 %s, %s, %d" % (s(S_X), s(S_X), MEM_S))
    A("s_add_u32 %s, %s, %d" % (s(S_MEM), s(S_MEM), MEM_S))
    A("s_add_u32 %s, %s, 1" % (s(S_STEP), s(S_STEP)))
    A("s_waitcnt vmcnt(0)")
    A("s_sleep 16")
    A("s_cmp_lt_u32 %s, 63" % s(S_STEP))
    A("s_cbranch_scc1 %s" % LOOP)
    A("s_endpgm")


def gen_pf2(A, abort, ahead=3):
    A("""
    s_cmp_lg_u32 {W}, 0
    s_cbranch_scc1 .pf_end
    s_load_dwordx2 s[52:53], s[0:1], 0
    s_mov_b32 s54, {XB}
    s_mov_b32 s55, 0x00020000
    s_waitcnt lgkmcnt(0)
    s_and_b32 s53, s53, 0xffff
    """.format(W=s(S_W), XB=2048 * 896))
    wait_dep(A, "M", None, abort)
    A("""
    s_mov_b32 {STEP}, 0
    v_lshlrev_b32 v1, 7, v0
    v_mov_b32 v2, 0
    s_mov_b32 {Y}, 28672
    s_mov_b32 {MEM}, 0x{M0:x}
    s_mov_b32 {X}, 0x{M1:x}
    s_mov_b32 {P}, 0x{PM:x}
    """.format(W=s(S_W), STEP=s(S_STEP), X=s(S_X), Y=s(S_Y), XH=XH, MEM=s(S_MEM), M0=MEM, M1=MEM + MEM_S, PM=PM, P=s(S_P)))
    LOOP = A.newlabel("pf_loop")
    PL = A.newlabel("pf_poll")
    GO = A.newlabel("pf_go")
    A.label(LOOP)
    A("s_cmp_lt_u32 %s, %d" % (s(S_STEP), ahead))
    A("s_cbranch_scc1 %s" % GO)
    A.label(PL)
    spin_guard(A, abort)
    A("s_sleep 4")
    A("buffer_load_dword v3, v2, %s, %s offen sc1" % (SRD, s(S_MEM)))
    A("s_waitcnt vmcnt(0)")
    A("v_readfirstlane_b32 s22, v3")
    A("s_cmp_eq_u32 s22, -1")
    A("s_cbranch_scc1 %s" % PL)
    A("s_add_u32 %s, %s, %d" % (s(S_MEM), s(S_MEM), MEM_S))
    A.label(GO)
    A("buffer_load_dword v4, v1, %s, %s offen sc1" % (SRD, s(S_X)))
    A("buffer_load_dword v5, v1, %s, %s offen sc1" % (SRD, s(S_P)))
    A("s_add_u32 s22, %s, 8192" % s(S_P))
    A("buffer_load_dword v6, v1, %s, s22 offen sc1" % SRD)
    A("s_mov_b32 exec_hi, 0xffffff")
    for i in range(4):
        A("buffer_load_dword v%d, v1, s[52:55], %s offen" % (7 + i, s(S_Y)))
        A("s_add_u32 %s, %s, 7168" % (s(S_Y), s(S_Y)))
    A("s_mov_b32 exec_hi, -1")
    A("s_add_u32 %s, %s, %d" % (s(S_X), s(S_X), MEM_S))
    A("s_add_u32 %s, %s, 16384" % (s(S_P), s(S_P)))
    A("s_add_u32 %s, %s, 1" % (s(S_STEP), s(S_STEP)))
    A("s_cmp_lt_u32 %s, 63" % s(S_STEP))
    A("s_cbranch_scc1 %s" % LOOP)
    A("s_waitcnt vmcnt(0)")
    A.label(".pf_end")
    A("s_endpgm")
```

```python
import struct
from common import *

MF32 = "v_mfma_f32_16x16x32_bf16"
CSC = struct.unpack("<I", struct.pack("<f", (1 / 16) * 1.4426950408889634))[0]
WBYTES = 448 * 8192
SPIN_MAX = 1 << 20
DSRD = "s[92:95]"
L_ROLE = 152064


def srd(A, dst, lo, nbytes):
    A("s_mov_b32 s%d, s%d" % (dst, lo))
    A("s_and_b32 s%d, s%d, 0xffff" % (dst + 1, lo + 1))
    A("s_mov_b32 s%d, 0x%x" % (dst + 2, nbytes))
    A("s_mov_b32 s%d, 0x00020000" % (dst + 3))


def cvt(d, a_, b_):
    return "v_cvt_pk_bf16_f32 %s, %s, %s" % (v(d), v(a_), v(b_))


class Vm:
    def __init__(self, A):
        self.A = A
        self.n = 0
        self.tag = {}

    def op(self, ins, tag=None):
        self.A(ins)
        self.n += 1
        if tag:
            self.tag[tag] = self.n

    def cnt(self, tag):
        k = self.n - self.tag[tag]
        assert k <= 63
        return k


def ticket(A):
    L = A.newlabel("tk")
    A("s_cmp_lg_u32 s8, 0")
    A("s_cbranch_scc1 %s" % L)
    A("s_lshl_b32 s22, s10, 5")
    A("s_mov_b64 exec, 1")
    A("buffer_atomic_add v19, off, %s, s22 sc0" % DSRD)
    A("s_mov_b64 exec, -1")
    A.label(L)


def wait_ready(A, abort, sleep=2):
    L = A.newlabel("ww")
    G = A.newlabel("wwg")
    A("s_lshl_b32 s29, s10, 5")
    A.label(L)
    A("buffer_load_dword v21, off, %s, s29 sc1" % DSRD)
    A("s_sub_u32 s19, s19, 1")
    A("s_cbranch_scc1 %s" % abort)
    A("s_waitcnt vmcnt(0)")
    A("v_readfirstlane_b32 s23, v21")
    A("s_bitcmp1_b32 s23, 30")
    A("s_cbranch_scc1 %s" % G)
    A("s_sleep %d" % sleep)
    A("s_branch %s" % L)
    A.label(G)


def gen_phase1(A, abort, PARAM):
    EB = 0x20000
    NT = " nt" if PARAM.get("fnt", 1) else ""
    SL, TL, IP = 16896, 8448, 1056
    RB = 7 * SL
    AF, ACC, OUT, B = 24, 88, 120, 128
    R, P = 24, 56
    SW = 16 * PARAM.get("swap", 0)
    FIX = """
    s_waitcnt lgkmcnt(0)
    s_mov_b32 s4, s94
    s_and_b32 s5, s95, 0xffff
    s_and_b32 s93, s93, 0xffff
    s_mov_b32 s94, 256
    s_mov_b32 s95, 0x00020000
    """
    A("""
    s_cmp_ge_u32 s2, 256
    s_cbranch_scc1 .role_none
    s_and_b32 s21, s2, 7
    s_lshr_b32 s20, s2, 3
    s_lshl_b32 s22, s21, 5
    s_add_u32 s20, s20, s22
    s_cmp_lt_u32 s20, 144
    s_cselect_b32 s22, %d, %d
    s_load_dwordx4 s[44:47], s[0:1], s22
    s_load_dwordx4 s[92:95], s[0:1], 88
    v_lshrrev_b32 v1, 6, v0
    s_getreg_b32 s10, hwreg(HW_REG_XCC_ID)
    s_mov_b32 s6, 0x%x
    s_mov_b32 s7, 0x00020000
    v_readfirstlane_b32 s8, v1
    v_and_b32 v0, 63, v0
    v_lshlrev_b32 v9, 4, v0
    v_mov_b32 v19, 1
    v_mov_b32 v20, 1
    s_and_b32 s10, s10, 7
    s_mov_b32 s19, 0x%x
    s_cmp_lt_u32 s20, 32
    s_cbranch_scc1 .p1_fill
    s_sub_u32 s20, s20, 32
    s_mul_i32 s21, s20, 9363
    s_lshr_b32 s21, s21, 16
    s_mul_i32 s23, s21, 7
    s_sub_u32 s31, s20, s23
    s_and_b32 s30, s21, 15
    s_xor_b32 s21, s21, %d
    s_lshl_b32 s26, s30, 9
    s_mul_i32 s27, s8, %d
    """ % (32 - SW, 16 + SW, WS_BYTES, SPIN_MAX, SW, 2 * SL))
    bits(A, "v4", [(0, 5, 16), (5, 1, 16 * 8192)])
    A("""
    v_add_u32 v5, 0x2000, v4
    v_add_u32 v6, 0x4000, v4
    v_add_u32 v7, 0x6000, v4
    """)
    for q in range(4):
        A("s_add_u32 s22, s8, %d" % q)
        A("s_and_b32 s22, s22, 3")
        A("s_lshl_b32 s%d, s22, 15" % (32 + q))
        A("s_and_b32 s23, s22, 1")
        A("s_mul_i32 s23, s23, %d" % TL)
        A("s_lshr_b32 s22, s22, 1")
        A("s_mul_i32 s22, s22, %d" % (4 * IP))
        A("s_add_u32 s22, s22, s23")
        A("s_add_u32 s%d, s22, s27" % (36 + q))
    A("""
    s_lshr_b32 s24, s30, 2
    s_lshl_b32 s24, s24, 1
    s_cmp_ge_u32 s21, 16
    s_cselect_b32 s24, 0, s24
    s_add_u32 s24, s24, s31
    s_sub_u32 s23, s24, 7
    s_min_u32 s24, s24, s23
    s_lshl_b32 s24, s24, 1
    s_add_u32 s24, s24, s8
    """)
    for i in range(4):
        A("s_add_u32 s22, s24, %d" % (4 * i))
        A("s_sub_u32 s23, s22, 14")
        A("s_min_u32 s%d, s22, s23" % (40 + i))

    def adma(ks, slot, pad=True):
        out = [["s_lshl_b32 s28, s%d, 18" % ks, "s_add_u32 s28, s28, s26"]]
        for q in range(4):
            out[-1].append("s_add_u32 s22, s28, s%d" % (32 + q))
            for j in range(4):
                out[-1].append("s_add_u32 m0, s%d, %d" % (36 + q, slot * SL + j * IP))
                out.append(["buffer_load_dwordx4 v%d, s[64:67], s22 offen%s lds" % (4 + j, NT)])
        if pad:
            return [o for g in out for o in ["s_nop 0"] + g]
        return out

    A("""
    s_and_b32 s22, s20, 0xe0
    s_bitcmp1_b32 s20, 4
    s_cselect_b32 s23, 31, 0
    s_add_u32 s22, s22, s23
    s_mul_i32 s22, s22, 9363
    s_bfe_u32 s22, s22, 0x40010
    s_lshl_b32 s22, s22, 9
    s_and_b32 s23, s20, 15
    s_lshl_b32 s23, s23, 2
    s_add_u32 s23, s23, s8
    s_mul_i32 s23, s23, %d
    s_add_u32 s58, s22, s23
    v_min_u32 v17, 27, v0
    """ % (7 * 8192))
    bits(A, "v16", [(0, 2, 128), (2, 3, 8192)], src="v17")

    def hpf():
        if PARAM.get("hpf", 1) in (1, 2):
            A("buffer_load_dword v17, v16, s[64:67], s58 offen" + (" nt" if PARAM.get("hpf", 1) == 2 else ""))

    def common(base, scale, line):
        for o in adma(40, 0):
            A(o)
        if PARAM.get("hpf", 1) in (3, 4):
            A("buffer_load_dword v17, v16, s[64:67], s58 offen" + (" nt" if PARAM.get("hpf", 1) == 4 else ""))
        ticket(A)
        A("""
        s_mul_i32 s55, s30, %d
        s_add_u32 s55, s55, 0x%x
        v_mov_b32 v2, 0x%x
        v_mov_b32 v3, v2
        """ % (28 * 14336, base, scale))
        for u in range(4):
            if base == VW:
                A("s_lshl_b32 s22, s31, 2")
                A("s_add_u32 s22, s22, %d" % u)
            else:
                A("s_add_u32 s22, s31, %d" % (7 - 2 * u))
                A("s_sub_u32 s23, s22, 7")
                A("s_min_u32 s22, s22, s23")
                A("s_add_u32 s22, s22, %d" % (7 * u))
            A("s_mul_i32 s22, s22, 14336")
            A("s_add_u32 s%d, s22, s55" % (48 + u))
        A(line)
        bits(A, "v15", [(0, 3, IP), (3, 1, 512), (4, 2, 16)])
        A("v_add_u32 v18, %d, v15" % RB)
        A("v_add_u32 v15, s27, v15")

    A("s_cmp_ge_u32 s21, 16")
    A("s_cbranch_scc1 .p1_a")
    bits(A, "v11", [(4, 2, 8 * 896), (0, 4, 8)])
    A("""
    v_add_u32 v12, %d, v11
    s_mul_i32 s24, s30, 229376
    s_lshl_b32 s25, s31, 7
    s_add_u32 s24, s24, s25
    s_mul_i32 s25, s8, %d
    s_add_u32 s24, s24, s25
    s_add_u32 s25, s24, %d
    """ % (4 * 896, 64 * 896, 32 * 896))
    A(FIX)
    srd(A, 60, 46, WBYTES)
    srd(A, 64, 44, WBYTES)
    event(A, 0, "s2", EB)
    hpf()
    for k2 in range(2):
        for j in range(8):
            o = " offset:%d" % ((j & 3) * 896) if j & 3 else ""
            A("buffer_load_dwordx2 %s, %s, s[60:63], s%d offen%s" % (v(R + (k2 * 8 + j) * 2, 2), "v11" if j < 4 else "v12", 24 + k2, o + NT))
    common(VW, 0x3f800000, """
    s_lshl_b32 s22, s31, 2
    s_lshr_b32 s23, s30, 2
    s_add_u32 s22, s22, s23
    s_lshl_b32 s22, s22, 7
    s_add_u32 s54, s22, 0x%x
    """ % (CNT + C_V * 128))
    A("""
    s_mov_b32 s56, 0x05040100
    s_mov_b32 s57, 0x07060302
    s_lshl_b32 s22, s8, 7
    v_add_u32 v13, s22, v18
    """)
    event(A, 6, "s2", EB)
    A("s_waitcnt vmcnt(%d)" % (16 + EV["on"]))
    for k2 in range(2):
        for u in range(4):
            for p in range(4):
                A("v_perm_b32 %s, %s, %s, s%d" % (v(P + (k2 * 4 + u) * 4 + p), v(R + (k2 * 8 + 2 * p + 1) * 2 + (u >> 1)),
                                                 v(R + (k2 * 8 + 2 * p) * 2 + (u >> 1)), 56 + (u & 1)))
            A("ds_write_b128 v13, %s offset:%d" % (v(P + (k2 * 4 + u) * 4, 4), u * TL + k2 * 64))
    A("s_branch .p1_j")
    A.label(".p1_a")
    A("""
    s_lshl_b32 s22, s8, 1
    s_sub_u32 s23, s31, s22
    s_add_u32 s22, s23, 7
    s_min_u32 s23, s22, s23
    s_mov_b32 s22, s8
    s_lshl_b32 s24, s23, 3
    s_mov_b32 s52, 0x06020400
    s_mov_b32 s53, 0x00c04440
    s_lshr_b64 s[52:53], s[52:53], s24
    s_and_b32 s52, s52, 0xff
    s_cmp_eq_u32 s23, 6
    s_cselect_b32 s24, 4, 96
    s_and_b32 s25, s22, 1
    s_mul_i32 s24, s24, s25
    s_add_u32 s52, s52, s24
    s_lshr_b32 s22, s22, 1
    s_mul_i32 s22, s22, 224
    s_add_u32 s52, s52, s22
    s_lshl_b32 s52, s52, 13
    s_add_u32 s52, s52, s26
    s_cmp_lt_u32 s23, 4
    s_cselect_b32 s53, 16, 2
    s_cselect_b32 s24, 32, 16
    s_lshl_b32 s53, s53, 13
    s_lshl_b32 s24, s24, 13
    s_add_u32 s53, s53, s52
    v_lshrrev_b32 v1, 5, v0
    v_mul_u32_u24 v1, s24, v1
    v_and_b32 v14, 31, v0
    v_lshl_add_u32 v14, v14, 4, v1
    s_mul_i32 s54, s8, %d
    s_add_u32 s54, s54, %d
    """ % (TL, RB))
    A(FIX)
    srd(A, 60, 46, WBYTES)
    srd(A, 64, 44, WBYTES)
    event(A, 0, "s2", EB)
    hpf()
    for i in range(8):
        A("s_add_u32 m0, s54, %d" % (i * IP))
        A("s_add_u32 s23, s%d, %d" % (52 + (i >> 2), ((i & 1) + 8 * ((i >> 1) & 1)) * 8192))
        A("buffer_load_dwordx4 v14, s[60:63], s23 offen%s lds" % NT)
    common(AW, CSC, """
    s_lshl_b32 s22, s30, 7
    s_add_u32 s54, s22, 0x%x
    """ % (CNT + C_A * 128))
    event(A, 6, "s2", EB)
    A.label(".p1_j")
    A("s_cmp_eq_u32 s8, 3")
    A("s_cbranch_scc1 .p1_v1")
    for o in adma(41, 1):
        A(o)
    A("""
    s_waitcnt vmcnt(16)
    v_readfirstlane_b32 s23, v19
    s_lshr_b32 s23, s23, 30
    s_or_b32 s23, s23, s8
    s_cbranch_scc1 .p1_v2
    """)
    wait_ready(A, abort, 4)
    A.label(".p1_v1")
    A("s_waitcnt vmcnt(0)")
    A.label(".p1_v2")
    A("s_waitcnt lgkmcnt(0)")
    A("s_barrier")
    event(A, 1, "s2", EB)

    def rd(slot, kk):
        return ["ds_read_b128 %s, v15 offset:%d" % (v(AF + (kk * 2 + mt) * 4, 4), slot * SL + mt * TL + kk * 64) for mt in range(2)]

    def pre(slot):
        for kk in range(7):
            for o in rd(slot, kk):
                A(o)

    def unit(slot, bread=None, ex0=(), extra=()):
        extra, ex0 = list(extra), list(ex0)
        rdk = (lambda kk: rd(slot, kk) + [bread(kk, u) for u in range(4)]) if bread else (lambda kk: rd(slot, kk))
        per, ahead = (6, 2) if bread else (2, 7)
        if bread:
            for o in rdk(0) + rdk(1):
                A(o)
        for kk in range(8):
            if extra and kk >= 3:
                if kk == 3:
                    A("s_waitcnt lgkmcnt(0)")
            else:
                A("s_waitcnt lgkmcnt(%d)" % (per * (min(7, kk + ahead - 1) - kk)))
            nx = rdk(kk + ahead) if kk + ahead < 8 else []
            for u in range(4):
                for mt in range(2):
                    d = v(ACC + u * 8 + 4 * mt, 4)
                    A("%s %s, %s, %s, %s" % (MF32, d, v(AF + (kk * 2 + mt) * 4, 4), v(B + (kk * 4 + u) * 4, 4), d if kk else "0"))
                    if nx:
                        A(nx.pop(0))
                    elif ex0:
                        assert kk < 3
                        for o in ex0.pop(0):
                            A(o)
                    elif kk >= 3 and mt == 0 and extra:
                        for o in extra.pop(0):
                            A(o)
        assert not extra

    def epi(ks):
        A("s_lshl_b32 s59, s%d, 10" % ks)
        A("v_add_u32 v10, s59, v9")
        for u in range(4):
            r, o = ACC + u * 8, OUT + (u & 1) * 4
            for i in range(0, 8, 2):
                A("v_pk_mul_f32 %s, %s, v[2:3]" % (v(r + i, 2), v(r + i, 2)))
            for i in range(4):
                A(cvt(o + i, r + 2 * i, r + 2 * i + 1))
            A("buffer_store_dwordx4 %s, v10, s[4:7], s%d offen sc1%s" % (v(o, 4), 48 + u, " nt" if PARAM.get("snt") else ""))

    def pub(ph):
        return ["v_mov_b32 v20, 0x%x" % (1 << 8 * ph), "s_mov_b64 exec, 1", "buffer_atomic_add v20, off, s[4:7], s54", "s_mov_b64 exec, -1"]

    E = EV["on"]
    unit(0, lambda kk, u: "ds_read_b128 %s, v18 offset:%d" % (v(B + (kk * 4 + u) * 4, 4), u * TL + kk * 64))
    epi(40)
    A("s_barrier")
    A("s_cmp_ge_u32 s8, 2")
    A("s_cselect_b32 s57, 0x40000000, 0")
    A("s_mov_b32 s56, 1")
    A("s_cmp_lg_u32 s8, 3")
    A("s_cbranch_scc1 .p1_v3")
    for o in adma(41, 1):
        A(o)
    A("s_waitcnt vmcnt(16)")
    for o in pub(0):
        A(o)
    A("s_mov_b32 s56, 0")
    A("s_waitcnt vmcnt(1)")
    A.label(".p1_v3")
    A("s_waitcnt vmcnt(4)")
    pre(1)
    event(A, 8, "s2", EB)
    ex0 = adma(42, 0, False)
    ex = adma(43, 1, False)
    if PARAM.get("oob", 1):
        ex[0] = ex[0] + ["v_or_b32 v%d, s57, v%d" % (4 + j, 4 + j) for j in range(4)]
    pp = PARAM.get("ppos", 24)
    pb = ["s_waitcnt vmcnt(%d)" % (pp - 1 + E), "v_mov_b32 v20, s56"] + pub(0)[1:]
    if pp > 16:
        ex[pp - 16] = pb + ex[pp - 16]
    else:
        ex0[pp] = pb + ex0[pp]
    unit(1, None, ex0, ex)
    A("s_waitcnt vmcnt(%d)" % (17 if pp > 16 else 16))
    pre(0)
    epi(41)
    event(A, 9, "s2", EB)
    unit(0)
    A("s_waitcnt vmcnt(%d)" % E)
    for o in pub(1):
        A(o)
    A("s_cmp_ge_u32 s8, 2")
    A("s_cbranch_scc1 .p1_a0")
    pre(1)
    epi(42)
    unit(1)
    A("s_mov_b32 s42, s43")
    A.label(".p1_a0")
    A("s_nop 3")
    epi(42)
    event(A, 2, "s2", EB)
    A("s_waitcnt vmcnt(0)")
    for o in pub(2):
        A(o)
    event(A, 3, "s2", EB)
    A("s_branch .p1_role")

    A.label(".p1_fill")
    A("""
    s_load_dwordx2 s[42:43], s[0:1], 8
    s_mov_b32 s30, s20
    v_mov_b32 v4, -1
    v_mov_b32 v5, -1
    v_mov_b32 v6, -1
    v_mov_b32 v7, -1
    v_mov_b32 v12, 0
    v_mov_b32 v13, 0
    v_mov_b32 v14, 0
    v_mov_b32 v15, 0
    s_lshl_b32 s22, s8, 10
    v_add_u32 v8, s22, v9
    """)
    A(FIX)
    event(A, 0, "s2", EB)
    ticket(A)
    A("""
    s_lshl_b32 s22, s30, 2
    s_add_u32 s22, s22, s8
    s_cmp_lg_u32 s22, 3
    s_cbranch_scc1 .p1_m1
    v_mov_b32 v16, 0x40000000
    """)
    if PARAM.get("zs", 1):
        A("v_lshlrev_b32 v17, 7, v0")
        for i in range(2):
            A("s_mov_b32 s22, 0x%x" % (CNT + i * 8192))
            A("buffer_store_dwordx4 v[12:15], v17, s[4:7], s22 offen sc1")
    else:
        for i in range(12):
            if i & 3 == 0:
                A("s_mov_b32 s22, 0x%x" % (CNT + i * 1024))
            A("buffer_store_dwordx4 v[12:15], v9, s[4:7], s22 offen offset:%d sc1" % ((i & 3) * 1024))
    A("""
    v_lshlrev_b32 v18, 5, v0
    s_waitcnt vmcnt(0)
    s_mov_b64 exec, 0xff
    buffer_atomic_add v16, v18, %s, 0 offen
    s_mov_b64 exec, -1
    """ % DSRD)
    event(A, 4, "s2", EB)
    A("s_branch .p1_m3")
    A.label(".p1_m1")
    A("s_waitcnt vmcnt(0)")
    A.label(".p1_m3")
    A("s_barrier")
    event(A, 1, "s2", EB)
    A("""
    s_sub_u32 s22, s30, 1
    s_cmp_ge_u32 s22, 2
    s_cbranch_scc1 .p1_m2
    s_lshl_b32 s22, s22, 2
    s_add_u32 s22, s22, s8
    s_min_u32 s22, s22, 6
    s_lshl_b32 s23, s22, 7
    s_lshl_b32 s22, s22, 10
    s_add_u32 s22, s22, 0x%x
    s_add_u32 s24, s22, 8192
    """ % MEM)
    srd(A, 60, 42, 8 * 896)
    bits(A, "v10", [(4, 2, 32), (1, 1, 4), (2, 2, 2 * 896), (0, 1, 896)])
    for e in range(4):
        A("buffer_load_dword %s, v10, s[60:63], s23 offen offset:%d" % (v(24 + e), 8 * e))
    A("s_waitcnt vmcnt(0)")
    for e in range(4):
        A("v_min_u32 %s, -2, %s" % (v(24 + e), v(24 + e)))
    A("buffer_store_dwordx4 v[24:27], v9, s[4:7], s22 offen sc1")
    A("buffer_store_dwordx4 v[24:27], v9, s[4:7], s24 offen sc1")
    A.label(".p1_m2")
    A("""
    s_lshl_b32 s22, s30, 2
    s_add_u32 s22, s22, s8
    s_lshl_b32 s22, s22, 13
    s_add_u32 s23, s22, 0x%x
    s_add_u32 s24, s23, 4096
    s_and_b32 s25, s8, 1
    s_mul_i32 s25, s25, 3072
    s_sub_u32 s25, s22, s25
    s_add_u32 s25, s25, 0x%x
    s_add_u32 s26, s25, 4096
    """ % (SENT0, PM))
    for i in range(7):
        A("buffer_store_dwordx4 v[4:7], v9, s[4:7], s%d offen offset:%d sc1" % (23 + (i >> 2), (i & 3) * 1024))
    for i in range(5):
        A("buffer_store_dwordx4 v[4:7], v9, s[4:7], s%d offen offset:%d sc1" % (25 + (i >> 2), (i & 3) * 1024))
    A("""
    s_and_b32 s22, s30, 15
    s_lshl_b32 s22, s22, 12
    s_add_u32 s22, s22, 0x%x
    buffer_store_dwordx4 v[12:15], v8, s[4:7], s22 offen sc1
    """ % KV)
    A("s_cmp_lg_u32 s8, 0")
    A("s_cbranch_scc1 .p1_m4")
    wait_ready(A, abort)
    A.label(".p1_m4")
    A("""
    s_waitcnt vmcnt(0)
    s_barrier
    s_cmp_lg_u32 s8, 0
    s_cbranch_scc1 .p1_role
    s_mov_b64 exec, 1
    buffer_atomic_add v20, off, %s, 0 offset:%d
    s_mov_b64 exec, -1
    """ % (DSRD, D_MISC))
    event(A, 2, "s2", EB)

    A.label(".p1_role")
    A("""
    v_mov_b32 v1, %d
    s_cmp_lg_u32 s8, 0
    s_cbranch_scc1 .p1_wait_role
    s_mov_b32 s22, s10
    s_mov_b32 s24, 0
    s_mov_b64 exec, 1
    """ % L_ROLE)
    A.label(".p1_claim")
    A("""
    v_readfirstlane_b32 s25, v19
    s_and_b32 s25, s25, 0xffff
    s_cmp_lt_u32 s25, 32
    s_cbranch_scc1 .p1_got
    s_add_u32 s22, s22, 1
    s_and_b32 s22, s22, 7
    s_add_u32 s24, s24, 1
    s_mov_b32 s9, 256
    s_cmp_ge_u32 s24, 8
    s_cbranch_scc1 .p1_pub
    s_lshl_b32 s23, s22, 5
    v_mov_b32 v19, 1
    buffer_atomic_add v19, off, %s, s23 sc0
    s_waitcnt vmcnt(0)
    s_branch .p1_claim
    """ % DSRD)
    A.label(".p1_got")
    A("""
    s_lshl_b32 s9, s22, 5
    s_add_u32 s9, s9, s25
    s_sub_u32 s23, s9, %d
    s_cmp_lt_u32 s23, 16
    s_cselect_b32 s23, %d, 0
    s_cmp_ge_u32 s9, %d
    s_cselect_b32 s23, %d, s23
    s_add_u32 s9, s9, s23
    s_cmp_lg_u32 s22, 0
    s_cbranch_scc1 .p1_pub
    s_cmp_lg_u32 s10, 0
    s_cselect_b32 s25, 0x101, 1
    s_lshl_b32 s25, s25, 8
    v_mov_b32 v2, s25
    buffer_atomic_add v2, off, %s, 0 offset:%d
    """ % (R_U + 14, R_F - R_U - 14, R_F, R_U + 14 - R_F, DSRD, D_MISC))
    A.label(".p1_pub")
    A("""
    v_mov_b32 v2, s9
    ds_write_b32 v1, v2
    s_mov_b64 exec, -1
    s_waitcnt lgkmcnt(0)
    """)
    A.label(".p1_wait_role")
    A("""
    s_barrier
    ds_read_b32 v2, v1
    s_waitcnt lgkmcnt(0)
    v_readfirstlane_b32 s9, v2
    """)


def gen_fill(A, PARAM):
    for i in range(PARAM.get("fld", 0)):
        A("s_sleep 127")
    A("""
    s_sub_u32 s30, s9, %d
    s_lshl_b32 s22, s8, 10
    v_add_u32 v8, s22, v9
    v_mov_b32 v4, -1
    v_mov_b32 v5, -1
    v_mov_b32 v6, -1
    v_mov_b32 v7, -1
    v_mov_b32 v20, 0x1000000
    s_mul_i32 s22, s30, %d
    s_add_u32 s22, s22, 0x%x
    s_mov_b32 s24, 40
    """ % (R_F, 4 * PX_S, PX))
    A.label(".fill_loop")
    A("""
    buffer_store_dwordx4 v[4:7], v8, s[4:7], s22 offen sc1
    s_add_u32 s22, s22, 4096
    s_sub_u32 s24, s24, 1
    s_cmp_lg_u32 s24, 0
    s_cbranch_scc1 .fill_loop
    s_waitcnt vmcnt(0)
    s_barrier
    s_cmp_lg_u32 s8, 0
    s_cbranch_scc1 .fill_end
    s_mov_b64 exec, 1
    buffer_atomic_add v20, off, %s, 0 offset:%d
    s_mov_b64 exec, -1
    """ % (DSRD, D_MISC))
    A.label(".fill_end")
    event(A, 7)
    A("s_endpgm")
```

```python
from common import *
from chain import *
from k1 import srd

NEG = "0xf149f2ca"


def off(o):
    return " offset:%d" % o if o else ""


def signal(A, slot_expr_sgpr):
    L = A.newlabel("sig")
    A("s_waitcnt vmcnt(0)")
    A("s_barrier")
    A("s_cmp_lg_u32 %s, 0" % s(S_W))
    A("s_cbranch_scc1 %s" % L)
    A("s_mov_b64 exec, 1")
    A("v_mov_b32 v1, 0")
    A("v_mov_b32 v2, 1")
    A("buffer_atomic_add v2, v1, %s, %s offen" % (SRD, slot_expr_sgpr))
    A("s_mov_b64 exec, -1")
    A.label(L)


def wait_counter2(A, slot, target, abort, sleep=4):
    L = A.newlabel("wc")
    G = A.newlabel("wcg")
    A("v_mov_b32 v1, 0")
    A("s_mov_b32 s22, 0x%x" % (CNT + slot * 128))
    A.label(L)
    A("buffer_load_dword v2, v1, %s, s22 offen sc1" % SRD)
    A("s_waitcnt vmcnt(0)")
    A("v_readfirstlane_b32 s23, v2")
    A("s_cmp_ge_u32 s23, %d" % target)
    A("s_cbranch_scc1 %s" % G)
    spin_guard(A, abort)
    A("s_sleep %d" % sleep)
    A("s_branch %s" % L)
    A.label(G)


def poll_light(A, sreg, abort, sleep):
    L = A.newlabel("pl")
    G = A.newlabel("plg")
    A("v_mov_b32 v1, 0")
    A.label(L)
    A("buffer_load_dword v2, v1, %s, %s offen sc1" % (SRD, sreg))
    A("s_waitcnt vmcnt(0)")
    A("v_readfirstlane_b32 s23, v2")
    A("s_cmp_lg_u32 s23, -1")
    A("s_cbranch_scc1 %s" % G)
    spin_guard(A, abort)
    A("s_sleep %d" % sleep)
    A("s_branch %s" % L)
    A.label(G)


def xred(A, op, m, m2):
    for sw in ["v_permlane16_swap_b32", "v_permlane32_swap_b32"]:
        A("v_mov_b32 %s, %s" % (v(m2), v(m)))
        A("s_nop 1")
        A("%s %s, %s" % (sw, v(m), v(m2)))
        A("s_nop 0")
        A("%s %s, %s, %s" % (op, v(m), v(m), v(m2)))


def gen_uworker(A, abort):
    XB, ACC, TMP = 16, 48, 80
    NB = 3
    A("""
    s_load_dwordx2 s[40:41], s[0:1], 0
    s_sub_u32 s30, {R}, {R0}
    v_lshlrev_b32 v9, 4, v0
    s_mul_i32 s22, {W}, {C1}
    s_mul_i32 s23, s30, 14336
    s_add_u32 s22, s22, s23
    s_add_u32 s22, s22, 0x{VW:x}
    s_waitcnt lgkmcnt(0)
    """.format(R=s(S_ROLE), R0=R_U, W=s(S_W), C1=4 * 28 * 14336, VW=VW))
    srd(A, 12, 40, 2048 * 896)
    bits(A, "v13", [(0, 4, 896), (4, 2, 16)])
    for q in range(4):
        A("s_add_u32 s23, %s, %d" % (s(S_W), 4 * q))
        A("s_min_u32 s23, s23, 13")
        A("s_lshl_b32 s%d, s23, 6" % (44 + q))
        A("s_lshl_b32 s%d, s23, 11" % (48 + q))
    A("s_mov_b32 s52, 0")
    A("s_mov_b32 s53, 0")
    A("s_mov_b32 s54, 0")

    def dma():
        out = []
        for q in range(4):
            for m in range(2):
                out.append(["s_add_u32 s24, s53, s%d" % (48 + q),
                            "s_add_u32 m0, s24, %d" % (m * 1024),
                            "s_add_u32 s25, s52, s%d" % (44 + q),
                            "buffer_load_dwordx4 %s, s[12:15], s25 offen lds" % ("v14" if m else "v13")])
        out.append(["s_add_u32 s52, s52, %d" % (32 * 896),
                    "s_min_u32 s52, s52, %d" % (63 * 32 * 896),
                    "s_add_u32 s53, s53, 28672",
                    "s_cmp_ge_u32 s53, %d" % (NB * 28672),
                    "s_cselect_b32 s53, 0, s53"])
        return out
    A("v_add_u32 v14, %d, v13" % (16 * 896))
    VK, VR = 100, 108
    A("s_lshr_b32 s24, s30, 2")
    A("s_lshl_b32 s23, %s, 1" % s(S_W))
    A("s_add_u32 s24, s24, s23")
    for j in range(7):
        A("s_sub_u32 s23, s24, 7")
        A("s_min_u32 s24, s24, s23")
        A("s_lshl_b32 s23, s24, 12")
        A("v_add_u32 %s, s23, v9" % v(VK + j))
        A("s_lshr_b32 s23, s23, 1")
        A("s_add_u32 s%d, s22, s23" % (32 + j))
        A("s_add_u32 s24, s24, 1")
    ph = [[], [], []]
    for j in range(7):
        for hh in range(4):
            ph[min(j >> 1, 2)].append(["s_add_u32 s23, s%d, %d" % (32 + j, hh * 28 * 14336)] +
                                      ["buffer_load_dwordx4 %s, v9, %s, s23 offen%s" % (a((hh * 14 + 2 * j + hf) * 4, 4), SRD, off(hf * 1024) + (" nt" if PARAM.get("unt") else ""))
                                       for hf in range(2)])
    d_ = dma()
    ph[0] = ph[0][:4] + [d_[0] + d_[1], d_[2] + d_[3], d_[4] + d_[5], d_[6] + d_[7] + d_[8]] + ph[0][4:]
    ph[2] += dma()
    tails = []
    stream(A, "V", "s30", ph, abort, tails, PARAM.get("uw_hold", 4), PARAM.get("uw_pace", 16), 2)
    A("""
    s_lshr_b32 s22, s30, 1
    s_lshl_b32 s22, s22, 15
    s_and_b32 s23, s30, 1
    s_lshl_b32 s23, s23, 10
    s_add_u32 s22, s22, s23
    s_lshl_b32 s23, {W}, 13
    s_add_u32 s22, s22, s23
    s_add_u32 s55, s22, 0x{UB:x}
    s_add_u32 s56, s55, 4096
    s_lshr_b32 s22, s30, 2
    s_lshl_b32 s22, s22, 2
    s_add_u32 s22, s22, {W}
    s_lshl_b32 s22, s22, 7
    s_and_b32 s23, s30, 3
    s_lshl_b32 s23, s23, 2
    s_add_u32 s22, s22, s23
    s_add_u32 s57, s22, 0x{UF:x}
    s_mov_b32 {STEP}, 0
    v_mov_b32 v10, 0
    s_waitcnt vmcnt(8)
    """.format(W=s(S_W), UB=UB, UF=CNT + C_UF * 128, STEP=s(S_STEP)))
    event(A, 1)
    LOOP = A.newlabel("uw_loop")
    A.label(LOOP)
    for j in range(7):
        A("v_add_u32 %s, s54, %s" % (v(VR + j), v(VK + j)))
    A("s_barrier")

    def xr(ks):
        return ["ds_read_b128 %s, %s%s" % (v(XB + ((ks & 3) * 2 + m) * 4, 4), v(VR + (ks >> 1)), off((ks & 1) * 2048 + m * 1024)) for m in range(2)]
    for ks in range(3):
        for o in xr(ks):
            A(o)
    A("v_mov_b32 v12, %s" % s(S_STEP))
    d_ = dma() + [["s_waitcnt vmcnt(8)", "s_mov_b64 exec, 1", "buffer_store_dword v12, v10, %s, s57 offen sc1" % SRD, "s_mov_b64 exec, -1"]]
    for ks in range(14):
        A("s_waitcnt lgkmcnt(%d)" % (2 * min(2, 13 - ks)))
        n = 0
        for hh in range(4):
            for m in range(2):
                d = v(ACC + (hh * 2 + m) * 4, 4)
                A("%s %s, %s, %s, %s" % (MF32, d, v(XB + ((ks & 3) * 2 + m) * 4, 4), a((hh * 14 + ks) * 4, 4), d if ks else "0"))
                if n < 2 and ks + 3 < 14:
                    A(xr(ks + 3)[n])
                if n == 3 and d_:
                    for o in d_.pop(0):
                        A(o)
                n += 1
    A("s_add_u32 s54, s54, 28672")
    A("s_cmp_ge_u32 s54, %d" % (NB * 28672))
    A("s_cselect_b32 s54, 0, s54")
    for hh in range(4):
        t = TMP + 4 * hh
        if hh == 3:
            A("s_nop 3")
        for m in range(2):
            r = ACC + (hh * 2 + m) * 4
            A(cvt(t + 2 * m, r, r + 1))
            A(cvt(t + 2 * m + 1, r + 2, r + 3))
        A("buffer_store_dwordx4 %s, v9, %s, s%d offen%s sc1" % (v(t, 4), SRD, 55 + (hh >> 1), off((hh & 1) * 2048)))
    A("s_add_u32 s55, s55, %d" % U_S)
    A("s_add_u32 s56, s56, %d" % U_S)
    A("s_add_u32 %s, %s, 1" % (s(S_STEP), s(S_STEP)))
    A("s_sub_u32 s22, %s, 2" % s(S_STEP))
    A("s_cmp_lt_u32 s22, 62")
    A("s_cbranch_scc1 %s" % LOOP)
    A("s_waitcnt vmcnt(0)")
    A("v_mov_b32 v12, %s" % s(S_STEP))
    A("s_mov_b64 exec, 1")
    A("buffer_store_dword v12, v10, %s, s57 offen sc1" % SRD)
    A("s_mov_b64 exec, -1")
    A("s_cmp_lt_u32 %s, 64" % s(S_STEP))
    A("s_cbranch_scc1 %s" % LOOP)
    event(A, 3)
    A("s_endpgm")
    for t_ in tails:
        t_()


def gen_tworker(A, abort):
    NT = 4
    XB, ACC = 16, 48
    TX, XF, SX, SM, MFR = 16, 48, 80, 96, 48
    VA, VB, VX, VXW, VXR, VMW, VMR, CHK = 104, 105, 106, 107, 108, 109, 110, 111
    m, m2, PO, VX2 = 112, 113, 114, 119
    RX, RM = 57344, 57344 + 16384
    S_SEG = S_STEP

    def W(tau, ks):
        i = (tau * 14 + ks) * 4
        return a(i, 4) if i < 256 else v(120 + i - 256, 4)
    A("""
    s_load_dwordx2 s[40:41], s[0:1], 0
    s_sub_u32 s22, {R}, {R0}
    s_lshr_b32 s30, s22, 2
    s_and_b32 {SEG}, s22, 3
    v_lshlrev_b32 v9, 4, v0
    s_waitcnt lgkmcnt(0)
    """.format(R=s(S_ROLE), R0=R_T, SEG=s(S_SEG)))
    srd(A, 12, 40, 2048 * 896)
    bits(A, "v13", [(0, 4, 896), (4, 2, 16)])
    A("v_add_u32 v14, %d, v13" % (16 * 896))
    for q in range(4):
        A("s_add_u32 s23, %s, %d" % (s(S_W), 4 * q))
        A("s_min_u32 s23, s23, 13")
        A("s_lshl_b32 s%d, s23, 6" % (44 + q))
        A("s_lshl_b32 s%d, s23, 11" % (48 + q))
    A("s_mul_i32 s52, %s, %d" % (s(S_SEG), 32 * 896))
    A("s_mov_b32 s53, 0")

    def dma():
        out = []
        for q in range(4):
            for mm in range(2):
                out.append(["s_add_u32 s24, s53, s%d" % (48 + q),
                            "s_add_u32 m0, s24, %d" % (mm * 1024),
                            "s_add_u32 s25, s52, s%d" % (44 + q),
                            "buffer_load_dwordx4 %s, s[12:15], s25 offen lds" % ("v14" if mm else "v13")])
        out.append(["s_add_u32 s52, s52, %d" % (NT * 32 * 896),
                    "s_min_u32 s52, s52, %d" % (63 * 32 * 896),
                    "s_xor_b32 s53, s53, 28672"])
        return out
    for g_ in dma():
        for o in g_:
            A(o)
    wait_dep(A, "A", "s30", abort)
    for i in range(PARAM.get("twd", 0)):
        A("s_sleep 127")
    if PARAM.get("twu"):
        wait_dep(A, "U", "s30", abort, 16)
    A("""
    s_mul_i32 s22, s30, %d
    s_mul_i32 s23, %s, %d
    s_add_u32 s22, s22, s23
    s_add_u32 s22, s22, 0x%x
    """ % (28 * 14336, s(S_W), 7 * 14336, AW))
    for n in range(98):
        if n & 3 == 0:
            A("s_add_u32 s23, s22, %d" % (n * 1024))
        A("buffer_load_dwordx4 %s, v9, %s, s23 offen%s" % (W(n // 14, n % 14), SRD, off((n & 3) * 1024)))
        if n % 16 == 15 and n >= 47:
            A("s_waitcnt vmcnt(40)")
    bits(A, v(VA), [(4, 2, 256), (2, 2, 64), (0, 1, 16)])
    bits(A, v(VB), [(5, 1, 256), (4, 1, 32), (2, 2, 64), (0, 1, 16)])
    bits(A, v(VX), [(5, 1, 2048), (4, 1, 512), (0, 4, 16)])
    bits(A, v(VX2), [(5, 1, 512), (4, 1, 4), (0, 4, 16)])
    A("""
    s_and_b32 s29, {W}, 1
    s_lshl_b32 s22, s29, 4
    v_and_b32 v1, 15, v0
    v_add_u32 v1, s22, v1
    v_lshrrev_b32 v2, 4, v0
    v_lshlrev_b32 v2, 2, v2
    v_sub_u32 v3, v1, v2
    s_sub_u32 s54, s29, 1
    s_not_b32 s55, s54
    s_lshl_b32 s22, {W}, 12
    s_add_u32 s22, s22, {RX}
    v_add_u32 {VXW}, s22, v9
    s_lshl_b32 s22, s29, 11
    s_add_u32 s22, s22, {RX}
    v_add_u32 {VXR}, s22, v9
    s_lshl_b32 s22, {W}, 10
    s_add_u32 s22, s22, {RM}
    v_lshl_add_u32 {VMW}, v0, 3, s22
    s_lshl_b32 s22, s29, 9
    s_add_u32 s22, s22, {RM}
    v_lshl_add_u32 {VMR}, v0, 3, s22
    s_lshr_b32 s22, {W}, 1
    s_mul_i32 s22, s22, {C28}
    s_mul_i32 s23, s29, {C12}
    s_add_u32 s56, s22, s23
    s_add_u32 s56, s56, 0x{MEMW:x}
    s_add_u32 s57, s22, 0x{MEMW2:x}
    s_lshr_b32 s59, {W}, 1
    s_mul_i32 s59, s59, 14336
    s_mul_i32 s58, s29, 6144
    s_add_u32 s58, s58, s59
    s_add_u32 s59, s59, 12288
    s_mul_i32 s22, s29, 20480
    s_add_u32 s22, s22, 0x{PX:x}
    s_lshr_b32 s23, s30, 2
    s_lshl_b32 s23, s23, 10
    s_and_b32 s24, s30, 3
    s_lshl_b32 s24, s24, 2
    s_add_u32 s23, s23, s24
    s_add_u32 s23, s23, s22
    s_add_u32 s43, s23, 16384
    s_lshl_b32 s24, s30, 10
    s_add_u32 s42, s22, s24
    """.format(W=s(S_W), RX=RX, RM=RM, VXW=v(VXW), VXR=v(VXR), VMW=v(VMW), VMR=v(VMR), C28=28 * 128, C12=12 * 128,
               MEMW=MEMW, MEMW2=MEMW + 24 * 128, XH=XH, PX=PX))
    for kt in range(2):
        for r in range(4):
            A("v_cmp_le_i32 %s, %d, v3" % (s(60 + 2 * (kt * 4 + r), 2), 16 * kt + r))
    wait_dep(A, "F", None, abort)
    if EV["on"]:
        A("s_waitcnt vmcnt(0)")
        event(A, 1)
    LOOP = A.newlabel("tw_loop")
    A.label(LOOP)
    A("s_xor_b32 s22, s53, 28672")
    A("v_add_u32 v11, s22, v9")
    A("s_waitcnt vmcnt(0)")
    A("s_barrier")

    def xr(ks):
        return ["ds_read_b128 %s, v11%s" % (v(XB + ((ks & 3) * 2 + mm) * 4, 4), off(ks * 2048 + mm * 1024)) for mm in range(2)]
    for ks in range(2):
        for o in xr(ks):
            A(o)
    d_ = dma()
    for ks in range(14):
        A("s_waitcnt lgkmcnt(%d)" % (2 * min(1, 13 - ks)))
        n = 0
        for rt in range(2):
            for tau in range(7):
                d = v(ACC + (rt * 7 + tau) * 4, 4)
                A("%s %s, %s, %s, %s" % (MF32, d, W(tau, ks), v(XB + ((ks & 3) * 2 + rt) * 4, 4), d if ks else "0"))
                if n < 2 and ks + 2 < 14:
                    A(xr(ks + 2)[n])
                if n == 3 and d_:
                    for o in d_.pop(0):
                        A(o)
                n += 1
    A("""
    s_add_u32 s24, s53, s58
    s_add_u32 s25, s53, s59
    s_lshl_b32 s22, {SEG}, 14
    s_add_u32 s26, s22, s56
    s_add_u32 s27, s22, s57
    """.format(SEG=s(S_SEG)))
    for rt in range(2):
        for pp in range(3):
            t = TX + (rt * 4 + pp) * 4
            r0 = ACC + (rt * 7 + 2 * pp) * 4
            r1 = r0 + 4
            A(cvt(t, r0, r0 + 1))
            A(cvt(t + 1, r1, r1 + 1))
            A(cvt(t + 2, r0 + 2, r0 + 3))
            A(cvt(t + 3, r1 + 2, r1 + 3))
        t = TX + (rt * 4 + 3) * 4
        r0 = ACC + (rt * 7 + 6) * 4
        A(cvt(t, r0, r0 + 1))
        A(cvt(t + 2, r0 + 2, r0 + 3))
        A("v_and_b32 %s, s55, %s" % (v(t + 1), v(t)))
        A("v_and_b32 %s, s55, %s" % (v(t + 3), v(t + 2)))
        A("v_and_b32 %s, s54, %s" % (v(t), v(t)))
        A("v_and_b32 %s, s54, %s" % (v(t + 2), v(t + 2)))
    for kt in range(2):
        A("v_add_u32 %s, s24, %s" % (v(PO + kt), v(VX)))
        A("v_add_u32 %s, s25, %s" % (v(PO + 2 + kt), v(VX2)))
        A("s_add_u32 s22, s24, 4096")
        A("v_add_u32 %s, s22, %s" % (v(m + kt), v(VX2)))
        A("s_add_u32 s24, s24, 1024")
        A("s_add_u32 s25, s25, 1024")
    for p in range(4):
        for kt in range(2):
            for e in range(2):
                o = 64 * e + (p if p < 2 else 0)
                A("ds_read2_b32 %s, %s offset0:%d offset1:%d" % (v(XF + (p * 2 + kt) * 4 + 2 * e, 2), v([PO, PO, m, PO + 2][p] + kt), o, o + 2))
    for p in range(4):
        A("s_waitcnt lgkmcnt(%d)" % (12 - 4 * p))
        for rt in range(2):
            for kt in range(2):
                d = v(SX + (rt * 2 + kt) * 4, 4)
                A("%s %s, %s, %s, %s" % (MF32, d, v(XF + (p * 2 + kt) * 4, 4), v(TX + (rt * 4 + p) * 4, 4), d if p else "0"))
    A("s_nop 7")
    for i in range(4):
        A("ds_write_b128 %s, %s%s" % (v(VXW), v(SX + 4 * i, 4), off(i * 1024)))
    A("s_waitcnt lgkmcnt(0)")
    A("s_barrier")
    for w in range(4):
        for kt in range(2):
            A("ds_read_b128 %s, %s%s" % (v(XF + (w * 2 + kt) * 4, 4), v(VXR), off(w * 4096 + kt * 1024)))
    A("v_mov_b32 %s, %s" % (v(m2), NEG))
    A("s_waitcnt lgkmcnt(0)")
    for i in range(0, 8, 2):
        A(pkadd(XF + i, XF + i, XF + 8 + i))
        A(pkadd(XF + 16 + i, XF + 16 + i, XF + 24 + i))
        A(pkadd(SX + i, XF + i, XF + 16 + i))
    for i in range(8):
        A("v_cndmask_b32 %s, %s, %s, %s" % (v(SX + i), v(m2), v(SX + i), s(60 + 2 * i, 2)))
    A("v_max3_f32 %s, %s, %s, %s" % (v(m), v(SX), v(SX + 1), v(SX + 2)))
    A("v_max3_f32 %s, %s, %s, %s" % (v(m), v(m), v(SX + 3), v(SX + 4)))
    A("v_max3_f32 %s, %s, %s, %s" % (v(m), v(m), v(SX + 5), v(SX + 6)))
    A("v_max_f32 %s, %s, %s" % (v(m), v(m), v(SX + 7)))
    A("s_mul_i32 s22, %s, %d" % (s(S_SEG), PX_S))
    A("s_add_u32 s24, s22, s42")
    A("s_add_u32 s25, s22, s43")
    ml = [ld(v(MFR, 4), v(VA), "s26"), ld(v(MFR + 4, 4), v(VA), "s26", 32), ld(v(MFR + 8, 4), v(VB), "s26", 1024), ld(v(MFR + 12, 4), v(VB), "s27")]
    poll(A, ml, range(MFR, MFR + 16), CHK, abort, 1, PARAM.get("tw_sleep", 4))
    for p in range(4):
        for rt in range(2):
            d = v(SM + 4 * rt, 4)
            A("%s %s, %s, %s, %s" % (MF32, d, v(MFR + 4 * p, 4), v(TX + (rt * 4 + p) * 4, 4), d if p else "0"))
    A("s_nop 6")
    A("ds_write_b64 %s, %s" % (v(VMW), v(SM, 2)))
    A("s_nop 3")
    A("ds_write_b64 %s, %s offset:512" % (v(VMW), v(SM + 4, 2)))
    A("s_waitcnt lgkmcnt(0)")
    A("s_barrier")
    NEXT = A.newlabel("tw_next")
    A("s_cmp_ge_u32 %s, 2" % s(S_W))
    A("s_cbranch_scc1 %s" % NEXT)
    for w in range(4):
        A("ds_read_b64 %s, %s%s" % (v(SM + 2 * w, 2), v(VMR), off(w * 1024)))
    A("s_waitcnt lgkmcnt(0)")
    A(pkadd(SM, SM, SM + 2))
    A(pkadd(SM + 4, SM + 4, SM + 6))
    A(pkadd(SX + 8, SM, SM + 4))
    A("v_max3_f32 %s, %s, %s, %s" % (v(m), v(m), v(SX + 8), v(SX + 9)))
    xred(A, "v_max_f32", m, m2)
    for i in range(10):
        A("v_sub_f32 %s, %s, %s" % (v(SX + i), v(SX + i), v(m)))
    for i in range(10):
        A("v_exp_f32 %s, %s" % (v(SX + i), v(SX + i)))
    A("s_nop 0")
    A("v_add_f32 %s, %s, %s" % (v(m), v(SX), v(SX + 1)))
    for i in range(2, 10):
        A("v_add_f32 %s, %s, %s" % (v(m), v(m), v(SX + i)))
    xred(A, "v_add_f32", m, m2)
    A("v_rcp_f32 %s, %s" % (v(m), v(m)))
    A("s_nop 0")
    for i in range(10):
        A("v_mul_f32 %s, %s, %s" % (v(SX + i), v(SX + i), v(m)))
    for i in range(5):
        A(cvt(PO + i, SX + 2 * i, SX + 2 * i + 1))
        A("v_min_u32 %s, -2, %s" % (v(PO + i), v(PO + i)))
    A("buffer_store_dwordx4 %s, v9, %s, s24 offen sc1" % (v(PO, 4), SRD))
    A("buffer_store_dword %s, v9, %s, s25 offen sc1" % (v(PO + 4), SRD))
    A.label(NEXT)
    A("s_add_u32 %s, %s, %d" % (s(S_SEG), s(S_SEG), NT))
    A("s_cmp_lt_u32 %s, 64" % s(S_SEG))
    A("s_cbranch_scc1 %s" % LOOP)
    A("s_waitcnt vmcnt(0)")
    event(A, 3)
    A("s_endpgm")


def gen_shadow(A, abort):
    SETS = [16, 100]
    YA, YP, D, RT, CHK, IDX = 184, 200, 204, 212, 228, 229
    VG, VU, VU2, VL4, VLW, VO = 10, 11, 12, 13, 14, 15
    A("""
    s_load_dwordx2 s[40:41], s[0:1], 80
    s_sub_u32 s30, {R}, {R0}
    s_lshr_b32 s56, s30, 5
    s_and_b32 s30, s30, 31
    s_lshr_b32 s31, s30, 2
    s_and_b32 s29, s30, 3
    s_lshl_b32 s29, s29, 6
    v_lshlrev_b32 v9, 4, v0
    v_add_u32 {VL4}, 4096, v9
    s_mul_i32 s22, {W}, {C1}
    s_mul_i32 s23, s31, {C2}
    s_add_u32 s22, s22, s23
    s_add_u32 s22, s22, s29
    s_add_u32 s22, s22, 0x{VW:x}
    """.format(R=s(S_ROLE), R0=R_SH, VL4=v(VL4), W=s(S_W), C1=4 * 28 * 14336, C2=4 * 14336, VW=VW))
    bits(A, v(VG), [(0, 2, 14336), (4, 2, 256), (2, 2, 16)])
    wait_dep(A, "V", "s30", abort)
    for i in range(PARAM.get("shd", 0)):
        A("s_sleep 127")
    if PARAM.get("shu"):
        wait_dep(A, "U", "s30", abort, 16)
    for hh in range(4):
        for ks in range(14):
            if ks & 3 == 0:
                A("s_add_u32 s23, s22, %d" % (hh * 28 * 14336 + ks * 1024))
            A("buffer_load_dwordx4 %s, %s, %s, s23 offen%s" % (a((hh * 14 + ks) * 4, 4), v(VG), SRD, off((ks & 3) * 1024)))
    bits(A, v(VU), [(1, 1, 32768), (0, 1, 1024), (4, 2, 256), (2, 2, 16)])
    A("v_add_u32 %s, 4096, %s" % (v(VU2), v(VU)))
    idx_const(A, IDX)
    A("s_waitcnt lgkmcnt(0)")
    srd(A, 12, 40, 2048 * 1792)
    A("""
    s_lshl_b32 s44, s31, 16
    s_lshl_b32 s23, {W}, 13
    s_add_u32 s44, s44, s23
    s_add_u32 s44, s44, s29
    s_add_u32 s44, s44, 0x{UB:x}
    s_mov_b32 s45, 0x{MEMW:x}
    s_lshl_b32 s46, {W}, 12
    s_add_u32 s46, s46, 0x{PX:x}
    s_add_u32 s47, s46, 20480
    s_lshl_b32 s48, {W}, 10
    s_add_u32 s48, s48, 0x{PXM:x}
    s_add_u32 s49, s48, 20480
    s_mul_i32 s50, {W}, {RT}
    s_lshl_b32 s23, s30, 5
    s_add_u32 s50, s50, s23
    s_lshl_b32 s23, {W}, 11
    v_add_u32 {VLW}, s23, v9
    s_lshl_b32 s23, {W}, 10
    v_add_u32 v8, s23, v9
    s_mov_b32 {STEP}, s56
    s_lshl_b32 s57, s31, 2
    s_add_u32 s57, s57, {W}
    s_lshl_b32 s57, s57, 7
    s_add_u32 s57, s57, 0x{UF:x}
    s_mov_b32 s58, 0
    """.format(W=s(S_W), UB=UB, MEMW=MEMW, PX=PX, PXM=PX + 16384, RT=16 * 1792, VLW=v(VLW), STEP=s(S_STEP), UF=CNT + C_UF * 128))
    for r_, inc in [(44, U_S), (45, MEM_S), (46, PX_S), (47, PX_S), (48, PX_S), (49, PX_S), (50, 32 * 1792)]:
        A("s_mul_i32 s23, s56, %d" % inc)
        A("s_add_u32 s%d, s%d, s23" % (r_, r_))
    bits(A, v(VO), [(0, 4, 1792), (4, 2, 8)])

    def wait_u(ahead):
        L = A.newlabel("shu")
        G = A.newlabel("shug")
        A("s_add_u32 s59, %s, %d" % (s(S_STEP), ahead))
        A("s_min_u32 s59, s59, 63")
        A("s_cmp_gt_u32 s58, s59")
        A("s_cbranch_scc1 %s" % G)
        A("v_mov_b32 v1, 0")
        A.label(L)
        A("buffer_load_dwordx4 v[4:7], v1, %s, s57 offen sc1" % SRD)
        spin_guard(A, abort)
        A("s_waitcnt vmcnt(0)")
        A("v_min_u32 v4, v4, v5")
        A("v_min3_u32 v4, v4, v6, v7")
        A("s_nop 0")
        A("v_readfirstlane_b32 s58, v4")
        A("s_cmp_gt_u32 s58, s59")
        A("s_cbranch_scc1 %s" % G)
        A("s_sleep 8")
        A("s_branch %s" % L)
        A.label(G)
    wait_dep(A, "F", None, abort)
    wait_u(0)
    event(A, 1)

    def mloads(X, sreg):
        return [ld(v(X + 4 * j, 4), "v9" if j < 4 else v(VL4), sreg, (j & 3) * 1024) for j in range(7)]

    def ploads(X, b):
        out = []
        for rt in range(2):
            for hh in range(4):
                out.append(ld(v(X + 28 + (rt * 5 + hh) * 4, 4), "v9", "s%d" % (b + rt), hh * 1024))
            out.append(ld(v(X + 28 + (rt * 5 + 4) * 4, 4), "v9", "s%d" % (b + 2 + rt)))
        return out

    def uloads(X):
        return [ld(v(X + 68 + 4 * hh, 4), v(VU) if hh < 2 else v(VU2), "s44", (hh & 1) * 2048) for hh in range(4)]

    for o in uloads(SETS[0]) + mloads(SETS[0], "s45") + ploads(SETS[0], 46):
        A(o)
    LOOP = A.newlabel("sh_loop")
    A.label(LOOP)
    for par in range(2):
        X, XN = SETS[par], SETS[1 - par]
        for i in range(16):
            A("v_mov_b32 %s, 0" % v(YA + i))
        OK = A.newlabel("sh_mok")
        A("s_waitcnt vmcnt(10)")
        for i in chk_ops(CHK, range(X, X + 28)):
            A(i)
        A("v_cmp_eq_u32 vcc, -1, %s" % v(CHK))
        A("s_cbranch_vccz %s" % OK)
        poll_light(A, "s45", abort, 2)
        poll(A, mloads(X, "s45"), range(X, X + 28), CHK, abort, 1, 1)
        A.label(OK)
        for j in range(7):
            for hh in range(4):
                A("%s %s, %s, %s, %s" % (SMF, v(YA + 4 * hh, 4), v(X + 4 * j, 4), a((hh * 7 + j) * 8, 8), v(IDX)))
        for i in range(4):
            A("s_mov_b32 s%d, s%d" % (52 + i, 46 + i))
            A("s_add_u32 s%d, s%d, %d" % (46 + i, 46 + i, 2 * PX_S))
        A("s_add_u32 s44, s44, %d" % (2 * U_S))
        A("s_add_u32 s45, s45, %d" % (2 * MEM_S))
        NOPF = A.newlabel("sh_nopf")
        if par == 1:
            PF = A.newlabel("sh_pf")
            A("s_cmp_lt_u32 %s, 62" % s(S_STEP))
            A("s_cbranch_scc1 %s" % PF)
            A("s_waitcnt vmcnt(0)")
            A("s_branch %s" % NOPF)
            A.label(PF)
        wait_u(2)
        for o in uloads(XN) + mloads(XN, "s45") + ploads(XN, 46):
            A(o)
        A.label(NOPF)
        for hh in range(4):
            y = YA + 4 * hh
            A("v_add_f32 %s, %s, %s" % (v(y), v(y), v(y + 2)))
            A("v_add_f32 %s, %s, %s" % (v(y + 1), v(y + 1), v(y + 3)))
            A(cvt(YP + hh, y, y + 1))
        OK = A.newlabel("sh_pok")
        A("s_waitcnt vmcnt(21)")
        for i in chk_ops(CHK, range(X + 28, X + 68)):
            A(i)
        A("v_cmp_eq_u32 vcc, -1, %s" % v(CHK))
        A("s_cbranch_vccz %s" % OK)
        poll(A, ploads(X, 52), range(X + 28, X + 68), CHK, abort, 1, PARAM.get("sh_sleep", 4))
        A.label(OK)
        for hh in range(5):
            for rt in range(2):
                d = v(D + 4 * rt, 4)
                aop = v(X + 68 + 4 * hh, 4) if hh < 4 else v(YP, 4)
                A("%s %s, %s, %s, %s" % (MF32, d, aop, v(X + 28 + (rt * 5 + hh) * 4, 4), d if hh else "0"))
        A("s_nop 7")
        for rt in range(2):
            A("ds_write_b128 %s, %s%s" % (v(VLW), v(D + 4 * rt, 4), off(par * 8192 + rt * 1024)))
        A("s_waitcnt lgkmcnt(0)")
        A("s_barrier")
        SK = A.newlabel("sh_skip")
        A("s_cmp_ge_u32 %s, 2" % s(S_W))
        A("s_cbranch_scc1 %s" % SK)
        for k in range(4):
            A("ds_read_b128 %s, v8%s" % (v(RT + 4 * k, 4), off(par * 8192 + k * 2048)))
        A("s_waitcnt lgkmcnt(0)")
        A(pkadd(RT, RT, RT + 4))
        A(pkadd(RT + 2, RT + 2, RT + 6))
        A(pkadd(RT + 8, RT + 8, RT + 12))
        A(pkadd(RT + 10, RT + 10, RT + 14))
        A(pkadd(RT, RT, RT + 8))
        A(pkadd(RT + 2, RT + 2, RT + 10))
        A(cvt(RT, RT, RT + 1))
        A(cvt(RT + 1, RT + 2, RT + 3))
        A("buffer_store_dwordx2 %s, %s, s[12:15], s50 offen" % (v(RT, 2), v(VO)))
        A.label(SK)
        A("s_add_u32 s50, s50, %d" % (64 * 1792))
        A("s_add_u32 %s, %s, 2" % (s(S_STEP), s(S_STEP)))
    A("s_cmp_lt_u32 %s, 64" % s(S_STEP))
    A("s_cbranch_scc1 %s" % LOOP)
    A("s_waitcnt vmcnt(0)")
    event(A, 3)
    A("s_endpgm")


def gen_bworker(A, abort):
    XB, RAW, WP, ACC = 16, 80, 112, 128
    VXR, VKM, VKE, VONE = 14, 15, 3, 4
    LOG2E = "0x3fb8aa3b"
    EPS = "0x358637bd"
    A("""
    s_load_dwordx8 s[48:55], s[0:1], 56
    s_sub_u32 s30, {R}, {R0}
    s_lshr_b32 s22, s30, 1
    s_sub_u32 s23, s30, 32
    s_cmp_lt_u32 s30, 32
    s_cselect_b32 s30, s22, s23
    v_lshlrev_b32 v9, 4, v0
    s_mov_b32 s60, 0x05040100
    s_mov_b32 s61, 0x07060302
    s_mov_b32 s62, {L}
    s_mov_b32 s63, {E}
    s_waitcnt lgkmcnt(0)
    """.format(R=s(S_ROLE), R0=R_B1, L=LOG2E, E=EPS))
    srd(A, 12, 48, 2048 * 896)
    srd(A, 32, 50, 448 * 2688)
    srd(A, 36, 52, 448 * 896)
    srd(A, 40, 54, 2048 * 1792)
    bits(A, "v13", [(0, 4, 896), (4, 2, 16)])
    A("""
    s_mul_i32 s24, s30, %d
    s_mul_i32 s25, %s, %d
    s_add_u32 s24, s24, s25
    s_add_u32 s25, s24, %d
    s_lshl_b32 s23, %s, 11
    """ % (128 * 896, s(S_W), 32 * 896, 16 * 896, s(S_W)))
    for ks in range(14):
        for m in range(2):
            A("s_add_u32 m0, s23, %d" % (ks * 8192 + m * 1024 - ks * 64))
            A("s_nop 0")
            A("buffer_load_dwordx4 v13, s[12:15], s%d offen%s lds" % (24 + m, off(ks * 64)))

    def offs12():
        bits(A, "v10", [(4, 2, 8 * 2688), (0, 4, 4)])
        A("""
        v_and_b32 v1, 15, v0
        v_cmp_le_u32 vcc, 14, v1
        v_mov_b32 v2, 0x10000000
        s_nop 0
        v_cndmask_b32 v2, 0, v2, vcc
        v_add_u32 v10, v10, v2
        v_add_u32 v11, %d, v10
        v_add_u32 v12, %d, v10
        v_add_u32 v13, %d, v10
        """ % (2 * 2688, 4 * 2688, 6 * 2688))
    A("s_waitcnt vmcnt(0)")
    offs12()
    A("""
    v_cndmask_b32 {VKM}, 1.0, 0, vcc
    v_mul_f32 {VKE}, s63, {VKM}
    v_cmp_eq_u32 vcc, 14, v1
    v_mov_b32 v2, 0x3f803f80
    s_nop 0
    v_cndmask_b32 {VONE}, 0, v2, vcc
    v_lshlrev_b32 v8, 2, v0
    s_barrier
    """.format(VKM=v(VKM), VKE=v(VKE), VONE=v(VONE)))

    def acc(pr, u, mt):
        return ACC + ((pr * 2 + u) * 8 + mt) * 4

    def gemm(nks, sr, addr, step, rows, swapped):
        def raw(st):
            for pr in range(2):
                for j in range(8):
                    vr, o = addr(pr, j)
                    A("buffer_load_dword %s, %s, %s, s44 offen%s" % (v(RAW + st * 16 + pr * 8 + j), vr, sr, off(o)))
            A("s_add_u32 s44, s44, %d" % step)

        def xr(st):
            for mt in range(8):
                A("ds_read_b128 %s, %s%s" % (v(XB + st * 32 + mt * 4, 4), v(VXR), off(mt * 1024)))
            A("v_add_u32 %s, 0x2000, %s" % (v(VXR), v(VXR)))
        raw(0)
        A("v_mov_b32 %s, v9" % v(VXR))
        xr(0)
        for i in range(128):
            A("v_mov_b32 %s, 0" % v(ACC + i))
        A("s_mov_b32 s45, %d" % (nks // 2))
        L = A.newlabel("bg")
        A.label(L)
        for par in range(2):
            raw(1 - par)
            A("s_waitcnt vmcnt(16)")
            for pr in range(2):
                for u in range(2):
                    for p in range(4):
                        r0, r1 = rows[p]
                        b = RAW + par * 16 + pr * 8
                        A("v_perm_b32 %s, %s, %s, s%d" % (v(WP + (pr * 2 + u) * 4 + p), v(b + r1), v(b + r0), 60 + u))
            A("s_waitcnt lgkmcnt(0)")
            xr(1 - par)
            for mt in range(8):
                for pr in range(2):
                    for u in range(2):
                        d = v(acc(pr, u, mt), 4)
                        x = v(XB + par * 32 + mt * 4, 4)
                        w = v(WP + (pr * 2 + u) * 4, 4)
                        p_, q_ = (w, x) if swapped else (x, w)
                        A("%s %s, %s, %s, %s" % (MF32, d, p_, q_, d))
        A("s_sub_u32 s45, s45, 1")
        A("s_cmp_lg_u32 s45, 0")
        A("s_cbranch_scc1 %s" % L)
        A("s_waitcnt vmcnt(0) lgkmcnt(0)")
        A("s_nop 7")

    def phi(r, n, masked):
        t = XB
        for i in range(n):
            A("v_mul_f32 %s, s62, %s" % (v(t + i), v(r + i)))
        for i in range(n):
            A("v_min_f32 %s, 0, %s" % (v(t + i), v(t + i)))
        for i in range(n):
            A("v_exp_f32 %s, %s" % (v(t + i), v(t + i)))
        for i in range(n):
            A("v_max_f32 %s, 0, %s" % (v(r + i), v(r + i)))
        for i in range(n):
            A("v_add_f32 %s, %s, %s" % (v(r + i), v(r + i), v(t + i)))
        for i in range(n):
            if masked:
                A("v_fma_f32 %s, %s, %s, %s" % (v(r + i), v(r + i), v(VKM), v(VKE)))
            else:
                A("v_add_f32 %s, s63, %s" % (v(r + i), v(r + i)))

    rows12 = [(0, 1), (2, 3), (4, 5), (6, 7)]
    A("s_cmp_ge_u32 %s, %d" % (s(S_ROLE), R_B2))
    A("s_cbranch_scc1 .b_p2")
    A("s_and_b32 s31, %s, 1" % s(S_ROLE))
    A("s_lshl_b32 s31, s31, 2")
    A("s_add_u32 s31, s31, %s" % s(S_W))
    A("s_lshl_b32 s31, s31, 1")
    A("s_mov_b32 s29, 0")
    P1 = A.newlabel("b_p1")
    A.label(P1)
    A("s_mul_i32 s44, s31, 56")
    A("s_add_u32 s44, s44, 896")
    gemm(14, "s[32:35]", lambda pr, j: ("v%d" % (10 + (j >> 1)), (j & 1) * 2688 + pr * 896), 32 * 2688, rows12, False)
    phi(ACC, 64, True)
    for pr in range(2):
        for u in range(2):
            for q in range(4):
                r = acc(pr, u, 2 * q)
                for i in range(4):
                    A(cvt(r + i, r + 2 * i, r + 2 * i + 1))
                    if pr == 1 and u == 0:
                        A("v_or_b32 %s, %s, %s" % (v(r + i), v(r + i), v(VONE)))
    A("s_nop 1")
    for q in range(4):
        for dt in range(2):
            for et in range(2):
                d = v(XB + (dt * 2 + et) * 4, 4)
                A("%s %s, %s, %s, %s" % (MF32, d, v(acc(0, dt, 2 * q), 4), v(acc(1, et, 2 * q), 4), d if q else "0"))
    A("s_lshl_b32 s22, s31, 12")
    A("s_add_u32 s22, s22, 0x%x" % KV)
    wait_dep(A, "M", None, abort)
    A("s_nop 7")
    for i in range(16):
        A("buffer_atomic_add_f32 %s, v8, %s, s22 offen%s" % (v(XB + i), SRD, off(i * 256)))
    A("s_add_u32 s31, s31, 1")
    A("s_add_u32 s29, s29, 1")
    A("s_cmp_lt_u32 s29, 2")
    A("s_waitcnt vmcnt(0)")
    A("s_cbranch_scc1 %s" % P1)
    A("s_mov_b32 s26, 0x%x" % (CNT + C_KV * 128))
    signal(A, "s26")
    event(A, 1)
    A("s_endpgm")
    A.label(".b_p2")
    for it in range(2):
        A("s_mul_i32 s44, %s, 224" % s(S_W))
        A("s_add_u32 s44, s44, %d" % (it * 112))
        gemm(14, "s[32:35]", lambda pr, j: ("v%d" % (10 + (j >> 1)), (j & 1) * 2688 + pr * 56), 32 * 2688, rows12, True)
        phi(ACC, 64, False)
        phi(ACC + 64, 64, False)
        for pr in range(2):
            for mt in range(8):
                for u in range(2):
                    r = acc(pr, u, mt)
                    A(cvt(r, r, r + 1))
                    A(cvt(r + 1, r + 2, r + 3))
                    for i in range(2):
                        A("v_accvgpr_write_b32 %s, %s" % (a(((2 * it + pr) * 8 + mt) * 4 + 2 * u + i), v(r + i)))
    event(A, 1)
    wait_counter2(A, C_KV, 32, abort)
    A("s_barrier")
    bits(A, "v10", [(4, 2, 64)], 56)
    A("""
    v_cmp_gt_u32 vcc, 48, v0
    s_lshl_b32 s22, {W}, 15
    v_add_u32 v12, s22, v9
    v_cndmask_b32 v11, 0, -1, vcc
    s_lshl_b32 s22, {W}, 14
    s_add_u32 s22, s22, 0x{KV:x}
    """.format(W=s(S_W), KV=KV))
    for hh in range(4):
        b = ACC + hh * 24
        for i in range(16):
            A("buffer_load_dword %s, v8, %s, s22 offen%s sc1" % (v(b + i), SRD, off(i * 256)))
        for dt in range(2):
            for r in range(4):
                A("buffer_load_dword %s, v10, %s, s22 offen%s sc1" % (v(b + 16 + dt * 4 + r), SRD, off((dt * 8 + r) * 256)))
        A("s_add_u32 s22, s22, 4096")
        if hh == 1:
            A("s_waitcnt vmcnt(0)")
    A("s_waitcnt vmcnt(0)")
    F = RAW
    for hh in range(4):
        b = ACC + hh * 24
        for et in range(2):
            for dt in range(2):
                r = b + (dt * 2 + et) * 4
                A(cvt(F + hh * 12 + et * 4 + 2 * dt, r, r + 1))
                A(cvt(F + hh * 12 + et * 4 + 2 * dt + 1, r + 2, r + 3))
        for i in range(4):
            A(cvt(F + hh * 12 + 8 + i, b + 16 + 2 * i, b + 16 + 2 * i + 1))
    A("s_nop 1")
    for hh in range(4):
        for mt in range(8):
            for k in range(3):
                A("%s %s, %s, %s, 0" % (MF32, v(ACC + (mt * 3 + k) * 4, 4), v(F + hh * 12 + 4 * k, 4), a((hh * 8 + mt) * 4, 4)))
        A("s_nop 7")
        for mt in range(8):
            d = ACC + mt * 12
            A("v_add_f32 %s, s63, %s" % (v(d + 8), v(d + 8)))
            A("v_rcp_f32 %s, %s" % (v(d + 8), v(d + 8)))
            A("s_nop 0")
            for i in range(8):
                A("v_mul_f32 %s, %s, %s" % (v(d + i), v(d + i), v(d + 8)))
            for i in range(4):
                A(cvt(d + i, d + 2 * i, d + 2 * i + 1))
            A("v_and_b32 %s, %s, v11" % (v(d + 1), v(d + 1)))
            A("v_and_b32 %s, %s, v11" % (v(d + 3), v(d + 3)))
            A("ds_write_b128 v12, %s%s" % (v(d, 4), off((hh * 8 + mt) * 1024)))
        A("s_waitcnt lgkmcnt(0)")
    A("s_barrier")
    event(A, 2)
    bits(A, "v10", [(4, 2, 8 * 896), (0, 4, 4)])
    A("v_add_u32 v11, %d, v10" % (4 * 896))
    bits(A, "v12", [(0, 4, 1792), (4, 2, 16)])
    A("s_mov_b32 s31, %s" % s(S_W))
    P3 = A.newlabel("b_p3")
    A.label(P3)
    A("s_lshl_b32 s44, s31, 7")
    gemm(16, "s[36:39]", lambda pr, j: ("v%d" % (10 + (j >> 2)), (j & 3) * 896 + pr * 64), 28 * 896,
         [(0, 2), (4, 6), (1, 3), (5, 7)], True)
    A("""
    s_mul_i32 s22, s30, %d
    s_lshl_b32 s23, s31, 7
    s_add_u32 s22, s22, s23
    s_add_u32 s22, s22, 896
    """ % (128 * 1792))
    for mt in range(8):
        for pr in range(2):
            t = XB + (mt * 2 + pr) * 4
            for r in range(4):
                A(cvt(t + r, acc(pr, 0, mt) + r, acc(pr, 1, mt) + r))
            A("buffer_store_dwordx4 %s, v12, s[40:43], s22 offen%s" % (v(t, 4), off(pr * 64)))
        A("s_add_u32 s22, s22, %d" % (16 * 1792))
    A("s_add_u32 s31, s31, 4")
    A("s_cmp_lt_u32 s31, 7")
    A("s_waitcnt vmcnt(0)")
    A("s_cbranch_scc1 %s" % P3)
    event(A, 3)
    A("s_endpgm")
```
